```python
import torch

def _softmax(x, axis=-1):
    return torch.softmax(x, dim=axis)
def _gelu(x):
    return torch.nn.functional.gelu(x, approximate="tanh")
def _silu(x):
    return torch.nn.functional.silu(x)
def _sigmoid(x):
    return torch.sigmoid(x)
def _layernorm(x, axis=-1, eps=1e-5):
    m = x.mean(dim=axis, keepdim=True)
    v = x.var(dim=axis, keepdim=True, unbiased=False)
    return (x - m) / torch.sqrt(v + eps)
def _scatter_add(tgt, idx, src, axis=0):
    return tgt.clone().index_add_(axis, idx, src)
def _segment_sum(src, seg, n):
    out = torch.zeros((n,) + src.shape[1:], dtype=src.dtype)
    return out.index_add_(0, seg, src)
def _pad(x, pw):
    flat = tuple(v for pair in reversed(pw) for v in pair)
    return torch.nn.functional.pad(x, flat)

kernel_name = 'standalone__gqa_softmax__near_ridge'

def setup_inputs():

    _w = (lambda a: (lambda t: t.to(torch.bfloat16) if t.is_floating_point() else t)(torch.as_tensor(a)))
    B, Hq, Hkv, Sq, Sk, D = 8, 32, 32, 736, 512, 128
    return {
        "q": _w((lambda *s: torch.randn(*s, dtype=torch.bfloat16) * 0.8)(B, Hq, Sq, D)),
        "k": _w((lambda *s: torch.randn(*s, dtype=torch.bfloat16) * 0.8)(B, Hkv, Sk, D)),
        "v": _w((lambda *s: torch.randn(*s, dtype=torch.bfloat16) * 0.05)(B, Hkv, Sk, D)),
    }

def reference(q, k, v):
    B, Hq, Sq, D = q.shape
    Hkv = k.shape[1]
    rep = Hq // Hkv
    k = (lambda x, n, axis: torch.repeat_interleave(x, n, dim=axis))(k, rep, axis=1)
    v = (lambda x, n, axis: torch.repeat_interleave(x, n, dim=axis))(v, rep, axis=1)
    scale = D ** -0.5
    scores = torch.einsum("bhqd,bhkd->bhqk", q, k) * scale
    p = _softmax(scores, axis=-1)
    return torch.einsum("bhqk,bhkd->bhqd", p, v)
```

```python
import sys, struct, math, json
from collections import defaultdict

NAME = "standalone__gqa_softmax__near_ridge_kernel"

class Opt:
    stamps = False
    force_slow = False
    code_prefetch = True
    pk_epi = True
    pk_pre = False
    nblocks = 3
    kv_pol = ''
    q_pol = ''
    o_pol = ''
    olast_pol = ''
    late_issue = 1
    st_sp = 25
    st_g0 = 6
    scyc = 0
    sper = ''
    sgrp = ''
    probe = -1
opt = Opt()

def f2u(x): return struct.unpack("<I", struct.pack("<f", x))[0]
CSCALE = f2u(math.log2(math.e) / math.sqrt(128.0))
THR = f2u(2.0 ** 30)

KB = 0
VE = 65536
VPAR = 32768 + 8
QB = 131088
QW = 7168
NQS = 7
LDS_BYTES = 163840

V_O = 0
V_P = 128
V_S = 192
V_NEGM = 200
V_RAW = 216
V_T = 224
V_RCP = 232
V_MT = 250
V_LT = 240
V_KADDR = 242
V_VADDR = 243
V_QADDR = 244
V_KOFF = 245
V_VOFF = 246
V_OOFF = 247
V_IDX = 248
V_TMP = 249
A_Q = [0, 64]
A_K = 128
A_V = 160
A_L = 192
A_ONE = 208
A_PARK = 212
S_K, S_V, S_Q, S_O = 4, 8, 12, 16
S_KV = 20
S_W = 23
S_QO = 24
S_MK, S_MV, S_MQ = 36, 37, 38
S_SK, S_SV = 39, 40
S_C = 42
S_THR = 44
S_FLAG = 46
S_CMP = 52
S_T = 54
S_STAMP = 64

def vr(b, n=1): return f"v{b}" if n == 1 else f"v[{b}:{b+n-1}]"
def ar(b, n=1): return f"a{b}" if n == 1 else f"a[{b}:{b+n-1}]"
def sr(b, n=1): return f"s{b}" if n == 1 else f"s[{b}:{b+n-1}]"
def R(c, b, n=1): return [(c, b + i) for i in range(n)]

class I:
    __slots__ = ("text", "kind", "rd", "wr", "tag", "cread", "nops", "need", "vm", "lg")
    def __init__(s, text, kind, rd=(), wr=(), tag=None, cread=(), nops=1):
        s.text, s.kind, s.rd, s.wr, s.tag, s.cread, s.nops = text, kind, list(rd), list(wr), tag, list(cread), nops
        s.need = None; s.vm = None; s.lg = None
    def __repr__(s): return s.text

def mfma(dc, d, ac, a, bc, b, c=None):
    f = {"v": vr, "a": ar}
    if c is None: ct, cr = f[dc](d, 4), R(dc, d, 4)
    elif c == "0": ct, cr = "0", []
    else: ct, cr = f[dc](c, 4), R(dc, c, 4)
    return I(f"v_mfma_f32_16x16x32_bf16 {f[dc](d,4)}, {f[ac](a,4)}, {f[bc](b,4)}, {ct}", "mfma",
             rd=R(ac, a, 4) + R(bc, b, 4), wr=R(dc, d, 4), cread=cr)
def smfmac(qb, pb):
    return I(f"v_smfmac_f32_16x16x64_bf16 {ar(A_L+4*qb,4)}, {ar(A_ONE,4)}, {vr(pb,8)}, {vr(V_IDX)}", "smfmac",
             rd=R("a", A_ONE, 4) + R("v", pb, 8) + R("v", V_IDX), wr=R("a", A_L + 4*qb, 4), cread=R("a", A_L + 4*qb, 4))
def valu(text, rd, wr, kind="valu"): return I(text, kind, rd, wr)
def vexp(r): return I(f"v_exp_f32 {vr(r)}, {vr(r)}", "trans", R("v", r), R("v", r))
def vcvt(d, a, b): return I(f"v_cvt_pk_bf16_f32 {vr(d)}, {vr(a)}, {vr(b)}", "valu", R("v", a) + R("v", b), R("v", d))
def salu(text, rd=(), wr=()): return I(text, "salu", rd, wr)
def nop(n): return I(f"s_nop {n-1}", "nop", nops=n)
def wait(vm=None, lg=None, need=None):
    i = I("s_waitcnt", "wait"); i.vm, i.lg, i.need = vm, lg, need; return i
def barrier(): return I("s_barrier", "barrier")
def dsr(dc, d, addr, off, tag):
    f = {"v": vr, "a": ar}[dc]
    return I(f"ds_read_b128 {f(d,4)}, {vr(addr)} offset:{off}", "ds", R("v", addr), R(dc, d, 4), tag)
def dst(d, off, tag):
    return I(f"ds_read_b64_tr_b16 {ar(d,2)}, {vr(V_VADDR)} offset:{off}", "ds", R("v", V_VADDR), R("a", d, 2), tag)
def setm0(sbase, imm):
    return I(f"s_add_u32 m0, {sr(sbase)}, {imm}", "salu", R("s", sbase), [("m", 0)])
def pol(p): return ''.join(' ' + x for x in p.split('_') if x)
def dma(voff, srd, soff, imm, tag):
    o = f" offset:{imm}" if imm else ""
    o += pol(opt.q_pol if srd == S_Q else opt.kv_pol)
    return I(f"buffer_load_dwordx4 {vr(voff)}, {sr(srd,4)}, {sr(soff)} offen{o} lds", "dma",
             R("v", voff) + R("s", srd, 4) + R("s", soff) + [("m", 0)], [], tag)
def vload(d, voff, srd, soff, imm):
    o = f" offset:{imm}" if imm else ""
    o += pol(opt.q_pol)
    return I(f"buffer_load_dwordx4 {vr(d,4)}, {vr(voff)}, {sr(srd,4)}, {sr(soff)} offen{o}", "vload",
             R("v", voff) + R("s", srd, 4) + R("s", soff), R("v", d, 4))
def vstore(d, voff, srd, soff, imm, dc="v", last=False):
    o = f" offset:{imm}" if imm else ""
    o += pol(opt.olast_pol if last else opt.o_pol)
    return I(f"buffer_store_dwordx4 {(vr if dc == 'v' else ar)(d,4)}, {vr(voff)}, {sr(srd,4)}, {sr(soff)} offen{o}", "vstore",
             R(dc, d, 4) + R("v", voff) + R("s", srd, 4) + R("s", soff), [])

def o_reg(db, qb): return V_O + 32*(db >> 1) + 8*qb + 4*(db & 1)
def p_reg(T, qb, ks): return V_P + 32*(T & 1) + 8*qb + 4*ks
def q_reg(r, qb, t): return A_Q[r & 1] + 16*qb + 4*t
def k_reg(kb, t): return A_K + 16*(kb & 1) + 4*t
def v_reg(db, ks): return A_V + 8*(db & 3) + 4*ks
def k_read(T, kb, t, dest=None):
    return dsr("a", k_reg(kb, t) if dest is None else dest, V_KADDR, KB + (T & 3)*16384 + kb*4096 + t*1024, ("K", T))
def v_read(T, db, ks, hf):
    u, p = db >> 1, db & 1
    return dst(v_reg(db, ks) + 2*hf, (T & 3)*8192 + u*2048 + (4*ks + 2*hf)*256 + 8*p, ("V", T))
def k_dma(T, t):
    return setm0(S_MK, (T & 3)*16384 + t*1024 - 64*t), dma(V_KOFF, S_K, S_SK, 64*t, ("K", T))
def v_dma(T, u):
    return setm0(S_MV, (T & 3)*8192 + u*2048 - 64*u), dma(V_VOFF, S_V, S_SV, 64*u, ("V", T))
def k_soff(T): return salu(f"s_add_u32 {sr(S_SK)}, {sr(S_KV + T//8)}, {(T % 8)*16384}", R("s", S_KV + T//8), R("s", S_SK))
def v_soff(T): return salu(f"s_add_u32 {sr(S_SV)}, {sr(S_KV + T//8)}, {(T % 8)*16384}", R("s", S_KV + T//8), R("s", S_SV))
def q_dma(kap):
    r, qb, t = kap // 16, (kap >> 2) & 3, kap & 3
    return setm0(S_MQ, (kap % NQS)*1024 - 64*t), dma(V_KOFF, S_Q, S_QO + 4*r + qb, 64*t, ("Q", kap))
def q_read(kap):
    return dsr("v", V_RAW + 4*(kap & 1), V_QADDR, (kap % NQS)*1024, ("Q", kap))

def prescale_ops(src, dst_a, pk, tbase=V_T):
    ops = []
    if pk:
        for j in range(4):
            ops.append(valu(f"v_lshlrev_b32 {vr(tbase+2*j)}, 16, {vr(src+j)}", R("v", src+j), R("v", tbase+2*j)))
            ops.append(valu(f"v_and_b32 {vr(tbase+2*j+1)}, 0xffff0000, {vr(src+j)}", R("v", src+j), R("v", tbase+2*j+1)))
        for j in range(4):
            ops.append(valu(f"v_pk_mul_f32 {vr(tbase+2*j,2)}, {vr(tbase+2*j,2)}, {sr(S_C,2)}", R("v", tbase+2*j, 2) + R("s", S_C, 2), R("v", tbase+2*j, 2), "pk"))
        for j in range(4):
            ops.append(vcvt(src+j, tbase+2*j, tbase+2*j+1))
        for j in range(4):
            ops.append(valu(f"v_accvgpr_write_b32 {ar(dst_a+j)}, {vr(src+j)}", R("v", src+j), R("a", dst_a+j)))
    else:
        for j in range(4):
            t0 = tbase + 2*(j & 1)
            ops.append(valu(f"v_lshlrev_b32 {vr(t0)}, 16, {vr(src+j)}", R("v", src+j), R("v", t0)))
            ops.append(valu(f"v_and_b32 {vr(t0+1)}, 0xffff0000, {vr(src+j)}", R("v", src+j), R("v", t0+1)))
            ops.append(valu(f"v_mul_f32 {vr(t0)}, {sr(S_C)}, {vr(t0)}", R("v", t0) + R("s", S_C), R("v", t0)))
            ops.append(valu(f"v_mul_f32 {vr(t0+1)}, {sr(S_C)}, {vr(t0+1)}", R("v", t0+1) + R("s", S_C), R("v", t0+1)))
            ops.append(vcvt(src+j, t0, t0+1))
            ops.append(valu(f"v_accvgpr_write_b32 {ar(dst_a+j)}, {vr(src+j)}", R("v", src+j), R("a", dst_a+j)))
    return ops

def max_ops(x, qb):
    m, t, n = V_MT, V_MT + 1, V_NEGM + 4*qb
    ops = [valu(f"v_max3_f32 {vr(m)}, {vr(x)}, {vr(x+1)}, {vr(x+2)}", R("v", x, 3), R("v", m)),
           valu(f"v_max_f32 {vr(m)}, {vr(m)}, {vr(x+3)}", R("v", m) + R("v", x+3), R("v", m)),
           valu(f"v_mov_b32 {vr(t)}, {vr(m)}", R("v", m), R("v", t)),
           "gap2",
           valu(f"v_permlane32_swap_b32 {vr(m)}, {vr(t)}", R("v", m, 2), R("v", m, 2), "perm"),
           valu(f"v_max_f32 {vr(m)}, {vr(m)}, {vr(t)}", R("v", m, 2), R("v", m)),
           valu(f"v_mov_b32 {vr(t)}, {vr(m)}", R("v", m), R("v", t)),
           "gap2",
           valu(f"v_permlane16_swap_b32 {vr(m)}, {vr(t)}", R("v", m, 2), R("v", m, 2), "perm")]
    for j in range(4):
        ops.append(valu(f"v_min_f32_e64 {vr(n+j)}, -{vr(m)}, -{vr(t)}", R("v", m, 2), R("v", n+j)))
    for j in range(4):
        ops.append(valu(f"v_add_f32 {vr(x+j)}, {vr(n)}, {vr(x+j)}", R("v", n) + R("v", x+j), R("v", x+j)))
    return ops

def soft_ops(x, pd):
    return [vexp(x), vexp(x+1), vexp(x+2), vexp(x+3)], [vcvt(pd, x, x+1), vcvt(pd+1, x+2, x+3)]

def l_ops(r, qb, more):
    a = A_L + 4*qb
    ops = [valu(f"v_accvgpr_read_b32 {vr(V_LT)}, {ar(a)}", R("a", a), R("v", V_LT)),
           valu(f"v_accvgpr_read_b32 {vr(V_LT+1)}, {ar(a+1)}", R("a", a+1), R("v", V_LT+1)),
           valu(f"v_add_f32 {vr(V_LT)}, {vr(V_LT)}, {vr(V_LT+1)}", R("v", V_LT, 2), R("v", V_LT)),
           I(f"v_rcp_f32 {vr(V_RCP+2*qb)}, {vr(V_LT)}", "trans", R("v", V_LT), R("v", V_RCP+2*qb))]
    cm = S_CMP + 2*(qb - 1)
    dst = S_FLAG + 2*r if qb == 0 else cm
    ops.append(valu(f"v_cmp_nlt_f32_e64 {sr(dst,2)}, {vr(V_LT)}, {sr(S_THR)}", R("v", V_LT) + R("s", S_THR), R("s", dst, 2)))
    if opt.pk_epi:
        ops.append(valu(f"v_mov_b32 {vr(V_RCP+2*qb+1)}, {vr(V_RCP+2*qb)}", R("v", V_RCP+2*qb), R("v", V_RCP+2*qb+1)))
    if more:
        ops.append(valu(f"v_accvgpr_write_b32 {ar(a)}, 0", [], R("a", a)))
        ops.append(valu(f"v_accvgpr_write_b32 {ar(a+1)}, 0", [], R("a", a+1)))
    if qb:
        ops.append(salu(f"s_or_b64 {sr(S_FLAG+2*r,2)}, {sr(S_FLAG+2*r,2)}, {sr(cm,2)}", R("s", S_FLAG+2*r, 2) + R("s", cm, 2), R("s", S_FLAG+2*r, 2)))
    return ops

def epi_ops(r, u, qb, park=None):
    b = V_O + 32*u + 8*qb
    rc = V_RCP + 2*qb
    mul = []
    if opt.pk_epi:
        for j in range(0, 8, 2):
            mul.append(valu(f"v_pk_mul_f32 {vr(b+j,2)}, {vr(b+j,2)}, {vr(rc,2)}", R("v", b+j, 2) + R("v", rc, 2), R("v", b+j, 2), "pk"))
    else:
        for j in range(8):
            mul.append(valu(f"v_mul_f32 {vr(b+j)}, {vr(rc)}, {vr(b+j)}", R("v", b+j) + R("v", rc), R("v", b+j)))
    cv = [vcvt(b+j, b+2*j, b+2*j+1) for j in range(4)]
    if park is None:
        st = vstore(b, V_OOFF, S_O, S_QO + 4*r + qb, 64*u, last=(r == opt.nblocks - 1))
    else:
        cv += [valu(f"v_accvgpr_write_b32 {ar(park+j)}, {vr(b+j)}", R("v", b+j), R("a", park+j)) for j in range(4)]
        st = vstore(park, V_OOFF, S_O, S_QO + 4*r + qb, 64*u, "a")
    return mul, cv, st

stamp_n = [0]
def stamp(pro=False):
    if not opt.stamps: return []
    if pro and (opt.sper or opt.sgrp): return []
    n = stamp_n[0]; stamp_n[0] += 1
    ins = 's_memtime' if opt.scyc else 's_memrealtime'
    if opt.probe >= 0:
        assert S_STAMP + 2*n + 3 <= 101
        return [I(f"{ins} {sr(S_STAMP+2*n,2)}", "smem", [], R("s", S_STAMP+2*n, 2))]
    out = [I(f"{ins} {sr(S_STAMP+2*(n%16),2)}", "smem", [], [])]
    if n >= 12: out.append(stamp_save(n - 12))
    return out
def stamp_save(n):
    assert n < 192
    return I(f"v_writelane_b32 v{253 + n//64}, s{S_STAMP+2*(n%16)}, {n%64}", "salu")

def setup():
    c = []
    T = V_TMP
    A = lambda t: c.append(salu(t))
    def V(t, rd, wr): c.append(valu(t, rd, wr))
    c.append(salu("s_cmpk_ge_u32 s2, 0x100"))
    c.append(I("s_cbranch_scc1 L_end", "branch"))
    c.append(I("s_load_dwordx4 s[56:59], s[0:1], 0", "smem", [], R("s", 56, 4)))
    c.append(I("s_load_dwordx4 s[60:63], s[0:1], 16", "smem", [], R("s", 60, 4)))
    c += stamp()
    V(f"v_lshrrev_b32 v{T}, 6, v0", R("v", 0), R("v", T))
    V(f"v_and_b32 v{T+1}, 63, v0", R("v", 0), R("v", T+1))
    V(f"v_readfirstlane_b32 s{S_W}, v{T}", R("v", T), R("s", S_W))
    A(f"s_and_b32 s54, s2, 7")
    A(f"s_lshl_b32 s54, s54, 5")
    A(f"s_lshr_b32 s55, s2, 3")
    def blk(r):
        A(f"s_add_u32 s3, s55, {32*r}")
        A(f"s_mul_i32 s45, s3, 43691")
        A(f"s_lshr_b32 s45, s45, 17")
        A(f"s_mul_i32 s41, s45, 3")
        A(f"s_sub_u32 s3, s3, s41")
        A(f"s_add_u32 s45, s45, s54")
        A(f"s_lshl_b32 s{S_KV+r}, s45, 17")
        A(f"s_mul_i32 s45, s45, 188416")
        A(f"s_lshl_b32 s41, s3, 16")
        A(f"s_add_u32 s45, s45, s41")
        A(f"s_mul_i32 s41, s{S_W}, 12288")
        A(f"s_add_u32 s{S_QO+4*r}, s45, s41")
        A(f"s_add_u32 s{S_QO+4*r+1}, s{S_QO+4*r}, 4096")
        A(f"s_lshl_b32 s3, s3, 2")
        A(f"s_add_u32 s3, s3, s{S_W}")
        A(f"s_cmp_eq_u32 s3, 11")
        A(f"s_cselect_b32 s41, 0x70000000, 0")
        A(f"s_add_u32 s41, s41, s{S_QO+4*r}")
        A(f"s_add_u32 s{S_QO+4*r+2}, s41, 8192")
        A(f"s_add_u32 s{S_QO+4*r+3}, s41, 12288")
    L = T + 1
    V(f"v_lshrrev_b32 v{T+2}, 2, v{L}", R("v", L), R("v", T+2))
    V(f"v_lshlrev_b32 v{T+2}, 8, v{T+2}", R("v", T+2), R("v", T+2))
    V(f"v_lshrrev_b32 v{T+3}, 4, v{L}", R("v", L), R("v", T+3))
    V(f"v_and_b32 v{T+4}, 2, v{T+3}", R("v", T+3), R("v", T+4))
    V(f"v_and_b32 v{T+5}, 3, v{L}", R("v", L), R("v", T+5))
    V(f"v_xor_b32 v{T+4}, v{T+4}, v{T+5}", R("v", T+4, 2), R("v", T+4))
    V(f"v_lshl_add_u32 v{T+2}, v{T+4}, 4, v{T+2}", R("v", T+4) + R("v", T+2), R("v", T+2))
    V(f"v_lshl_add_u32 v{V_KOFF}, v{T}, 12, v{T+2}", R("v", T) + R("v", T+2), R("v", V_KOFF))
    V(f"v_and_b32 v{T+4}, 15, v{L}", R("v", L), R("v", T+4))
    V(f"v_lshlrev_b32 v{T+2}, 8, v{T+4}", R("v", T+4), R("v", T+2))
    V(f"v_lshl_add_u32 v{T+2}, v{T+3}, 4, v{T+2}", R("v", T+3) + R("v", T+2), R("v", T+2))
    V(f"v_lshl_add_u32 v{V_OOFF}, v{T}, 12, v{T+2}", R("v", T) + R("v", T+2), R("v", V_OOFF))
    blk(0)
    A(f"s_lshl_b32 s{S_MK}, s{S_W}, 12")
    c.append(wait(lg=0))
    for srd, p, n in ((S_K, 58, 33554432), (S_Q, 56, 48234496), (S_V, 60, 33554432), (S_O, 62, 48234496)):
        A(f"s_mov_b32 s{srd}, s{p}")
        A(f"s_mov_b32 s{srd+1}, s{p+1}")
        A(f"s_mov_b32 s{srd+2}, {n}")
        A(f"s_mov_b32 s{srd+3}, 0x20000")
    c += stamp(True)
    c.append(k_soff(0))
    for t in range(4):
        m, d = k_dma(0, t); c += [m, nop(1), d]
    c += stamp(True)
    for qb in range(4):
        for t in range(4):
            c.append(vload(V_O + 16*qb + 4*t, V_OOFF, S_Q, S_QO + qb, 64*t))
        c += stamp(True)
    V(f"v_lshlrev_b32 v{T+2}, 11, v{T+3}", R("v", T+3), R("v", T+2))
    V(f"v_bfe_u32 v{T+6}, v{L}, 2, 2", R("v", L), R("v", T+6))
    V(f"v_lshl_add_u32 v{T+2}, v{T+6}, 8, v{T+2}", R("v", T+6) + R("v", T+2), R("v", T+2))
    V(f"v_lshl_add_u32 v{T+2}, v{T+5}, 4, v{T+2}", R("v", T+5) + R("v", T+2), R("v", T+2))
    A(f"s_lshr_b32 s3, s{S_W}, 1")
    A(f"s_and_b32 s41, s{S_W}, 1")
    A(f"s_lshl_b32 s45, s3, 13")
    A(f"s_lshl_b32 s52, s41, 10")
    A(f"s_add_u32 s45, s45, s52")
    V(f"v_add_u32 v{V_VOFF}, s45, v{T+2}", R("v", T+2), R("v", V_VOFF))
    A(f"s_mul_i32 s41, s41, {VPAR}")
    A(f"s_lshl_b32 s3, s3, 10")
    A(f"s_add_u32 s3, s3, s41")
    A(f"s_add_u32 s{S_MV}, s3, {VE}")
    seq = [("V", 0), ("K", 1)]
    def issue(kind, Tt):
        c.append(v_soff(Tt) if kind == "V" else k_soff(Tt))
        for t in range(4):
            m, d = (v_dma if kind == "V" else k_dma)(Tt, t); c.extend([m, nop(1), d])
    if not opt.late_issue: issue("V", 0); issue("K", 1)
    if opt.code_prefetch:
        A(f"s_lshl_b32 s3, s55, 2")
        A(f"s_add_u32 s3, s3, s{S_W}")
        A(f"s_lshl_b32 s3, s3, 10")
        A(f"s_min_u32 s3, s3, CODE_LAST_KIB")
        c.append(I("s_getpc_b64 s[52:53]", "salu", [], R("s", 52, 2)))
        c.append(I("L_pc:", "label"))
        A(f"s_add_u32 s52, s52, s3")
        A(f"s_addc_u32 s53, s53, 0")
        V(f"v_lshlrev_b32 v{T+2}, 4, v{L}", R("v", L), R("v", T+2))
        c.append(I(f"global_load_dwordx4 v[{V_RAW}:{V_RAW+3}], v{T+2}, s[52:53]", "vload", R("v", T+2), R("v", V_RAW, 4)))
    if not opt.late_issue:
        for kind, Tt in (("V", 1), ("K", 2), ("V", 2), ("K", 3)): issue(kind, Tt)
    blk(1); blk(2)
    A(f"s_mul_i32 s3, s{S_W}, {QW}")
    A(f"s_add_u32 s{S_MQ}, s3, {QB}")
    V(f"v_lshrrev_b32 v{T+2}, 2, v{T+4}", R("v", T+4), R("v", T+2))
    V(f"v_and_b32 v{T+2}, 2, v{T+2}", R("v", T+2), R("v", T+2))
    V(f"v_xor_b32 v{T+2}, v{T+2}, v{T+3}", R("v", T+2) + R("v", T+3), R("v", T+2))
    V(f"v_lshlrev_b32 v{T+2}, 4, v{T+2}", R("v", T+2), R("v", T+2))
    V(f"v_lshl_add_u32 v{V_KADDR}, v{T+4}, 6, v{T+2}", R("v", T+4) + R("v", T+2), R("v", V_KADDR))
    V(f"v_add_u32 v{V_QADDR}, s{S_MQ}, v{V_KADDR}", R("v", V_KADDR) + R("s", S_MQ), R("v", V_QADDR))
    V(f"v_and_b32 v{T+2}, 1, v{T+3}", R("v", T+3), R("v", T+2))
    V(f"v_mul_u32_u24 v{T+2}, {VPAR}, v{T+2}", R("v", T+2), R("v", T+2))
    V(f"v_lshrrev_b32 v{T+6}, 1, v{T+3}", R("v", T+3), R("v", T+6))
    V(f"v_lshl_add_u32 v{T+2}, v{T+6}, 8, v{T+2}", R("v", T+6) + R("v", T+2), R("v", T+2))
    V(f"v_lshl_add_u32 v{T+2}, v{T+4}, 4, v{T+2}", R("v", T+4) + R("v", T+2), R("v", T+2))
    V(f"v_add_u32 v{V_VADDR}, {VE}, v{T+2}", R("v", T+2), R("v", V_VADDR))
    V(f"v_and_b32 v{T+2}, 1, v{L}", R("v", L), R("v", T+2))
    V(f"v_mul_u32_u24 v{T+2}, 0xaaaa, v{T+2}", R("v", T+2), R("v", T+2))
    V(f"v_add_u32 v{T+2}, 0x4444, v{T+2}", R("v", T+2), R("v", T+2))
    V(f"v_lshl_add_u32 v{V_IDX}, v{T+2}, 16, v{T+2}", R("v", T+2), R("v", V_IDX))
    V(f"v_mov_b32 v{T+2}, 0x3f803f80", [], R("v", T+2))
    for j in range(4): V(f"v_accvgpr_write_b32 a{A_ONE+j}, v{T+2}", R("v", T+2), R("a", A_ONE+j))
    for j in range(16): V(f"v_accvgpr_write_b32 a{A_L+j}, 0", [], R("a", A_L+j))
    A(f"s_mov_b32 s{S_C}, {CSCALE:#x}")
    A(f"s_mov_b32 s{S_C+1}, {CSCALE:#x}")
    A(f"s_mov_b32 s{S_THR}, {0 if opt.force_slow else THR:#x}")
    for j in range(6): A(f"s_mov_b32 s{S_FLAG+j}, 0")
    return c

def flat(ops):
    out = []
    for o in ops:
        out.append(nop(2) if o == "gap2" else o)
    return out

def prologue():
    c = []
    c += stamp(True)
    c.append(wait(vm="auto", need=[("K", 0)]))
    c += stamp(True)
    c.append(barrier())
    c += stamp(True)
    KT = A_Q[1]
    for kb in range(4):
        for t in range(4):
            c.append(k_read(0, kb, t, dest=KT + 16*kb + 4*t))
    X = lambda kb: V_O + 64 + 4*kb
    for qb in range(4):
        c.append(wait(vm="auto", lg="auto"))
        c += stamp(True)
        if opt.late_issue:
            for kind, Tt in ([("K", 1), ("V", 0)], [("K", 2)], [("V", 1)], [("K", 3), ("V", 2)])[qb]:
                c.append(v_soff(Tt) if kind == "V" else k_soff(Tt))
                for t in range(4):
                    m, d = (v_dma if kind == "V" else k_dma)(Tt, t); c.extend([m, nop(1), d])
        for t in range(4):
            c += prescale_ops(V_O + 16*qb + 4*t, q_reg(0, qb, t), True)
        c.append(nop(2))
        for t in range(4):
            c.append(mfma("v", X(0), "a", KT + 4*t, "a", q_reg(0, qb, t), "0" if t == 0 else None))
        c.append(nop(8))
        c += flat(max_ops(X(0), qb))
        e0, c0 = soft_ops(X(0), p_reg(0, qb, 0))
        fill = e0 + c0
        for kb in range(1, 4):
            for t in range(4):
                c.append(mfma("v", X(kb), "a", KT + 16*kb + 4*t, "a", q_reg(0, qb, t), V_NEGM + 4*qb if t == 0 else None))
                if fill: c.append(fill.pop(0))
        for kb in range(1, 4):
            if kb == 3: c.append(nop(1))
            e, cv = soft_ops(X(kb), p_reg(0, qb, kb >> 1) + 2*(kb & 1))
            c += e + [nop(1)] + cv
    c.append(wait(vm="auto", lg=0, need=[("K", 1), ("V", 0)]))
    c.append(barrier())
    c += stamp(True)
    for n in range(10):
        c.append(v_read(0, n >> 2, (n >> 1) & 1, n & 1))
    for t in range(4): c.append(k_read(1, 0, t))
    c.append(k_read(1, 1, 0))
    c.append(k_soff(4)); c.append(v_soff(3))
    for t in range(4):
        m, d = k_dma(4, t); c += [m, nop(1), d]
    for t in range(4):
        m, d = v_dma(3, t); c += [m, nop(1), d]
    if opt.nblocks > 1:
        for kap in range(16, 16 + NQS):
            m, d = q_dma(kap); c += [m, nop(1), d]
    c.append(wait(lg="auto"))
    return c

COST = {"valu": 1, "trans": 2, "pk": 1, "perm": 1, "ds": 1, "dma": 1, "vstore": 3, "vload": 1}
class Gap:
    def __init__(s, m): s.m, s.shadow, s.mem, s.valu = m, None, [], []
    def load(s): return sum(COST[o.kind] for o in s.mem + s.valu)
    def emit(s):
        return [s.m] + ([s.shadow] if s.shadow else []) + s.mem + s.valu

NT = lambda: 8 * opt.nblocks

class Sched:
    def __init__(s):
        s.groups = []
        s.cur = defaultdict(int)
        s.gaps = []
        s.gstart = []
    def add_group(s, gaps):
        s.gstart.append(len(s.gaps)); s.groups.append(gaps); s.gaps += gaps
    def rng(s, G): return s.gstart[G], s.gstart[G] + len(s.groups[G])
    def put_valu(s, stream, G, op, mingap=0, fat=False):
        a, b = s.rng(G); lo = max(a + mingap, s.cur[stream])
        while lo >= b:
            G += 1; a, b = s.rng(G)
        pick = None
        if not fat:
            for g in range(lo, b):
                if s.gaps[g].load() + COST[op.kind] <= 2: pick = g; break
            if pick is None:
                pick = min(range(lo, b), key=lambda g: (s.gaps[g].load(), g))
        else: pick = lo
        s.gaps[pick].valu.append(op); s.cur[stream] = pick
        return pick
    def put_mem(s, stream, G, op, allowed, pre=None):
        a, b = s.rng(G)
        for gi, si in allowed:
            g = a + gi
            if g >= b or g <= s.cur[stream]: continue
            if any(o.kind in ("dma", "vstore") for o in s.gaps[g].mem): continue
            if pre is not None:
                sg = a + si
                if s.gaps[sg].shadow is not None: continue
                s.gaps[sg].shadow = pre
            s.gaps[g].mem.append(op); s.cur[stream] = g
            return g
        raise AssertionError(("no mem slot", stream, G, op))
    def put_shadow(s, G, op, lo=0, hi=None, stream=None):
        a, b = s.rng(G)
        start = a + lo
        if stream is not None: start = max(start, s.cur[stream] + 1)
        end = b if hi is None else a + hi
        g = start
        while True:
            if g >= end and hi is not None: raise AssertionError(("no shadow", G, op))
            if s.gaps[g].shadow is None and not (g + 1 in s.gstart_set or g + 1 == len(s.gaps)):
                s.gaps[g].shadow = op
                if stream is not None: s.cur[stream] = g
                return g
            g += 1

def spread(n, lo, hi):
    return [lo + (k * (hi - lo + 1)) // n for k in range(n)]

def body():
    nt = NT(); nb = opt.nblocks
    S = Sched()
    for T in range(nt):
        r, j = T // 8, T % 8
        hasqk = T + 1 < nt
        smf = {1: [0, 1], 2: [2, 3]} if j == 7 else {2: [0], 4: [1], 6: [2], 8: [3]}
        for i in range(16):
            gaps = []
            if hasqk:
                T1 = T + 1; r1 = T1 // 8; kb, qb = i >> 2, i & 3
                special = (T1 % 8 == 0 and kb == 0)
                d = p_reg(T1, qb, 1) if special else V_S + 4*(i & 1)
                for t in range(4):
                    cc = None if t else ("0" if special else V_NEGM + 4*qb)
                    gaps.append(Gap(mfma("v", d, "a", k_reg(kb, t), "a", q_reg(r1, qb, t), cc)))
            db = i >> 1
            for qb in (2*(i & 1), 2*(i & 1) + 1):
                for ks in range(2):
                    gaps.append(Gap(mfma("v", o_reg(db, qb), "a", v_reg(db, ks), "v", p_reg(T, qb, ks), "0" if (j == 0 and ks == 0) else None)))
            for qb in smf.get(i, []):
                gaps.append(Gap(smfmac(qb, p_reg(T, qb, 0))))
            S.add_group(gaps)
    S.gstart_set = set(S.gstart)
    for T in range(nt):
        hasqk = T + 1 < nt
        for i in range(16):
            G = 16*T + i; gp = S.groups[G]
            for n in (2*G + 10, 2*G + 11):
                Tv = n // 32
                if Tv < nt:
                    rem = n % 32
                    gp[0].mem.append(v_read(Tv, rem >> 2, (rem >> 1) & 1, rem & 1))
            kk = ((i + 1) >> 2) + 1; tt = (i + 1) & 3
            Tk = T + 1 if kk < 4 else T + 2
            if Tk < nt: gp[1].mem.append(k_read(Tk, kk & 3, tt))
            if i == 0: Tu, iu = T, 15
            else: Tu, iu = T + 1, i - 1
            if Tu < nt and not (T == 0 and i == 0) and not (Tu % 8 == 0 and iu < 4):
                kb, qb = iu >> 2, iu & 3
                e, cv = soft_ops(V_S + 4*(iu & 1), p_reg(Tu, qb, kb >> 1) + 2*(kb & 1))
                if hasqk:
                    for k in range(4): gp[2 + k].valu.append(e[k])
                    gp[6].valu.append(cv[0]); gp[7].valu.append(cv[1])
                else:
                    gp[0].valu += e[:1]; gp[1].valu += e[1:3]; gp[2].valu += e[3:] + cv[:1]; gp[3].valu += cv[1:]
            need = None; lg = "auto"; vm = None
            if i == 10:
                need = [x for x in (("K", T + 2), ("V", T + 1)) if x[1] < nt]
                vm = "auto" if need else None; lg = 0
            gp[-1].shadow = wait(vm=vm, lg=lg, need=need)
            if i == 11: gp[0].shadow = barrier()
    DM = [(1, 1), (6, 5)]
    for T in range(nt):
        lst = []
        if T + 5 < nt: lst += [k_dma(T + 5, t) for t in range(4)]; S.put_shadow(16*T + 10, k_soff(T + 5), 2, 6)
        if T + 4 < nt: lst += [v_dma(T + 4, u) for u in range(4)]; S.put_shadow(16*T + 10, v_soff(T + 4), 2, 6)
        for k, (m, d) in enumerate(lst):
            S.put_mem("kv", 16*T + 11 + k // 2, d, [DM[k & 1]], pre=m)
    for r in range(nb - 1):
        T = 8*r + 7
        for qb in range(4):
            G = 16*T + 1 + qb
            x = p_reg(T + 1, qb, 1)
            e, cv = soft_ops(x, p_reg(T + 1, qb, 0))
            ops = max_ops(x, qb) + e + ["gap1"] + cv
            a, b = S.rng(G)
            pos = [1, 1, 2, 2, None, 3, 3, 3, None, 4, 4, 4, 5, 5, 5, 5, 5, 6, 6, 6, 6, 7, None, 7, 7]
            pos = [1, 1, 2, None, 3, 3, 3, None, 4, 4, 4, 4, 4, 5, 5, 5, 5, 5, 6, 6, 6, None, 7, 7]
            assert len(pos) == len(ops), (len(pos), len(ops))
            for p_, o in zip(pos, ops):
                if isinstance(o, str): continue
                gp = S.groups[G][p_]
                if o.kind == "perm" and gp.shadow is None: gp.shadow = nop(1)
                gp.valu.append(o)
    tail = []; stores = []
    for r in range(nb):
        T = 8*r + 7; last = (r == nb - 1)
        for qb in range(4):
            G = 16*T + 3 + qb//2
            for o in l_ops(r, qb, not last):
                if o.kind == "salu": S.put_shadow(G + 2, o, stream="lor")
                else: S.put_valu("l", G, o)
        items = [(u, qb) for u in range(4) for qb in range(4)]
        avail = {it: 16*T + max(4*it[0] + 3 + (it[1] >> 1), 5 + (it[1] >> 1)) for it in items}
        plan = []
        if last:
            for u, qb in items: plan.append(((u, qb), 16*T + 4*u + 5 + qb, 16*T + 4*u + 6 + qb, None))
        else:
            dead = {it: 16*T + 16 + 4*it[0] + (it[1] >> 1) for it in items}
            slots = [16*T + opt.st_g0 + (opt.st_sp * n) // 10 for n in range(16)]
            left = list(items); direct = []
            for sl in slots:
                cand = [it for it in left if avail[it] + 1 <= sl and sl < dead[it]]
                if not cand: continue
                it = min(cand, key=lambda x: dead[x]); left.remove(it); direct.append((it, sl))
            used = [sl for _, sl in direct]
            rest = [sl for sl in slots if sl not in used]
            assert all(sl > max(used) for sl in rest), (slots, used)
            for it, sl in direct: plan.append((it, sl - 1, sl, None))
            busy = defaultdict(int)
            for it, sl in direct: busy[sl - 1] += 1
            for n, (it, sl) in enumerate(zip(left, rest)):
                g = min(range(avail[it], dead[it]), key=lambda x: (busy[x], -x)); busy[g] += 1
                plan.append((it, g, sl, A_PARK + 4*n))
            assert len(left) <= 11
        for (u, qb), G, Gs, park in sorted(plan, key=lambda x: x[1]):
            mul, cv, st = epi_ops(r, u, qb, park)
            if G >= 16*nt:
                tail.append((mul, cv, st)); continue
            ng = len(S.groups[G])
            if opt.pk_epi:
                S.groups[G][ng - 2].valu += mul
                S.groups[G][ng - 1].valu += cv
            else:
                S.cur["epi"] = 0
                for o in mul + cv: S.put_valu("epi", G, o)
            if Gs >= 16*nt: tail.append(([], [], st)); continue
            stores.append((Gs, st))
    for Gs, st in sorted(stores, key=lambda x: x[0]):
        nn = len(S.groups[Gs])
        S.put_mem("epist", Gs, st, [(7, None), (6, None), (1, None), (2, None)] if nn >= 8 else [(1, None), (2, None), (3, None)])
    for r in range(nb - 1):
        rd = spread(16, 16*(8*r + 1) + 0, 16*(8*r + 6) + 8)
        for k in range(16):
            kap = 16*(r + 1) + k; G = rd[k]
            S.put_shadow(G - 1, wait(vm="auto", need=[("Q", kap)]), 2, 7)
            S.groups[G][1].mem.append(q_read(kap))
            nxt = rd[k + 1] if k < 15 else G + 6
            ops = prescale_ops(V_RAW + 4*(kap & 1), q_reg(r + 1, k >> 2, k & 3), opt.pk_pre)
            tg = spread(len(ops), G + 1, min(nxt, G + 6))
            for o, g in zip(ops, tg): S.put_valu("pre", g, o)
            k2 = kap + NQS
            if k2 < 16*nb:
                g = G + 2
                while True:
                    if g % 16 in (15, 0, 1):
                        try:
                            m, d = q_dma(k2)
                            S.put_mem("qd", g, d, DM, pre=m); break
                        except AssertionError: pass
                    g += 1
    c = []
    for G, gp in enumerate(S.groups):
        if opt.sgrp:
            gs = [int(x) for x in opt.sgrp.split('_')]
            if G in gs: c += stamp()
            for g in gp:
                e = g.emit()
                if G in gs and g.shadow is not None and g.shadow.kind == "wait" and g.shadow.vm is not None:
                    e = e[:1] + stamp() + e[1:2] + stamp() + e[2:]
                c += e
            continue
        if G % 16 == 0 and ((G // 16) in [int(x) for x in opt.sper.split('_')] if opt.sper else (G // 16) % 8 in (0, 1, 7)): c += stamp()
        for g in gp: c += g.emit()
    c += stamp()
    c.append(nop(8))
    for mul, cv, st in tail: c += mul + cv + [st]
    c += stamp()
    per = [sum(max(16, 8 + 4*g.load()) for gp in S.groups[16*T:16*T+16] for g in gp) for T in range(nt)]
    stats = dict(per=per, gaps=len(S.gaps), slots=sum(g.load() for g in S.gaps),
                 est_cycles=sum(max(16, 8 + 4*g.load()) for g in S.gaps),
                 under=sum(max(0, 2 - g.load()) for g in S.gaps), over=sum(max(0, g.load() - 2) for g in S.gaps))
    return c, stats

def resolve(code):
    n = len(code)
    isds = [x.kind == "ds" for x in code]
    isvm = [x.kind in ("dma", "vload", "vstore") for x in code]
    lgw = [k for k, x in enumerate(code) if x.kind == "wait" and x.lg is not None]
    vmw = [k for k, x in enumerate(code) if x.kind == "wait" and x.vm is not None]
    def touched(x): return x.rd + x.wr + x.cread
    lastload = {}
    writer_at = [None]*n
    for k, x in enumerate(code):
        dep = set()
        for rg in touched(x):
            if rg in lastload: dep.add(lastload[rg])
        writer_at[k] = dep
        for rg in x.wr: lastload.pop(rg, None)
        if x.kind in ("ds", "vload"):
            for rg in x.wr: lastload[rg] = k
    for lst, flag, attr, kind in ((lgw, isds, "lg", "ds"), (vmw, isvm, "vm", "vload")):
        for a, w in enumerate(lst):
            x = code[w]
            if getattr(x, attr) != "auto": continue
            end = lst[a + 1] if a + 1 < len(lst) else n
            young = -1
            for k in range(w + 1, end):
                for p in writer_at[k]:
                    if code[p].kind == kind and p < w: young = max(young, p)
            if attr == "vm" and x.need:
                for k in range(w):
                    if code[k].kind == "dma" and code[k].tag in x.need: young = max(young, k)
            if young < 0: setattr(x, attr, None)
            else:
                cnt = sum(flag[young + 1:w])
                setattr(x, attr, min(cnt, 15 if attr == "lg" else 63))
    for x in code:
        if x.kind == "wait":
            parts = []
            if x.vm is not None: parts.append(f"vmcnt({x.vm})")
            if x.lg is not None: parts.append(f"lgkmcnt({x.lg})")
            x.text = "s_waitcnt " + " ".join(parts) if parts else None
    return [x for x in code if x.text is not None]

def check(code):
    errs = []
    pos = 0
    P = []
    for x in code:
        P.append(pos); pos += 0 if x.kind == "label" else x.nops
    def dist(a, b): return P[b] - P[a] - code[a].nops
    lastw = {}; lastc = {}; laststore = {}
    dsq = []; vmq = []; done = set()
    smem_pending = set()
    dma_by_tag = defaultdict(list); read_by_tag = defaultdict(list)
    done_at = {}; barriers = []
    slot_of = lambda tag: (tag[0], tag[1] & 3) if tag[0] in "KV" else ("Q", tag[1] % NQS)
    slot_last = {}
    VAL = ("valu", "trans", "pk", "perm")
    for k, x in enumerate(code):
        if x.kind == "wait":
            if x.lg is not None:
                while len(dsq) > x.lg: p = dsq.pop(0); done.add(p); done_at[p] = k
                if x.lg == 0: smem_pending.clear()
            if x.vm is not None:
                while len(vmq) > x.vm: p = vmq.pop(0); done.add(p); done_at[p] = k
            continue
        if x.kind == "barrier": barriers.append(k); continue
        def E(msg, p): errs.append(f"[{k}] {x.text}  <- [{p}] {code[p].text}: {msg}")
        for rg in x.rd + x.cread + x.wr:
            p = lastw.get(rg)
            if p is None: continue
            w = code[p]; d = dist(p, k)
            isread = rg in x.rd or rg in x.cread
            if w.kind in ("ds", "vload"):
                if p not in done: E("load not waited", p)
            elif w.kind in ("mfma", "smfmac"):
                need = 8 if w.kind == "mfma" else 12
                if x.kind in ("mfma", "smfmac"):
                    if rg in x.rd:
                        if d < need: E("mfma D->A/B", p)
                    elif rg in x.cread:
                        if not (x.cread == w.wr and x.kind == w.kind) and d < need - 2: E("mfma D->C overlap", p)
                    else:
                        if d < need - 2 and x.wr != w.wr: E("mfma D->D", p)
                elif d < need: E("mfma D->valu/mem", p)
            elif w.kind in VAL:
                if rg[0] in "va":
                    if x.kind in ("mfma", "smfmac") and isread and d < 2: E("valu->mfma", p)
                    if x.kind == "perm" and isread and d < 2: E("valu->permlane", p)
                    if w.kind == "trans" and x.kind in VAL and x.kind != "trans" and isread and d < 1: E("trans->valu", p)
                    if "readfirstlane" in x.text and d < 1: E("valu->readfirstlane", p)
                if rg[0] == "s":
                    if x.kind in ("dma", "vload", "vstore") and d < 5: E("valu sgpr->vmem", p)
                    if x.kind in VAL and isread and d < 2: E("valu sgpr->valu", p)
            elif w.kind == "salu":
                if rg[0] == "m" and x.kind == "dma" and d < 1: E("m0->dma", p)
        for rg in x.wr:
            p = lastc.get(rg)
            if p is not None and x.kind in VAL and dist(p, k) < (3 if code[p].kind == "mfma" else 7): E("mfma C read -> valu write", p)
            p = laststore.get(rg)
            if p is not None and dist(p, k) < 2: E("store data WAR", p)
        if x.kind == "ds" and x.tag:
            ds = dma_by_tag[x.tag]
            if len(ds) != (1 if x.tag[0] == "Q" else 4): errs.append(f"[{k}] {x.text}: tile {x.tag} has {len(ds)} dma")
            for p in ds:
                if p not in done: E("dma not waited", p)
                elif x.tag[0] != "Q" and not any(done_at[p] < b < k for b in barriers): E("no barrier after dma wait", p)
            if slot_last.get(slot_of(x.tag)) != x.tag: errs.append(f"[{k}] {x.text}: slot holds {slot_last.get(slot_of(x.tag))} not {x.tag}")
            read_by_tag[x.tag].append(k)
        if x.kind == "dma":
            old = slot_last.get(slot_of(x.tag))
            if old is not None and old != x.tag:
                rs = read_by_tag[old]
                exp = {"K": 16, "V": 32, "Q": 1}[old[0]]
                if len(rs) != exp: errs.append(f"[{k}] {x.text}: overwrites {old} after {len(rs)} reads")
                for p in rs:
                    if p not in done: E("slot WAR: read not waited", p)
                    elif old[0] != "Q" and not any(done_at[p] < b < k for b in barriers): E("slot WAR: no barrier", p)
            slot_last[slot_of(x.tag)] = x.tag
            dma_by_tag[x.tag].append(k)
        if x.kind == "ds": dsq.append(k)
        if x.kind in ("dma", "vload", "vstore"):
            vmq.append(k)
            if len(vmq) > 63: errs.append(f"[{k}] more than 63 vmem in flight")
        for rg in x.wr: lastw[rg] = k
        for rg in x.cread: lastc[rg] = k
        if x.kind == "vstore":
            for rg in x.rd[:4]: laststore[rg] = k
    return errs

def slow_path():
    L = []
    A = L.append
    Q, K, SS, P, M, T, LA, VF = 128, 144, 176, 184, 188, 189, 192, 196
    VK, VL, VS, MC = 200, 201, 202, 203
    A("s_or_b64 s[54:55], s[46:47], s[48:49]")
    A("s_or_b64 s[54:55], s[54:55], s[50:51]")
    A("s_cmp_eq_u64 s[54:55], 0")
    A("s_cbranch_scc1 L_end")
    A("s_waitcnt vmcnt(0) lgkmcnt(0)")
    A(f"s_lshl_b32 s3, s{S_W}, 12")
    A(f"v_subrev_u32 v{VK}, s3, v{V_OOFF}")
    A(f"v_mbcnt_lo_u32_b32 v{T}, -1, 0")
    A(f"v_mbcnt_hi_u32_b32 v{T}, -1, v{T}")
    A(f"v_lshlrev_b32 v{VL}, 4, v{T}")
    A(f"v_lshrrev_b32 v{M}, 2, v{T}")
    A(f"v_lshlrev_b32 v{M}, 8, v{M}")
    A(f"v_and_b32 v{T}, 3, v{T}")
    A(f"v_lshl_add_u32 v{M}, v{T}, 4, v{M}")
    A(f"s_lshl_b32 s62, s{S_W}, 13")
    A(f"v_add_u32 v{VS}, s62, v{M}")
    A("s_mov_b32 s56, 0")
    A("L_s_item:")
    A("s_lshr_b32 s57, s56, 2")
    A("s_lshl_b32 s58, s57, 1")
    A("s_mov_b32 m0, s58")
    A("s_nop 1")
    A(f"s_movrels_b64 s[54:55], s[{S_FLAG}:{S_FLAG+1}]")
    A("s_cmp_eq_u64 s[54:55], 0")
    A("s_cbranch_scc1 L_s_next")
    A("s_mov_b32 m0, s56")
    A("s_nop 1")
    A(f"s_movrels_b32 s59, s{S_QO}")
    A("s_mov_b32 m0, s57")
    A("s_nop 1")
    A(f"s_movrels_b32 s60, s{S_KV}")
    for t in range(4): A(f"buffer_load_dwordx4 v[{Q+4*t}:{Q+4*t+3}], v{V_OOFF}, s[{S_Q}:{S_Q+3}], s59 offen offset:{64*t}")
    A(f"v_mov_b32 v{M}, 0xff800000")
    A("s_mov_b32 s61, s60")
    A("s_mov_b32 s63, 32")
    A("L_s_max:")
    for t in range(4): A(f"buffer_load_dwordx4 v[{K+4*t}:{K+4*t+3}], v{VK}, s[{S_K}:{S_K+3}], s61 offen offset:{64*t}")
    A("s_waitcnt vmcnt(0)")
    for t in range(4): A(f"v_mfma_f32_16x16x32_bf16 v[{SS}:{SS+3}], v[{K+4*t}:{K+4*t+3}], v[{Q+4*t}:{Q+4*t+3}], " + ("0" if t == 0 else f"v[{SS}:{SS+3}]"))
    A("s_nop 9")
    A(f"v_max3_f32 v{M}, v{M}, v{SS}, v{SS+1}")
    A(f"v_max3_f32 v{M}, v{M}, v{SS+2}, v{SS+3}")
    A("s_add_u32 s61, s61, 4096")
    A("s_sub_u32 s63, s63, 1")
    A("s_cmp_lg_u32 s63, 0")
    A("s_cbranch_scc1 L_s_max")
    for sw in ("32", "16"):
        A(f"v_mov_b32 v{T}, v{M}")
        A("s_nop 2")
        A(f"v_permlane{sw}_swap_b32 v{M}, v{T}")
        A("s_nop 1")
        A(f"v_max_f32 v{M}, v{M}, v{T}")
    A(f"v_mul_f32 v{MC}, s{S_C}, v{M}")
    for j in range(32): A(f"v_mov_b32 v{j}, 0")
    for j in range(4): A(f"v_mov_b32 v{LA+j}, 0")
    A("s_mov_b32 s61, s60")
    A("s_mov_b32 s63, 16")
    A("L_s_pv:")
    for h in range(2):
        A(f"s_add_u32 s3, s61, {4096*h}")
        for t in range(4): A(f"buffer_load_dwordx4 v[{K+16*h+4*t}:{K+16*h+4*t+3}], v{VK}, s[{S_K}:{S_K+3}], s3 offen offset:{64*t}")
        A(f"s_add_u32 m0, s62, {4096*h}")
        A("s_nop 1")
        for t in range(4): A(f"buffer_load_dwordx4 v{VL}, s[{S_V}:{S_V+3}], s3 offen offset:{1024*t} lds")
    A("s_waitcnt vmcnt(0)")
    for h in range(2):
        for t in range(4): A(f"v_mfma_f32_16x16x32_bf16 v[{SS+4*h}:{SS+4*h+3}], v[{K+16*h+4*t}:{K+16*h+4*t+3}], v[{Q+4*t}:{Q+4*t+3}], " + ("0" if t == 0 else f"v[{SS+4*h}:{SS+4*h+3}]"))
    A("s_nop 9")
    for j in range(8): A(f"v_fma_f32 v{SS+j}, v{SS+j}, s{S_C}, -v{MC}")
    for j in range(8): A(f"v_exp_f32 v{SS+j}, v{SS+j}")
    A("s_nop 1")
    for j in range(4): A(f"v_cvt_pk_bf16_f32 v{P+j}, v{SS+2*j}, v{SS+2*j+1}")
    A("s_nop 2")
    A(f"v_mfma_f32_16x16x32_bf16 v[{LA}:{LA+3}], a[{A_ONE}:{A_ONE+3}], v[{P}:{P+3}], v[{LA}:{LA+3}]")
    for db in range(8):
        u, p = db >> 1, db & 1
        for hf in range(2): A(f"ds_read_b64_tr_b16 v[{VF+2*hf}:{VF+2*hf+1}], v{VS} offset:{4096*hf + 64*u + 8*p}")
        A("s_waitcnt lgkmcnt(0)")
        o = 8*u + 4*p
        A(f"v_mfma_f32_16x16x32_bf16 v[{o}:{o+3}], v[{VF}:{VF+3}], v[{P}:{P+3}], v[{o}:{o+3}]")
        A("s_nop 3")
    A("s_add_u32 s61, s61, 8192")
    A("s_sub_u32 s63, s63, 1")
    A("s_cmp_lg_u32 s63, 0")
    A("s_cbranch_scc1 L_s_pv")
    A("s_nop 9")
    A(f"v_rcp_f32 v{T}, v{LA}")
    A("s_nop 1")
    for j in range(32): A(f"v_mul_f32 v{j}, v{T}, v{j}")
    for u in range(4):
        for j in range(4): A(f"v_cvt_pk_bf16_f32 v{8*u+j}, v{8*u+2*j}, v{8*u+2*j+1}")
        A(f"buffer_store_dwordx4 v[{8*u}:{8*u+3}], v{V_OOFF}, s[{S_O}:{S_O+3}], s59 offen offset:{64*u}")
    A("s_waitcnt vmcnt(0)")
    A("L_s_next:")
    A("s_add_u32 s56, s56, 1")
    A(f"s_cmp_lt_u32 s56, {4*opt.nblocks}")
    A("s_cbranch_scc1 L_s_item")
    return L

def stamp_out():
    if not opt.stamps: return []
    if opt.probe >= 0:
        n = stamp_n[0]
        return ["s_waitcnt vmcnt(0)", f"s_memrealtime s[{S_STAMP+2*n}:{S_STAMP+2*n+1}]", "s_waitcnt lgkmcnt(0)",
                f"s_sub_u32 s3, s{S_STAMP+2*opt.probe}, s{S_STAMP}", "s_lshl_b32 s3, s3, 2", "s_add_u32 s3, s3, 10000",
                "L_spin:", "s_sleep 2", "s_memrealtime s[56:57]", "s_waitcnt lgkmcnt(0)", f"s_sub_u32 s56, s56, s{S_STAMP}",
                "s_cmp_lt_u32 s56, s3", "s_cbranch_scc1 L_spin"]
    L = ["s_waitcnt vmcnt(0)"] + [x.text for x in stamp()] + ["s_load_dwordx2 s[56:57], s[0:1], 40", "s_waitcnt lgkmcnt(0)"]
    n = stamp_n[0]
    L += [stamp_save(k).text for k in range(max(0, n - 12), n)]
    L += ["s_mov_b32 s58, 0x1000000", "s_mov_b32 s59, 0x20000", "s_lshl_b32 s3, s2, 2", f"s_add_u32 s3, s3, s{S_W}", "s_lshl_b32 s3, s3, 10",
          "v_mbcnt_lo_u32_b32 v1, -1, 0", "v_mbcnt_hi_u32_b32 v1, -1, v1", "v_lshl_add_u32 v1, v1, 2, s3", f"v_mov_b32 v2, {n}",
          "buffer_store_dword v2, v1, s[56:59], 0 offen offset:768"]
    for k in range(3): L.append(f"buffer_store_dword v{253+k}, v1, s[56:59], 0 offen offset:{256*k}")
    L += ["s_getpc_b64 s[60:61]", "L_pc2:", "s_load_dwordx2 s[56:57], s[0:1], 32", "s_waitcnt lgkmcnt(0)", "s_mov_b32 s58, 256",
          f"s_sub_u32 s60, s60, L_pc2 - {NAME}", "s_subb_u32 s61, s61, 0", "v_mov_b32 v2, s60", "v_mov_b32 v3, s61", "v_mov_b32 v1, 0",
          "buffer_store_dwordx2 v[2:3], v1, s[56:59], 0 offen"]
    L += ["s_waitcnt vmcnt(0)"]
    return L

HEADER = """; Attention forward, B8 H32 Sq736 Sk512 D128, bf16 in/out.
; q(8,32,736,128) k,v(8,32,512,128) out(8,32,736,128); kernarg: q,k,v,out,debug,ws pointers.
; 256 persistent workgroups x 4 waves (one wave per SIMD, 512 registers); each does three (head, 256-row) blocks.
; S^T = K Q^T and O^T = V^T P^T with 16x16x32 bf16 MFMA; K/V tiles (64 keys) stream through a 4-slot LDS ring by LDS-DMA.
; Softmax shift: per row, the maximum over the first 16 keys stands in for the row maximum (softmax is shift invariant);
; a run-time check on every row sum (must stay below 2^30, NaN fails too) sends the block to a fallback that
; recomputes it with the true row maximum.
; @launch grid=(256,1,1) block=(256,1,1) lds=%d
""" % LDS_BYTES

def generate():
    stamp_n[0] = 0
    main, stats = None, None
    s = setup(); p = prologue(); main, stats = body()
    code = resolve(s + p + main)
    errs = check(code)
    lines = [x.text if x.kind == "label" else "  " + x.text for x in code]
    lines += [x if x.endswith(":") else "  " + x for x in stamp_out() + slow_path()]
    nbytes_guess = "(((L_end - L_pc) >> 10) << 10) - 1024"
    txt = HEADER + f""".amdgcn_target "amdgcn-amd-amdhsa--gfx950"
.text
.globl {NAME}
.p2align 8
.type {NAME},@function
{NAME}:
""" + "\n".join(lines).replace("CODE_LAST_KIB", nbytes_guess) + f"""
L_end:
  s_endpgm
.section .rodata,"a"
.p2align 6
.amdhsa_kernel {NAME}
  .amdhsa_next_free_vgpr 512
  .amdhsa_next_free_sgpr 102
  .amdhsa_accum_offset 256
  .amdhsa_group_segment_fixed_size 0
  .amdhsa_kernarg_size 48
  .amdhsa_user_sgpr_count 2
  .amdhsa_user_sgpr_kernarg_segment_ptr 1
  .amdhsa_system_sgpr_workgroup_id_x 1
  .amdhsa_float_denorm_mode_32 3
.end_amdhsa_kernel
"""
    return txt, errs, stats

if __name__ == "__main__":
    out = sys.argv[1]
    for a in sys.argv[2:]:
        k, v = a.split("="); t = type(getattr(opt, k)); setattr(opt, k, v if t is str else t(int(v)))
    txt, errs, stats = generate()
    for e in errs[:40]: print("HAZARD", e)
    print(len(errs), "hazards;", stats, len(txt), "chars")
    open(out, "w").write(txt)
    sys.exit(1 if errs else 0)
```

```python
import sys, struct, math, json
from collections import defaultdict

NAME = "standalone__gqa_softmax__near_ridge_kernel"

class Opt:
    stamps = False
    force_slow = False
    code_prefetch = False
    pk_epi = True
    pk_pre = False
    nblocks = 3
    kv_pol = ''
    q_pol = ''
    o_pol = ''
    olast_pol = ''
    late_issue = 1
    st_sp = 25
    st_g0 = 6
    scyc = 0
    sper = ''
    sgrp = ''
    line_prefetch = 1
    stub_early = 0
    nstub_rounds = 4
    jit_every = 29
    jit_first = 2
    jit_g0 = 23
    stubs = 1
    lin_dma = 0
    probe0 = 0
    pavg = 0
    probe = -1
opt = Opt()

def f2u(x): return struct.unpack("<I", struct.pack("<f", x))[0]
CSCALE = f2u(math.log2(math.e) / math.sqrt(128.0))
THR = f2u(2.0 ** 30)

VE = 0
KB = 65552
VPAR = 32768 + 8
QB = 131088
QW = 7168
NQS = 3
LDS_BYTES = 163840

V_O = 0
V_P = 128
V_S = 192
V_NEGM = 200
V_RAW = 216
V_T = 224
V_JIT = 252
A_DUMMY = 255
V_RCP = 232
V_MT = 224
V_LT = 226
V_KADDR = 240
V_VADDR = 242
V_QADDR = 249
V_KOFF = 245
V_VOFF = 246
V_OOFF = 247
V_IDX = 248
V_TMP = 64
A_Q = [0, 64]
A_K = 128
A_V = 160
A_L = 192
A_ONE = 208
A_PARK = 212
S_K, S_V, S_Q, S_O = 4, 8, 12, 16
S_KV = 20
S_W = 23
S_QO = 24
S_MK, S_MV, S_MQ = 36, 37, 38
S_SK, S_SV = 39, 40
S_MQ1 = 62
S_C = 42
S_THR = 44
S_FLAG = 46
S_CMP = 52
S_T = 54
S_WARM = 99
S_PC = 100
S_STAMP = 64

def vr(b, n=1): return f"v{b}" if n == 1 else f"v[{b}:{b+n-1}]"
def ar(b, n=1): return f"a{b}" if n == 1 else f"a[{b}:{b+n-1}]"
def sr(b, n=1): return f"s{b}" if n == 1 else f"s[{b}:{b+n-1}]"
def R(c, b, n=1): return [(c, b + i) for i in range(n)]

class I:
    __slots__ = ("text", "kind", "rd", "wr", "tag", "cread", "nops", "need", "vm", "lg", "after")
    def __init__(s, text, kind, rd=(), wr=(), tag=None, cread=(), nops=1):
        s.text, s.kind, s.rd, s.wr, s.tag, s.cread, s.nops = text, kind, list(rd), list(wr), tag, list(cread), nops
        s.need = None; s.vm = None; s.lg = None; s.after = []
    def __repr__(s): return s.text

def mfma(dc, d, ac, a, bc, b, c=None):
    f = {"v": vr, "a": ar}
    if c is None: ct, cr = f[dc](d, 4), R(dc, d, 4)
    elif c == "0": ct, cr = "0", []
    else: ct, cr = f[dc](c, 4), R(dc, c, 4)
    return I(f"v_mfma_f32_16x16x32_bf16 {f[dc](d,4)}, {f[ac](a,4)}, {f[bc](b,4)}, {ct}", "mfma",
             rd=R(ac, a, 4) + R(bc, b, 4), wr=R(dc, d, 4), cread=cr)
def smfmac(qb, pb):
    return I(f"v_smfmac_f32_16x16x64_bf16 {ar(A_L+4*qb,4)}, {ar(A_ONE,4)}, {vr(pb,8)}, {vr(V_IDX)}", "smfmac",
             rd=R("a", A_ONE, 4) + R("v", pb, 8) + R("v", V_IDX), wr=R("a", A_L + 4*qb, 4), cread=R("a", A_L + 4*qb, 4))
def valu(text, rd, wr, kind="valu"): return I(text, kind, rd, wr)
def vexp(r): return I(f"v_exp_f32 {vr(r)}, {vr(r)}", "trans", R("v", r), R("v", r))
def vcvt(d, a, b): return I(f"v_cvt_pk_bf16_f32 {vr(d)}, {vr(a)}, {vr(b)}", "valu", R("v", a) + R("v", b), R("v", d))
def salu(text, rd=(), wr=()): return I(text, "salu", rd, wr)
def nop(n): return I(f"s_nop {n-1}", "nop", nops=n)
def wait(vm=None, lg=None, need=None):
    i = I("s_waitcnt", "wait"); i.vm, i.lg, i.need = vm, lg, need; return i
def barrier(): return I("s_barrier", "barrier")
def dsr(dc, d, addr, off, tag):
    f = {"v": vr, "a": ar}[dc]
    return I(f"ds_read_b128 {f(d,4)}, {vr(addr)} offset:{off}", "ds", R("v", addr), R(dc, d, 4), tag)
def dst(d, addr, off, tag):
    return I(f"ds_read_b64_tr_b16 {ar(d,2)}, {vr(addr)} offset:{off}", "ds", R("v", addr), R("a", d, 2), tag)
def setm0(sbase, imm):

    return I(f"s_add_u32 m0, {sr(sbase)}, {imm}", "salu", R("s", sbase), [("m", 0)])
def pol(p): return ''.join(' ' + x for x in p.split('_') if x)
def dma(voff, srd, soff, imm, tag):
    o = f" offset:{imm}" if imm else ""
    o += pol(opt.q_pol if srd == S_Q else opt.kv_pol)
    return I(f"buffer_load_dwordx4 {vr(voff)}, {sr(srd,4)}, {sr(soff)} offen{o} lds", "dma",
             R("v", voff) + R("s", srd, 4) + R("s", soff) + [("m", 0)], [], tag)
def vload(d, voff, srd, soff, imm):
    o = f" offset:{imm}" if imm else ""
    o += pol(opt.q_pol)
    return I(f"buffer_load_dwordx4 {vr(d,4)}, {vr(voff)}, {sr(srd,4)}, {sr(soff)} offen{o}", "vload",
             R("v", voff) + R("s", srd, 4) + R("s", soff), R("v", d, 4))
def vstore(d, voff, srd, soff, imm, dc="v", last=False):
    o = f" offset:{imm}" if imm else ""
    o += pol(opt.olast_pol if last else opt.o_pol)
    return I(f"buffer_store_dwordx4 {(vr if dc == 'v' else ar)(d,4)}, {vr(voff)}, {sr(srd,4)}, {sr(soff)} offen{o}", "vstore",
             R(dc, d, 4) + R("v", voff) + R("s", srd, 4) + R("s", soff), [])

def o_reg(db, qb): return V_O + 32*(db >> 1) + 8*qb + 4*(db & 1)
def p_reg(T, qb, ks): return V_P + 32*(T & 1) + 8*qb + 4*ks
def q_reg(r, qb, t): return A_Q[r & 1] + 16*qb + 4*t
def k_reg(kb, t): return A_K + 16*(kb & 1) + 4*t
def v_reg(db, ks): return A_V + 8*(db & 3) + 4*ks
def k_read(T, kb, t, dest=None):
    return dsr("a", k_reg(kb, t) if dest is None else dest, V_KADDR + (t & 1), (T & 3)*16384 + kb*4096 + (t >> 1)*2048, ("K", T))
def v_read(T, db, ks, hf, dest=None):
    u, p = db >> 1, db & 1
    return dst(v_reg(db, ks) + 2*hf if dest is None else dest, V_VADDR + (u & 1), (T & 3)*8192 + (2*ks + hf)*2048 + (u >> 1)*1024 + 8*p, ("V", T))
def kq_imm(j): return (j & 1)*2048 + (j >> 1)*128
def k_dma(T, j):
    return setm0(S_MK, (T & 3)*16384 + j*1024 - kq_imm(j)), dma(V_KOFF, S_K, S_SK, kq_imm(j), ("K", T))
def v_dma(T, j):
    par, up = j & 1, j >> 1; imm = par*1024 + up*128
    return setm0(S_MV, par*VPAR + (T & 3)*8192 + up*1024 - imm), dma(V_VOFF, S_V, S_SV, imm, ("V", T))
def k_soff(T): return salu(f"s_add_u32 {sr(S_SK)}, {sr(S_KV + T//8)}, {(T % 8)*16384}", R("s", S_KV + T//8), R("s", S_SK))
def v_soff(T): return salu(f"s_add_u32 {sr(S_SV)}, {sr(S_KV + T//8)}, {(T % 8)*16384}", R("s", S_KV + T//8), R("s", S_SV))
def q_dma(pc, hh):
    r, qb, tp = pc // 8, (pc >> 1) & 3, pc & 1
    j = 2*tp + hh
    return setm0(S_MQ, (pc % NQS)*2048 + hh*1024 - kq_imm(j)), dma(V_KOFF, S_Q, S_QO + 4*r + qb, kq_imm(j), ("Q", pc))
def qp_dma(qb, j):
    base, off = [(S_MQ, 0), (S_MQ1, 0), (S_MK, 32768), (S_MK, 49152)][qb]
    return setm0(base, off + 1024*j - kq_imm(j)), dma(V_KOFF, S_Q, S_QO + qb, kq_imm(j), ("P", qb))
def qp_read(qb, t):
    addr, off = [(V_QADDR, 0), (V_RCP, 0), (V_RCP + 2, 32768), (V_RCP + 2, 49152)][qb]
    return dsr("v", V_O + 16*qb + 4*t, addr + (t & 1), off + 2048*(t >> 1), ("P", qb))
def q_read(kap):
    return dsr("v", V_RAW + 4*(kap & 1), V_QADDR + (kap & 1), ((kap >> 1) % NQS)*2048, ("Q", kap >> 1))

def prescale_ops(src, dst_a, pk, tbase=V_T):
    ops = []
    if pk:
        for j in range(4):
            ops.append(valu(f"v_lshlrev_b32 {vr(tbase+2*j)}, 16, {vr(src+j)}", R("v", src+j), R("v", tbase+2*j)))
            ops.append(valu(f"v_and_b32 {vr(tbase+2*j+1)}, 0xffff0000, {vr(src+j)}", R("v", src+j), R("v", tbase+2*j+1)))
        for j in range(4):
            ops.append(valu(f"v_pk_mul_f32 {vr(tbase+2*j,2)}, {vr(tbase+2*j,2)}, {sr(S_C,2)}", R("v", tbase+2*j, 2) + R("s", S_C, 2), R("v", tbase+2*j, 2), "pk"))
        for j in range(4):
            ops.append(vcvt(src+j, tbase+2*j, tbase+2*j+1))
        for j in range(4):
            ops.append(valu(f"v_accvgpr_write_b32 {ar(dst_a+j)}, {vr(src+j)}", R("v", src+j), R("a", dst_a+j)))
    else:
        for j in range(4):
            t0 = tbase + 2*(j & 1)
            ops.append(valu(f"v_lshlrev_b32 {vr(t0)}, 16, {vr(src+j)}", R("v", src+j), R("v", t0)))
            ops.append(valu(f"v_and_b32 {vr(t0+1)}, 0xffff0000, {vr(src+j)}", R("v", src+j), R("v", t0+1)))
            ops.append(valu(f"v_mul_f32 {vr(t0)}, {sr(S_C)}, {vr(t0)}", R("v", t0) + R("s", S_C), R("v", t0)))
            ops.append(valu(f"v_mul_f32 {vr(t0+1)}, {sr(S_C)}, {vr(t0+1)}", R("v", t0+1) + R("s", S_C), R("v", t0+1)))
            ops.append(vcvt(src+j, t0, t0+1))
            ops.append(valu(f"v_accvgpr_write_b32 {ar(dst_a+j)}, {vr(src+j)}", R("v", src+j), R("a", dst_a+j)))
    return ops

def max_ops(x, qb, mt=V_MT):
    m, t, n = mt, mt + 1, V_NEGM + 4*qb
    ops = [valu(f"v_max3_f32 {vr(m)}, {vr(x)}, {vr(x+1)}, {vr(x+2)}", R("v", x, 3), R("v", m)),
           valu(f"v_max_f32 {vr(m)}, {vr(m)}, {vr(x+3)}", R("v", m) + R("v", x+3), R("v", m)),
           valu(f"v_mov_b32 {vr(t)}, {vr(m)}", R("v", m), R("v", t)),
           "gap2",
           valu(f"v_permlane32_swap_b32 {vr(m)}, {vr(t)}", R("v", m, 2), R("v", m, 2), "perm"),
           valu(f"v_max_f32 {vr(m)}, {vr(m)}, {vr(t)}", R("v", m, 2), R("v", m)),
           valu(f"v_mov_b32 {vr(t)}, {vr(m)}", R("v", m), R("v", t)),
           "gap2",
           valu(f"v_permlane16_swap_b32 {vr(m)}, {vr(t)}", R("v", m, 2), R("v", m, 2), "perm")]
    for j in range(4):
        ops.append(valu(f"v_min_f32_e64 {vr(n+j)}, -{vr(m)}, -{vr(t)}", R("v", m, 2), R("v", n+j)))
    for j in range(4):
        ops.append(valu(f"v_add_f32 {vr(x+j)}, {vr(n)}, {vr(x+j)}", R("v", n) + R("v", x+j), R("v", x+j)))
    return ops

def soft_ops(x, pd):
    return [vexp(x), vexp(x+1), vexp(x+2), vexp(x+3)], [vcvt(pd, x, x+1), vcvt(pd+1, x+2, x+3)]

def l_ops(r, qb, more):
    a = A_L + 4*qb
    ops = [valu(f"v_accvgpr_read_b32 {vr(V_LT)}, {ar(a)}", R("a", a), R("v", V_LT)),
           valu(f"v_accvgpr_read_b32 {vr(V_LT+1)}, {ar(a+1)}", R("a", a+1), R("v", V_LT+1)),
           valu(f"v_add_f32 {vr(V_LT)}, {vr(V_LT)}, {vr(V_LT+1)}", R("v", V_LT, 2), R("v", V_LT)),
           I(f"v_rcp_f32 {vr(V_RCP+2*qb)}, {vr(V_LT)}", "trans", R("v", V_LT), R("v", V_RCP+2*qb))]
    cm = S_CMP + 2*(qb - 1)
    dst = S_FLAG + 2*r if qb == 0 else cm
    ops.append(valu(f"v_cmp_nlt_f32_e64 {sr(dst,2)}, {vr(V_LT)}, {sr(S_THR)}", R("v", V_LT) + R("s", S_THR), R("s", dst, 2)))
    if opt.pk_epi:
        ops.append(valu(f"v_mov_b32 {vr(V_RCP+2*qb+1)}, {vr(V_RCP+2*qb)}", R("v", V_RCP+2*qb), R("v", V_RCP+2*qb+1)))
    if more:
        ops.append(valu(f"v_accvgpr_write_b32 {ar(a)}, 0", [], R("a", a)))
        ops.append(valu(f"v_accvgpr_write_b32 {ar(a+1)}, 0", [], R("a", a+1)))
    if qb:
        ops.append(salu(f"s_or_b64 {sr(S_FLAG+2*r,2)}, {sr(S_FLAG+2*r,2)}, {sr(cm,2)}", R("s", S_FLAG+2*r, 2) + R("s", cm, 2), R("s", S_FLAG+2*r, 2)))
    return ops

def epi_ops(r, u, qb, park=None):
    b = V_O + 32*u + 8*qb
    rc = V_RCP + 2*qb
    mul = []
    if opt.pk_epi:
        for j in range(0, 8, 2):
            mul.append(valu(f"v_pk_mul_f32 {vr(b+j,2)}, {vr(b+j,2)}, {vr(rc,2)}", R("v", b+j, 2) + R("v", rc, 2), R("v", b+j, 2), "pk"))
    else:
        for j in range(8):
            mul.append(valu(f"v_mul_f32 {vr(b+j)}, {vr(rc)}, {vr(b+j)}", R("v", b+j) + R("v", rc), R("v", b+j)))
    cv = [vcvt(b+j, b+2*j, b+2*j+1) for j in range(4)]
    if park is None:
        st = vstore(b, V_OOFF, S_O, S_QO + 4*r + qb, 64*u, last=(r == opt.nblocks - 1))
    else:
        cv += [valu(f"v_accvgpr_write_b32 {ar(park+j)}, {vr(b+j)}", R("v", b+j), R("a", park+j)) for j in range(4)]
        st = vstore(park, V_OOFF, S_O, S_QO + 4*r + qb, 64*u, "a")
    return mul, cv, st

stamp_n = [0]
def stamp(pro=False):
    if not opt.stamps: return []
    if pro and (opt.sper or opt.sgrp): return []
    n = stamp_n[0]; stamp_n[0] += 1
    ins = 's_memtime' if opt.scyc else 's_memrealtime'
    if opt.probe >= 0:
        assert S_STAMP + 2*n + 3 <= 95
        return [I(f"{ins} {sr(S_STAMP+2*n,2)}", "smem", [], R("s", S_STAMP+2*n, 2))]
    out = [I(f"{ins} {sr(S_STAMP+2*(n%16),2)}", "smem", [], [])]
    if n >= 12: out.append(stamp_save(n - 12))
    return out
def stamp_save(n):
    assert n < 192
    return I(f"v_writelane_b32 v{253 + n//64}, s{S_STAMP+2*(n%16)}, {n%64}", "salu")

def jit_ops():
    return [I(f"global_load_dword a{A_DUMMY}, v{V_JIT}, s[{S_PC}:{S_PC+1}]", "vload", R("v", V_JIT) + R("s", S_PC, 2), []),
            valu(f"v_add_u32 v{V_JIT}, 0x2000, v{V_JIT}", R("v", V_JIT), R("v", V_JIT))]
late_setup = []
def setup():
    c = []
    T = V_TMP
    A = lambda t: c.append(salu(t))
    def V(t, rd, wr): c.append(valu(t, rd, wr))
    c.append(salu("s_cmpk_ge_u32 s2, 0x100"))
    c.append(I("s_cbranch_scc1 L_end", "branch"))
    c.append(I("s_load_dwordx4 s[56:59], s[0:1], 0", "smem", [], R("s", 56, 4)))
    c.append(I("s_load_dwordx4 s[60:63], s[0:1], 16", "smem", [], R("s", 60, 4)))
    c += stamp()
    if opt.probe >= 0: c.append(I("s_memrealtime s[96:97]", "smem"))
    A(f"s_mov_b32 s{S_WARM}, 0")
    if opt.stubs:
        c.append(I(f"s_getpc_b64 s[{S_PC}:{S_PC+1}]", "salu", [], R("s", S_PC, 2)))
        c.append(I("L_pc:", "label"))
        V(f"v_and_b32 v{V_LT}, 31, v0", R("v", 0), R("v", V_LT))
        V(f"v_min_u32 v{V_LT}, NSTUBS, v{V_LT}", R("v", V_LT), R("v", V_LT))
        V(f"v_lshlrev_b32 v{V_LT}, 12, v{V_LT}", R("v", V_LT), R("v", V_LT))
        A(f"s_add_u32 s{S_PC}, s{S_PC}, L_main - L_pc")
        A(f"s_addc_u32 s{S_PC+1}, s{S_PC+1}, 0")
        if opt.line_prefetch: c.append(I(f"global_load_dword a{A_DUMMY}, v{V_LT}, s[{S_PC}:{S_PC+1}]", "vload", R("v", V_LT), []))
    V(f"v_lshrrev_b32 v{T}, 6, v0", R("v", 0), R("v", T))
    V(f"v_and_b32 v{T+1}, 63, v0", R("v", 0), R("v", T+1))
    V(f"v_readfirstlane_b32 s{S_W}, v{T}", R("v", T), R("s", S_W))
    if opt.stubs and opt.stub_early: c.append(nop(4)); c.append(I("STUB_CALLS0", "label"))
    A(f"s_and_b32 s54, s2, 7")
    A(f"s_lshl_b32 s54, s54, 5")
    A(f"s_lshr_b32 s55, s2, 3")
    def blk(r):
        A(f"s_add_u32 s3, s55, {32*r}")
        A(f"s_mul_i32 s45, s3, 43691")
        A(f"s_lshr_b32 s45, s45, 17")
        A(f"s_mul_i32 s41, s45, 3")
        A(f"s_sub_u32 s3, s3, s41")
        A(f"s_add_u32 s45, s45, s54")
        A(f"s_lshl_b32 s{S_KV+r}, s45, 17")
        A(f"s_mul_i32 s45, s45, 188416")
        A(f"s_lshl_b32 s41, s3, 16")
        A(f"s_add_u32 s45, s45, s41")
        A(f"s_mul_i32 s41, s{S_W}, 12288")
        A(f"s_add_u32 s{S_QO+4*r}, s45, s41")
        A(f"s_add_u32 s{S_QO+4*r+1}, s{S_QO+4*r}, 4096")
        A(f"s_lshl_b32 s3, s3, 2")
        A(f"s_add_u32 s3, s3, s{S_W}")
        A(f"s_add_u32 s3, s3, 5")
        A(f"s_lshr_b32 s3, s3, 4")
        A(f"s_mul_i32 s41, s3, 0x70000000")
        A(f"s_add_u32 s41, s41, s{S_QO+4*r}")
        A(f"s_add_u32 s{S_QO+4*r+2}, s41, 8192")
        A(f"s_add_u32 s{S_QO+4*r+3}, s41, 12288")
    L = T + 1
    V(f"v_lshrrev_b32 v{T+6}, 3, v{L}", R("v", L), R("v", T+6))
    V(f"v_and_b32 v{T+4}, 6, v{T+6}", R("v", T+6), R("v", T+4))
    V(f"v_and_b32 v{T+5}, 7, v{L}", R("v", L), R("v", T+5))
    V(f"v_xor_b32 v{T+4}, v{T+4}, v{T+5}", R("v", T+4, 2), R("v", T+4))
    V(f"v_lshlrev_b32 v{T+2}, 8, v{T+6}", R("v", T+6), R("v", T+2))
    V(f"v_lshl_add_u32 v{T+2}, v{T+4}, 4, v{T+2}", R("v", T+4) + R("v", T+2), R("v", T+2))
    V(f"v_lshl_add_u32 v{V_KOFF}, v{T}, 12, v{T+2}", R("v", T) + R("v", T+2), R("v", V_KOFF))
    V(f"v_lshrrev_b32 v{T+3}, 4, v{L}", R("v", L), R("v", T+3))
    V(f"v_and_b32 v{T+4}, 15, v{L}", R("v", L), R("v", T+4))
    V(f"v_lshlrev_b32 v{T+2}, 8, v{T+4}", R("v", T+4), R("v", T+2))
    V(f"v_lshl_add_u32 v{T+2}, v{T+3}, 4, v{T+2}", R("v", T+3) + R("v", T+2), R("v", T+2))
    V(f"v_lshl_add_u32 v{V_OOFF}, v{T}, 12, v{T+2}", R("v", T) + R("v", T+2), R("v", V_OOFF))
    blk(0)
    A(f"s_lshl_b32 s{S_MK}, s{S_W}, 12")
    A(f"s_add_u32 s{S_MK}, s{S_MK}, {KB}")
    c.append(wait(lg=0))
    for srd, p, n in ((S_K, 58, 33554432), (S_Q, 56, 48234496), (S_V, 60, 33554432), (S_O, 62, 48234496)):
        A(f"s_mov_b32 s{srd}, s{p}")
        A(f"s_mov_b32 s{srd+1}, s{p+1}")
        A(f"s_mov_b32 s{srd+2}, {n}")
        A(f"s_mov_b32 s{srd+3}, 0x20000")
    c += stamp(True)
    A(f"s_mul_i32 s3, s{S_W}, {QW}")
    A(f"s_add_u32 s{S_MQ}, s3, {QB}")
    for t in range(4):
        m, d = qp_dma(0, t); c += [m, nop(1), d]
    c.append(k_soff(0))
    for t in range(4):
        m, d = k_dma(0, t); c += [m, nop(1), d]
    c += stamp(True)
    if opt.stubs:
        for rd in range(1 if opt.stub_early else 0, 5): c.append(I(f"STUB_CALLS{rd}", "label"))
    c += stamp(True)
    A(f"s_lshr_b32 s3, s{S_W}, 1")
    A(f"s_mul_i32 s3, s3, {VPAR + 8 - 8192}")
    A(f"s_add_u32 s3, s3, s{S_MK}")
    A(f"s_add_u32 s{S_MQ1}, s3, {VE + 24576 - KB}")
    for t in range(4):
        m, d = qp_dma(1, t); c += [m, nop(1), d]
    c += stamp(True)
    V(f"v_and_b32 v{T+2}, 2, v{T+6}", R("v", T+6), R("v", T+2))
    V(f"v_lshlrev_b32 v{T+2}, 1, v{T+2}", R("v", T+2), R("v", T+2))
    V(f"v_xor_b32 v{T+2}, v{T+2}, v{T+5}", R("v", T+2) + R("v", T+5), R("v", T+2))
    V(f"v_and_b32 v{T+5}, 4, v{T+6}", R("v", T+6), R("v", T+5))
    V(f"v_add_u32 v{T+5}, v{T+5}, v{T+6}", R("v", T+5, 2), R("v", T+5))
    V(f"v_lshlrev_b32 v{T+5}, 8, v{T+5}", R("v", T+5), R("v", T+5))
    V(f"v_lshl_add_u32 v{T+2}, v{T+2}, 4, v{T+5}", R("v", T+2) + R("v", T+5), R("v", T+2))
    V(f"v_lshl_add_u32 v{V_VOFF}, v{T}, 12, v{T+2}", R("v", T) + R("v", T+2), R("v", V_VOFF))
    assert VE == 0
    A(f"s_lshl_b32 s{S_MV}, s{S_W}, 11")
    V(f"v_and_b32 v{T+2}, 6, v{T+4}", R("v", T+4), R("v", T+2))
    V(f"v_xor_b32 v{T+2}, v{T+2}, v{T+3}", R("v", T+2) + R("v", T+3), R("v", T+2))
    V(f"v_lshlrev_b32 v{T+2}, 4, v{T+2}", R("v", T+2), R("v", T+2))
    V(f"v_lshl_add_u32 v{V_KADDR}, v{T+4}, 7, v{T+2}", R("v", T+4) + R("v", T+2), R("v", V_KADDR))
    V(f"v_xor_b32 v{V_KADDR+1}, 64, v{V_KADDR}", R("v", V_KADDR), R("v", V_KADDR+1))
    for b in range(2):
        V(f"v_add_u32 v{V_QADDR+b}, s{S_MQ}, v{V_KADDR+b}", R("v", V_KADDR+b) + R("s", S_MQ), R("v", V_QADDR+b))
        V(f"v_add_u32 v{V_RCP+b}, s{S_MQ1}, v{V_KADDR+b}", R("v", V_KADDR+b) + R("s", S_MQ1), R("v", V_RCP+b))
        V(f"v_add_u32 v{V_RCP+2+b}, s{S_MK}, v{V_KADDR+b}", R("v", V_KADDR+b) + R("s", S_MK), R("v", V_RCP+2+b))
        V(f"v_add_u32 v{V_KADDR+b}, {KB}, v{V_KADDR+b}", R("v", V_KADDR+b), R("v", V_KADDR+b))
    V(f"v_and_b32 v{T+2}, 1, v{T+3}", R("v", T+3), R("v", T+2))
    V(f"v_mul_u32_u24 v{T+2}, {VPAR}, v{T+2}", R("v", T+2), R("v", T+2))
    V(f"v_lshrrev_b32 v{T+6}, 1, v{T+3}", R("v", T+3), R("v", T+6))
    V(f"v_lshl_add_u32 v{T+2}, v{T+6}, 9, v{T+2}", R("v", T+6) + R("v", T+2), R("v", T+2))
    V(f"v_bfe_u32 v{T+6}, v{L}, 2, 2", R("v", L), R("v", T+6))
    V(f"v_lshl_add_u32 v{T+2}, v{T+6}, 7, v{T+2}", R("v", T+6) + R("v", T+2), R("v", T+2))
    V(f"v_and_b32 v{T+5}, 3, v{L}", R("v", L), R("v", T+5))
    V(f"v_lshl_add_u32 v{T+2}, v{T+5}, 4, v{T+2}", R("v", T+5) + R("v", T+2), R("v", T+2))
    V(f"v_and_b32 v{T+6}, 2, v{T+6}", R("v", T+6), R("v", T+6))
    V(f"v_lshlrev_b32 v{T+6}, 5, v{T+6}", R("v", T+6), R("v", T+6))
    V(f"v_add_u32 v{V_VADDR}, v{T+2}, v{T+6}", R("v", T+2) + R("v", T+6), R("v", V_VADDR))
    V(f"v_xor_b32 v{T+6}, 64, v{T+6}", R("v", T+6), R("v", T+6))
    V(f"v_add_u32 v{V_VADDR+1}, v{T+2}, v{T+6}", R("v", T+2) + R("v", T+6), R("v", V_VADDR+1))
    V(f"v_and_b32 v{T+2}, 1, v{L}", R("v", L), R("v", T+2))
    V(f"v_mul_u32_u24 v{T+2}, 0xaaaa, v{T+2}", R("v", T+2), R("v", T+2))
    V(f"v_add_u32 v{T+2}, 0x4444, v{T+2}", R("v", T+2), R("v", T+2))
    V(f"v_lshl_add_u32 v{V_IDX}, v{T+2}, 16, v{T+2}", R("v", T+2), R("v", V_IDX))
    V(f"v_mov_b32 v{T+2}, 0x3f803f80", [], R("v", T+2))
    for j in range(4): V(f"v_accvgpr_write_b32 a{A_ONE+j}, v{T+2}", R("v", T+2), R("a", A_ONE+j))
    for j in range(16): V(f"v_accvgpr_write_b32 a{A_L+j}, 0", [], R("a", A_L+j))
    if opt.jit_every:
        A(f"s_lshl_b32 s3, s55, 2")
        A(f"s_add_u32 s3, s3, s{S_W}")
        A(f"s_and_b32 s3, s3, 63")
        A(f"s_lshl_b32 s3, s3, 7")
        V(f"v_mov_b32 v{V_JIT}, s3", [], R("v", V_JIT))
        for k in range(opt.jit_first): c += jit_ops()
    A(f"s_mov_b32 s{S_C}, {CSCALE:#x}")
    A(f"s_mov_b32 s{S_C+1}, {CSCALE:#x}")
    A(f"s_mov_b32 s{S_THR}, {0 if opt.force_slow else THR:#x}")
    for j in range(6): A(f"s_mov_b32 s{S_FLAG+j}, 0")
    late_setup.clear()
    n0 = len(c); blk(1); blk(2); late_setup.extend(c[n0:]); del c[n0:]
    if opt.stubs:
        c.append(I("s_branch L_main", "branch"))
        c.append(I(".p2align 12", "label"))
        c.append(I("L_main:", "label"))
    return c

def flat(ops):
    out = []
    for o in ops:
        out.append(nop(2) if o == "gap2" else o)
    return out

def issue_tile(kind, Tt):
    c = [v_soff(Tt) if kind == "V" else k_soff(Tt)]
    for t in range(4): c += list((v_dma if kind == "V" else k_dma)(Tt, t))
    return c

def weave(ops, pairs, every, start=0):
    out = []; pairs = list(pairs)
    for k, o in enumerate(ops):
        if pairs and k >= start and (k - start) % every == 0:
            p = pairs.pop(0); out += p[:-1] + [o, p[-1]]
        else: out.append(o)
    assert not pairs
    return out

def prologue():
    c = []
    KT = A_Q[1]
    c += stamp(True)
    c.append(wait(vm="auto", need=[("P", 0)]))
    c += stamp(True)
    c += [qp_read(0, t) for t in range(4)]
    c += listsched([x for t in range(2) for x in qp_dma(2, t)])[0]
    c.append(wait(lg="auto"))
    b0 = [o for t in range(4) for o in prescale_ops(V_O + 4*t, q_reg(0, 0, t), True)]
    b0 = weave(b0, [list(qp_dma(2, t)) for t in (2, 3)] + [list(qp_dma(3, t)) for t in range(4)], 13, 2)
    c += b0[:60]
    c += [wait(vm="auto", need=[("K", 0), ("P", 1)]), barrier()]
    c += [k_read(0, 0, t, dest=KT + 4*t) for t in range(4)]
    c += [qp_read(1, t) for t in range(4)]
    c += [k_read(0, kb, t, dest=KT + 16*kb + 4*t) for kb in range(1, 4) for t in range(4)]
    c += b0[60:]
    c.append(wait(lg="auto"))
    X = lambda qb, kb: V_O + 64 + 16*qb + 4*kb
    def chain(qb, kb):
        return [mfma("v", X(qb, kb), "a", KT + 16*kb + 4*t, "a", q_reg(0, qb, t), (("0" if kb == 0 else V_NEGM + 4*qb) if t == 0 else None)) for t in range(4)]
    def soft(qb, kb):
        e, cv = soft_ops(X(qb, kb), p_reg(0, qb, kb >> 1) + 2*(kb & 1)); return e + cv
    def B(qb): return [o for t in range(4) for o in prescale_ops(V_O + 16*qb + 4*t, q_reg(0, qb, t), True)]
    def D(qb): return [o for o in max_ops(X(qb, 0), qb, V_S) if not isinstance(o, str)]
    def dep(lst, op):
        for x in lst: x.after.append(op)
        return lst
    def paced(tile, anchors):
        so, rest = tile[0], tile[1:]
        for k in range(4): dep(rest[2*k:2*k+2], anchors[k])
        return tile
    b1 = B(1)
    seq = chain(0, 0) + paced(issue_tile("K", 1), [b1[0], b1[20], b1[40], b1[60]]) + b1[:30] + D(0) + [x for kb in (1, 2, 3) for x in chain(0, kb)]
    seq += b1[30:]
    seq += dep([wait(vm="auto", need=[("P", 2), ("P", 3)])], b1[61]) + [qp_read(qb, t) for qb in (2, 3) for t in range(4)]
    seq += chain(1, 0) + soft(0, 0) + soft(0, 1) + D(1) + soft(0, 2) + soft(0, 3)
    p1, t1 = listsched([x for x in seq if x.kind not in ("dma", "salu")][:0] + order_fix(seq), c[-30:])
    c += stamp(True)
    c += p1
    c.append(wait(lg=0))
    c += stamp(True)
    seq = []
    for qb in (1, 2, 3):
        ch = [x for kb in (1, 2, 3) for x in chain(qb, kb)]
        seq += ch
        if qb < 3:
            bb = B(qb + 1)
            seq += bb
            if qb == 1: seq += paced(issue_tile("V", 0), [ch[0], ch[6], bb[20], bb[40]])
            if qb == 2 and getattr(opt, "first_k", 2) == 3: seq += paced(issue_tile("K", 2), [ch[0], ch[6], bb[10], bb[25]])
            if qb == 2 and getattr(opt, "first_v", 1) == 2: seq += paced(issue_tile("V", 1), [bb[40], bb[55], bb[70], bb[79]])
            seq += chain(qb + 1, 0) + soft(qb, 0) + soft(qb, 1) + D(qb + 1) + soft(qb, 2) + soft(qb, 3)
        else:
            seq += dep([wait(vm="auto", need=[("K", 1), ("V", 0)]), barrier()], ch[0])
            seq += [v_read(0, n >> 2, (n >> 1) & 1, n & 1) for n in range(4)] + [k_read(1, 0, t) for t in range(4)]
            seq += [v_read(0, n >> 2, (n >> 1) & 1, n & 1) for n in range(4, 10)] + [k_read(1, 1, 0)]
            seq += soft(3, 0) + soft(3, 1) + soft(3, 2) + soft(3, 3)
    p2, t2 = listsched(seq, c[-30:])
    c += p2
    c.append(wait(lg="auto"))
    return c

def order_fix(seq):
    out = []; held = []
    for x in seq:
        if any(all(a is not y for y in out) for a in x.after) or (held and x.kind in ("dma", "salu", "wait", "ds")): held.append(x)
        else: out.append(x)
        while held and all(any(a is y for y in out) for a in held[0].after): out.append(held.pop(0))
    assert not held
    return out

VALK = ("valu", "trans", "pk", "perm")
def edge_dist(w, x, rg, kind):
    if kind == "raw":
        if w.kind in ("mfma", "smfmac"):
            need = 8 if w.kind == "mfma" else 12
            if x.kind in ("mfma", "smfmac") and rg in x.cread and rg not in x.rd:
                return 0 if (x.cread == w.wr and x.kind == w.kind) else need - 2
            return need
        if w.kind in VALK:
            if rg[0] == "s": return 5 if x.kind in ("dma", "vload", "vstore") else (2 if x.kind in VALK else 0)
            if x.kind in ("mfma", "smfmac", "perm"): return 2
            if w.kind == "trans" and x.kind in VALK and x.kind != "trans": return 1
        if w.kind == "salu" and rg[0] == "m" and x.kind == "dma": return 1
        return 0
    if kind == "waw":
        if w.kind in ("mfma", "smfmac"):
            need = 8 if w.kind == "mfma" else 12
            if x.kind in ("mfma", "smfmac"): return 0 if x.wr == w.wr else need - 2
            return need
        return 0
    if rg in w.cread and x.kind in VALK: return 3 if w.kind == "mfma" else 7
    if w.kind == "vstore" and rg in w.rd[:4]: return 2
    return 0

def listsched(ops, pre=()):
    allops = list(pre) + list(ops); n0 = len(pre); n = len(allops)
    deps = [dict() for _ in range(n)]
    lw = {}; lr = defaultdict(list); lastmem = None
    for k, x in enumerate(allops):
        def add(p, d): deps[k][p] = max(deps[k].get(p, 0), d)
        for rg in x.rd + x.cread:
            if rg in lw: add(lw[rg], edge_dist(allops[lw[rg]], x, rg, "raw"))
        for rg in x.wr:
            if rg in lw: add(lw[rg], edge_dist(allops[lw[rg]], x, rg, "waw"))
            for p in lr[rg]:
                if p != k: add(p, edge_dist(allops[p], x, rg, "war"))
        if x.kind in ("dma", "vload", "vstore", "ds", "wait", "barrier", "smem"):
            if lastmem is not None: add(lastmem, 0)
            lastmem = k
        for a in x.after: add(next(i for i, y in enumerate(allops) if y is a), 0)
        for rg in x.wr: lw[rg] = k; lr[rg] = []
        for rg in x.rd + x.cread: lr[rg].append(k)
    pos = {}; cur = 0
    for k in range(n0): pos[k] = cur; cur += allops[k].nops
    out = []; left = list(range(n0, n)); t = 0; tm = -100; prev = None
    cost = {"mfma": 8, "smfmac": 8, "trans": 8, "vstore": 12}
    while left:
        ready = [k for k in left if all(p in pos and cur - pos[p] - allops[p].nops >= d for p, d in deps[k].items())]
        pick = None
        if ready:
            mf = [k for k in ready if allops[k].kind in ("mfma", "smfmac")]
            ot = [k for k in ready if k not in mf]
            aftermf = prev is not None and prev.kind in ("mfma", "smfmac", "salu", "wait", "ds", "dma", "vstore", "barrier")
            mem = [k for k in ot if allops[k].kind in ("ds", "dma", "vstore", "vload")]
            sc = [k for k in ot if allops[k].kind in ("salu", "wait", "barrier", "smem")]
            va = [k for k in ot if k not in mem and k not in sc]
            vnp = [k for k in va if allops[k].kind != "pk" or t - tm >= 24]
            if mf and (t - tm >= 16 or not (vnp or mem or sc)): pick = mf[0]
            elif sc: pick = sc[0]
            elif mem and (aftermf or allops[mem[0]].after or not mf and not any(allops[k].kind in ("mfma", "smfmac") for k in left) or not vnp): pick = mem[0]
            elif vnp: pick = vnp[0]
            elif va: pick = va[0]
            else: pick = ready[0]
        if pick is None:
            x = nop(1); out.append(x); cur += 1; t += 4; prev = x; continue
        x = allops[pick]
        if x.kind in ("mfma", "smfmac"): t = max(t, tm + 16); tm = t
        if x.kind == "pk": t = max(t, tm + 24)
        pos[pick] = cur; cur += x.nops; t += cost.get(x.kind, 4)
        out.append(x); left.remove(pick); prev = x
    return out, t

COST = {"valu": 1, "trans": 2, "pk": 1, "perm": 1, "ds": 1, "dma": 1, "vstore": 3, "vload": 1}
class Gap:
    def __init__(s, m): s.m, s.shadow, s.mem, s.valu = m, None, [], []
    def load(s): return sum(COST[o.kind] for o in s.mem + s.valu)
    def emit(s):
        return [s.m] + ([s.shadow] if s.shadow else []) + s.mem + s.valu

NT = lambda: 8 * opt.nblocks

class Sched:
    def __init__(s):
        s.groups = []
        s.cur = defaultdict(int)
        s.gaps = []
        s.gstart = []
    def add_group(s, gaps):
        s.gstart.append(len(s.gaps)); s.groups.append(gaps); s.gaps += gaps
    def rng(s, G): return s.gstart[G], s.gstart[G] + len(s.groups[G])
    def put_valu(s, stream, G, op, mingap=0, fat=False):
        a, b = s.rng(G); lo = max(a + mingap, s.cur[stream])
        while lo >= b:
            G += 1; a, b = s.rng(G)
        pick = None
        if not fat:
            for g in range(lo, b):
                if s.gaps[g].load() + COST[op.kind] <= 2: pick = g; break
            if pick is None:
                pick = min(range(lo, b), key=lambda g: (s.gaps[g].load(), g))
        else: pick = lo
        s.gaps[pick].valu.append(op); s.cur[stream] = pick
        return pick
    def put_mem(s, stream, G, op, allowed, pre=None):
        a, b = s.rng(G)
        for gi, si in allowed:
            g = a + gi
            if g >= b or g <= s.cur[stream]: continue
            if any(o.kind in ("dma", "vstore") for o in s.gaps[g].mem): continue
            if pre is not None:
                sg = a + si
                if s.gaps[sg].shadow is not None: continue
                s.gaps[sg].shadow = pre
            s.gaps[g].mem.append(op); s.cur[stream] = g
            return g
        raise AssertionError(("no mem slot", stream, G, op))
    def put_shadow(s, G, op, lo=0, hi=None, stream=None):
        a, b = s.rng(G)
        start = a + lo
        if stream is not None: start = max(start, s.cur[stream] + 1)
        end = b if hi is None else a + hi
        g = start
        while True:
            if g >= end and hi is not None: raise AssertionError(("no shadow", G, op))
            if s.gaps[g].shadow is None and not (g + 1 in s.gstart_set or g + 1 == len(s.gaps)):
                s.gaps[g].shadow = op
                if stream is not None: s.cur[stream] = g
                return g
            g += 1

def fatten(S, G):
    g4, g5 = S.groups[G][4], S.groups[G][5]
    if [o.kind for o in g4.valu] == ["trans"] and [o.kind for o in g5.valu] == ["trans"] and not g4.mem and not g5.mem:
        g4.valu.append(g5.valu.pop()); return True
    return False

def spread(n, lo, hi):
    return [lo + (k * (hi - lo + 1)) // n for k in range(n)]

def body():
    nt = NT(); nb = opt.nblocks
    S = Sched()
    for T in range(nt):
        r, j = T // 8, T % 8
        hasqk = T + 1 < nt
        smf = {1: [0, 1], 2: [2, 3]} if j == 7 else {2: [0], 4: [1], 6: [2], 8: [3]}
        for i in range(16):
            gaps = []
            if hasqk:
                T1 = T + 1; r1 = T1 // 8; kb, qb = i >> 2, i & 3
                special = (T1 % 8 == 0 and kb == 0)
                d = p_reg(T1, qb, 1) if special else V_S + 4*(i & 1)
                for t in range(4):
                    cc = None if t else ("0" if special else V_NEGM + 4*qb)
                    gaps.append(Gap(mfma("v", d, "a", k_reg(kb, t), "a", q_reg(r1, qb, t), cc)))
            db = i >> 1
            for qb in (2*(i & 1), 2*(i & 1) + 1):
                for ks in range(2):
                    gaps.append(Gap(mfma("v", o_reg(db, qb), "a", v_reg(db, ks), "v", p_reg(T, qb, ks), "0" if (j == 0 and ks == 0) else None)))
            for qb in smf.get(i, []):
                gaps.append(Gap(smfmac(qb, p_reg(T, qb, 0))))
            S.add_group(gaps)
    S.gstart_set = set(S.gstart)
    for T in range(nt):
        hasqk = T + 1 < nt
        for i in range(16):
            G = 16*T + i; gp = S.groups[G]
            for n in (2*G + 10, 2*G + 11):
                Tv = n // 32
                if Tv < nt:
                    rem = n % 32
                    gp[0].mem.append(v_read(Tv, rem >> 2, (rem >> 1) & 1, rem & 1))
            kk = ((i + 1) >> 2) + 1; tt = (i + 1) & 3
            Tk = T + 1 if kk < 4 else T + 2
            if Tk < nt: gp[1].mem.append(k_read(Tk, kk & 3, tt))
            if i == 0: Tu, iu = T, 15
            else: Tu, iu = T + 1, i - 1
            if Tu < nt and not (T == 0 and i == 0) and not (Tu % 8 == 0 and iu < 4):
                kb, qb = iu >> 2, iu & 3
                e, cv = soft_ops(V_S + 4*(iu & 1), p_reg(Tu, qb, kb >> 1) + 2*(kb & 1))
                if hasqk:
                    for k in range(4): gp[2 + k].valu.append(e[k])
                    gp[6].valu.append(cv[0]); gp[7].valu.append(cv[1])
                else:
                    gp[0].valu += e[:1]; gp[1].valu += e[1:3]; gp[2].valu += e[3:] + cv[:1]; gp[3].valu += cv[1:]
            need = None; lg = "auto"; vm = None
            if i == 10:
                need = [x for x in (("K", T + 2), ("V", T + 1)) if x[1] < nt]
                vm = "auto" if need else None; lg = 0
            gp[-1].shadow = wait(vm=vm, lg=lg, need=need)
            if i == 11: gp[0].shadow = barrier()
    DM = [(1, 1), (6, 5)]
    for T in range(1, nt):
        lst = []
        if T + 5 < nt: lst += [k_dma(T + 5, t) for t in range(4)]; S.put_shadow(16*T + 10, k_soff(T + 5), 2, 6)
        if T + 4 < nt: lst += [v_dma(T + 4, u) for u in range(4)]; S.put_shadow(16*T + 10, v_soff(T + 4), 2, 6)
        for k, (m, d) in enumerate(lst):
            S.put_mem("kv", 16*T + 11 + k // 2, d, [DM[k & 1]], pre=m)
    extra = [("V", 1, 0), ("K", 2, 2), ("V", 2, 5), ("K", 3, 7), ("K", 4, 11), ("V", 3, 13), ("K", 5, 18), ("V", 4, 20)]
    for kind, Tt, G in extra:
        so = k_soff(Tt) if kind == "K" else v_soff(Tt)
        if G == 0: S.groups[0][0].shadow = so
        else: S.put_shadow(G - 1, so, 2, 5)
        for t in range(4):
            m, d = (k_dma if kind == "K" else v_dma)(Tt, t)
            S.put_mem("kv0", G + t // 2, d, [DM[t & 1]], pre=m)
    for o in late_setup: S.put_shadow(0, o, 0, stream="late")
    assert S.cur["late"] < S.gstart[15]
    if nb > 1:
        for k, G in enumerate((15, 15, 16, 16, 17, 17, 22)):
            m, d = q_dma(16 + k); S.put_mem("qd", G, d, DM, pre=m)
    if opt.jit_every:
        for k in range(opt.jit_first, 8):
            G = int((k - opt.jit_first) * opt.jit_every * 1.6) + opt.jit_g0
            while G % 16 in (10, 11, 12, 13, 14, 15, 0, 1): G += 1
            ld, ad = jit_ops()
            g = S.put_mem("jit", G, ld, [(6, None), (1, None), (7, None)])
            S.cur["jit"] = g; S.put_valu("jit", G, ad)
    for r in range(nb - 1):
        T = 8*r + 7
        for qb in range(4):
            G = 16*T + 1 + qb
            x = p_reg(T + 1, qb, 1)
            e, cv = soft_ops(x, p_reg(T + 1, qb, 0))
            ops = max_ops(x, qb) + e + ["gap1"] + cv
            a, b = S.rng(G)
            pos = [1, 1, 2, 2, None, 3, 3, 3, None, 4, 4, 4, 5, 5, 5, 5, 5, 6, 6, 6, 6, 7, None, 7, 7]
            pos = [1, 1, 2, None, 3, 3, 3, None, 4, 4, 4, 4, 4, 5, 5, 5, 5, 5, 6, 6, 6, None, 7, 7]
            assert len(pos) == len(ops), (len(pos), len(ops))
            for p_, o in zip(pos, ops):
                if isinstance(o, str): continue
                gp = S.groups[G][p_]
                if o.kind == "perm" and gp.shadow is None: gp.shadow = nop(1)
                gp.valu.append(o)
    tail = []; stores = []
    for r in range(nb):
        T = 8*r + 7; last = (r == nb - 1)
        for qb in range(4):
            G = 16*T + 3 + qb//2
            for o in l_ops(r, qb, not last):
                if o.kind == "salu": S.put_shadow(G + 2, o, stream="lor")
                else: S.put_valu("l", G, o)
        items = [(u, qb) for u in range(4) for qb in range(4)]
        avail = {it: 16*T + max(4*it[0] + 3 + (it[1] >> 1), 5 + (it[1] >> 1)) for it in items}
        plan = []
        if last:
            for u, qb in items: plan.append(((u, qb), 16*T + 4*u + 5 + qb, 16*T + 4*u + 6 + qb, None))
        else:
            dead = {it: 16*T + 16 + 4*it[0] + (it[1] >> 1) for it in items}
            slots = [16*T + opt.st_g0 + (opt.st_sp * n) // 10 for n in range(16)]
            left = list(items); direct = []
            for sl in slots:
                cand = [it for it in left if avail[it] + 1 <= sl and sl < dead[it]]
                if not cand: continue
                it = min(cand, key=lambda x: dead[x]); left.remove(it); direct.append((it, sl))
            used = [sl for _, sl in direct]
            rest = [sl for sl in slots if sl not in used]
            assert all(sl > max(used) for sl in rest), (slots, used)
            for it, sl in direct: plan.append((it, sl - 1, sl, None))
            busy = defaultdict(int)
            for it, sl in direct: busy[sl - 1] += 1
            for n, (it, sl) in enumerate(zip(left, rest)):
                g = min(range(avail[it], dead[it]), key=lambda x: (busy[x], -x)); busy[g] += 1
                plan.append((it, g, sl, A_PARK + 4*n))
            assert len(left) <= 10
        for (u, qb), G, Gs, park in sorted(plan, key=lambda x: x[1]):
            mul, cv, st = epi_ops(r, u, qb, park)
            if G >= 16*nt:
                tail.append((mul, cv, st)); continue
            ng = len(S.groups[G])
            if opt.pk_epi and ng >= 8 and fatten(S, G):
                S.groups[G][4].valu += mul
                S.cur["epi"] = S.gstart[G] + 5
                for o in cv: S.put_valu("epi", G, o)
                assert park is not None or S.cur["epi"] < S.gstart[G + 1]
                assert last or S.cur["epi"] < S.gstart[dead[(u, qb)]] + 4
            elif opt.pk_epi:
                S.groups[G][ng - 2].valu += mul
                S.groups[G][ng - 1].valu += cv
            else:
                S.cur["epi"] = 0
                for o in mul + cv: S.put_valu("epi", G, o)
            if Gs >= 16*nt: tail.append(([], [], st)); continue
            stores.append((Gs, st))
    for Gs, st in sorted(stores, key=lambda x: x[0]):
        nn = len(S.groups[Gs])
        S.put_mem("epist", Gs, st, [(7, None), (6, None), (1, None), (2, None)] if nn >= 8 else [(1, None), (2, None), (3, None)])
    for r in range(nb - 1):
        rd = spread(16, 16*(8*r + 1) + (10 if r == 0 else 0), 16*(8*r + 6) + 8)
        for k in range(16):
            kap = 16*(r + 1) + k; G = rd[k]
            S.put_shadow(G - 1, wait(vm="auto", need=[("Q", kap)]), 2, 7)
            S.groups[G][1].mem.append(q_read(kap))
            nxt = rd[k + 1] if k < 15 else G + 6
            ops = prescale_ops(V_RAW + 4*(kap & 1), q_reg(r + 1, k >> 2, k & 3), opt.pk_pre)
            last_g = min(nxt, G + 6)
            if opt.pk_pre:
                gf = G + 1 + (last_g - G) * 8 // 16
                for o, g in zip(ops[:8], spread(8, G + 1, max(G + 1, gf - 1))): S.put_valu("pre", g, o)
                while S.cur["pre"] >= S.gstart[gf] + 4 or not fatten(S, gf): gf += 1
                S.groups[gf][4].valu += ops[8:12]; S.cur["pre"] = S.gstart[gf] + 5
                for o, g in zip(ops[12:], [gf, gf] + spread(6, gf, max(gf, last_g))): S.put_valu("pre", g, o)
            else:
                for o, g in zip(ops, spread(len(ops), G + 1, last_g)): S.put_valu("pre", g, o)
            k2 = kap + NQS
            if k2 < 16*nb:
                g = G + 2
                while True:
                    if g % 16 in (15, 0, 1):
                        try:
                            m, d = q_dma(k2)
                            S.put_mem("qd", g, d, DM, pre=m); break
                        except AssertionError: pass
                    g += 1
    c = []
    for G, gp in enumerate(S.groups):
        if opt.sgrp:
            gs = [int(x) for x in opt.sgrp.split('_')]
            if G in gs: c += stamp()
            for g in gp:
                e = g.emit()
                if G in gs and g.shadow is not None and g.shadow.kind == "wait" and g.shadow.vm is not None:
                    e = e[:1] + stamp() + e[1:2] + stamp() + e[2:]
                c += e
            continue
        if G % 16 == 0 and ((G // 16) in [int(x) for x in opt.sper.split('_')] if opt.sper else (G // 16) % 8 in (0, 1, 7)): c += stamp()
        for g in gp: c += g.emit()
    c += stamp()
    c.append(nop(8))
    for mul, cv, st in tail: c += mul + cv + [st]
    c += stamp()
    per = [sum(max(16, 8 + 4*g.load()) for gp in S.groups[16*T:16*T+16] for g in gp) for T in range(nt)]
    stats = dict(per=per, gaps=len(S.gaps), slots=sum(g.load() for g in S.gaps),
                 est_cycles=sum(max(16, 8 + 4*g.load()) for g in S.gaps),
                 under=sum(max(0, 2 - g.load()) for g in S.gaps), over=sum(max(0, g.load() - 2) for g in S.gaps))
    return c, stats

def resolve(code):
    n = len(code)
    isds = [x.kind == "ds" for x in code]
    isvm = [x.kind in ("dma", "vload", "vstore") for x in code]
    lgw = [k for k, x in enumerate(code) if x.kind == "wait" and x.lg is not None]
    vmw = [k for k, x in enumerate(code) if x.kind == "wait" and x.vm is not None]
    def touched(x): return x.rd + x.wr + x.cread
    lastload = {}
    writer_at = [None]*n
    for k, x in enumerate(code):
        dep = set()
        for rg in touched(x):
            if rg in lastload: dep.add(lastload[rg])
        writer_at[k] = dep
        for rg in x.wr: lastload.pop(rg, None)
        if x.kind in ("ds", "vload"):
            for rg in x.wr: lastload[rg] = k
    for lst, flag, attr, kind in ((lgw, isds, "lg", "ds"), (vmw, isvm, "vm", "vload")):
        for a, w in enumerate(lst):
            x = code[w]
            if getattr(x, attr) != "auto": continue
            end = lst[a + 1] if a + 1 < len(lst) else n
            young = -1
            for k in range(w + 1, end):
                for p in writer_at[k]:
                    if code[p].kind == kind and p < w: young = max(young, p)
            if attr == "vm" and x.need:
                for k in range(w):
                    if code[k].kind == "dma" and code[k].tag in x.need: young = max(young, k)
            if young < 0: setattr(x, attr, None)
            else:
                cnt = sum(flag[young + 1:w])
                setattr(x, attr, min(cnt, 15 if attr == "lg" else 63))
    for x in code:
        if x.kind == "wait":
            parts = []
            if x.vm is not None: parts.append(f"vmcnt({x.vm})")
            if x.lg is not None: parts.append(f"lgkmcnt({x.lg})")
            x.text = "s_waitcnt " + " ".join(parts) if parts else None
    return [x for x in code if x.text is not None]

def check(code):
    errs = []
    pos = 0
    P = []
    for x in code:
        P.append(pos); pos += 0 if x.kind == "label" else x.nops
    def dist(a, b): return P[b] - P[a] - code[a].nops
    lastw = {}; lastc = {}; laststore = {}
    dsq = []; vmq = []; done = set()
    smem_pending = set()
    dma_by_tag = defaultdict(list); read_by_tag = defaultdict(list)
    done_at = {}; barriers = []
    def slot_of(tag):
        if tag[0] == "P": return [("Q", 0), ("V", 3), ("K", 2), ("K", 3)][tag[1]]
        return (tag[0], tag[1] & 3) if tag[0] in "KV" else ("Q", tag[1] % NQS)
    shared = lambda tag: tag[0] in "KV" or tag == ("P", 1)
    slot_last = {}
    VAL = ("valu", "trans", "pk", "perm")
    for k, x in enumerate(code):
        if x.kind == "wait":
            if x.lg is not None:
                while len(dsq) > x.lg: p = dsq.pop(0); done.add(p); done_at[p] = k
                if x.lg == 0: smem_pending.clear()
            if x.vm is not None:
                while len(vmq) > x.vm: p = vmq.pop(0); done.add(p); done_at[p] = k
            continue
        if x.kind == "barrier": barriers.append(k); continue
        def E(msg, p): errs.append(f"[{k}] {x.text}  <- [{p}] {code[p].text}: {msg}")
        for rg in x.rd + x.cread + x.wr:
            p = lastw.get(rg)
            if p is None: continue
            w = code[p]; d = dist(p, k)
            isread = rg in x.rd or rg in x.cread
            if w.kind in ("ds", "vload"):
                if p not in done: E("load not waited", p)
            elif w.kind in ("mfma", "smfmac"):
                need = 8 if w.kind == "mfma" else 12
                if x.kind in ("mfma", "smfmac"):
                    if rg in x.rd:
                        if d < need: E("mfma D->A/B", p)
                    elif rg in x.cread:
                        if not (x.cread == w.wr and x.kind == w.kind) and d < need - 2: E("mfma D->C overlap", p)
                    else:
                        if d < need - 2 and x.wr != w.wr: E("mfma D->D", p)
                elif d < need: E("mfma D->valu/mem", p)
            elif w.kind in VAL:
                if rg[0] in "va":
                    if x.kind in ("mfma", "smfmac") and isread and d < 2: E("valu->mfma", p)
                    if x.kind == "perm" and isread and d < 2: E("valu->permlane", p)
                    if w.kind == "trans" and x.kind in VAL and x.kind != "trans" and isread and d < 1: E("trans->valu", p)
                    if "readfirstlane" in x.text and d < 1: E("valu->readfirstlane", p)
                if rg[0] == "s":
                    if x.kind in ("dma", "vload", "vstore") and d < 5: E("valu sgpr->vmem", p)
                    if x.kind in VAL and isread and d < 2: E("valu sgpr->valu", p)
            elif w.kind == "salu":
                if rg[0] == "m" and x.kind == "dma" and d < 1: E("m0->dma", p)
        for rg in x.wr:
            p = lastc.get(rg)
            if p is not None and x.kind in VAL and dist(p, k) < (3 if code[p].kind == "mfma" else 7): E("mfma C read -> valu write", p)
            p = laststore.get(rg)
            if p is not None and dist(p, k) < 2: E("store data WAR", p)
        if x.kind == "ds" and x.tag:
            ds = dma_by_tag[x.tag]
            if len(ds) != (2 if x.tag[0] == "Q" else 4): errs.append(f"[{k}] {x.text}: tile {x.tag} has {len(ds)} dma")
            for p in ds:
                if p not in done: E("dma not waited", p)
                elif x.tag[0] in "KV" and not any(done_at[p] < b < k for b in barriers): E("no barrier after dma wait", p)
            if slot_last.get(slot_of(x.tag)) != x.tag: errs.append(f"[{k}] {x.text}: slot holds {slot_last.get(slot_of(x.tag))} not {x.tag}")
            read_by_tag[x.tag].append(k)
        if x.kind == "dma":
            if x.tag[0] == "Q" and not all(p in done for p in read_by_tag[("P", 0)]): errs.append(f"[{k}] Q ring reused before block-0 rows were read")
            old = slot_last.get(slot_of(x.tag))
            if old is not None and old != x.tag:
                rs = read_by_tag[old]
                exp = {"K": 16, "V": 32, "Q": 2, "P": 4}[old[0]]
                if len(rs) != exp: errs.append(f"[{k}] {x.text}: overwrites {old} after {len(rs)} reads")
                for p in rs:
                    if p not in done: E("slot WAR: read not waited", p)
                    elif shared(old) and not any(done_at[p] < b < k for b in barriers): E("slot WAR: no barrier", p)
            slot_last[slot_of(x.tag)] = x.tag
            dma_by_tag[x.tag].append(k)
        if x.kind == "ds": dsq.append(k)
        if x.kind in ("dma", "vload", "vstore"):
            vmq.append(k)
            if len(vmq) > 63: errs.append(f"[{k}] more than 63 vmem in flight")
        for rg in x.wr: lastw[rg] = k
        for rg in x.cread: lastc[rg] = k
        if x.kind == "vstore":
            for rg in x.rd[:4]: laststore[rg] = k
    return errs

def slow_path():
    L = []
    A = L.append
    Q, K, SS, P, M, T, LA, VF = 128, 144, 176, 184, 188, 189, 192, 64
    VK, VL, VS, MC = 200, 201, 202, 203
    A("s_or_b64 s[54:55], s[46:47], s[48:49]")
    A("s_or_b64 s[54:55], s[54:55], s[50:51]")
    A("s_cmp_eq_u64 s[54:55], 0")
    A("s_cbranch_scc1 L_end")
    A("s_waitcnt vmcnt(0) lgkmcnt(0)")
    A(f"s_lshl_b32 s3, s{S_W}, 12")
    A(f"v_subrev_u32 v{VK}, s3, v{V_OOFF}")
    A(f"v_mbcnt_lo_u32_b32 v{T}, -1, 0")
    A(f"v_mbcnt_hi_u32_b32 v{T}, -1, v{T}")
    A(f"v_lshlrev_b32 v{VL}, 4, v{T}")
    A(f"v_lshrrev_b32 v{M}, 2, v{T}")
    A(f"v_lshlrev_b32 v{M}, 8, v{M}")
    A(f"v_and_b32 v{T}, 3, v{T}")
    A(f"v_lshl_add_u32 v{M}, v{T}, 4, v{M}")
    A(f"v_add_u32 v{VS}, s{S_MQ}, v{M}")
    A("s_mov_b32 s56, 0")
    A("L_s_item:")
    A("s_lshr_b32 s57, s56, 2")
    A("s_lshl_b32 s58, s57, 1")
    A("s_mov_b32 m0, s58")
    A("s_nop 1")
    A(f"s_movrels_b64 s[54:55], s[{S_FLAG}:{S_FLAG+1}]")
    A("s_cmp_eq_u64 s[54:55], 0")
    A("s_cbranch_scc1 L_s_next")
    A("s_mov_b32 m0, s56")
    A("s_nop 1")
    A(f"s_movrels_b32 s59, s{S_QO}")
    A("s_mov_b32 m0, s57")
    A("s_nop 1")
    A(f"s_movrels_b32 s60, s{S_KV}")
    for t in range(4): A(f"buffer_load_dwordx4 v[{Q+4*t}:{Q+4*t+3}], v{V_OOFF}, s[{S_Q}:{S_Q+3}], s59 offen offset:{64*t}")
    A(f"v_mov_b32 v{M}, 0xff800000")
    A("s_mov_b32 s61, s60")
    A("s_mov_b32 s63, 32")
    A("L_s_max:")
    for t in range(4): A(f"buffer_load_dwordx4 v[{K+4*t}:{K+4*t+3}], v{VK}, s[{S_K}:{S_K+3}], s61 offen offset:{64*t}")
    A("s_waitcnt vmcnt(0)")
    for t in range(4): A(f"v_mfma_f32_16x16x32_bf16 v[{SS}:{SS+3}], v[{K+4*t}:{K+4*t+3}], v[{Q+4*t}:{Q+4*t+3}], " + ("0" if t == 0 else f"v[{SS}:{SS+3}]"))
    A("s_nop 9")
    A(f"v_max3_f32 v{M}, v{M}, v{SS}, v{SS+1}")
    A(f"v_max3_f32 v{M}, v{M}, v{SS+2}, v{SS+3}")
    A("s_add_u32 s61, s61, 4096")
    A("s_sub_u32 s63, s63, 1")
    A("s_cmp_lg_u32 s63, 0")
    A("s_cbranch_scc1 L_s_max")
    for sw in ("32", "16"):
        A(f"v_mov_b32 v{T}, v{M}")
        A("s_nop 2")
        A(f"v_permlane{sw}_swap_b32 v{M}, v{T}")
        A("s_nop 1")
        A(f"v_max_f32 v{M}, v{M}, v{T}")
    A(f"v_mul_f32 v{MC}, s{S_C}, v{M}")
    for j in range(32): A(f"v_mov_b32 v{j}, 0")
    for j in range(4): A(f"v_mov_b32 v{LA+j}, 0")
    A("s_mov_b32 s61, s60")
    A("s_mov_b32 s63, 16")
    A("L_s_pv:")
    A(f"s_mov_b32 m0, s{S_MQ}")
    for h in range(2):
        A(f"s_add_u32 s3, s61, {4096*h}")
        for t in range(4): A(f"buffer_load_dwordx4 v[{K+16*h+4*t}:{K+16*h+4*t+3}], v{VK}, s[{S_K}:{S_K+3}], s3 offen offset:{64*t}")
        for t in range(4): A(f"buffer_load_dwordx4 v{VL}, s[{S_V}:{S_V+3}], s3 offen offset:{1024*t} lds")
        A("s_waitcnt vmcnt(0)")
        for db in range(8): A(f"ds_read_b64_tr_b16 v[{VF+4*db+2*h}:{VF+4*db+2*h+1}], v{VS} offset:{64*(db >> 1) + 8*(db & 1)}")
        A("s_waitcnt lgkmcnt(0)")
    for h in range(2):
        for t in range(4): A(f"v_mfma_f32_16x16x32_bf16 v[{SS+4*h}:{SS+4*h+3}], v[{K+16*h+4*t}:{K+16*h+4*t+3}], v[{Q+4*t}:{Q+4*t+3}], " + ("0" if t == 0 else f"v[{SS+4*h}:{SS+4*h+3}]"))
    A("s_nop 9")
    for j in range(8): A(f"v_fma_f32 v{SS+j}, v{SS+j}, s{S_C}, -v{MC}")
    for j in range(8): A(f"v_exp_f32 v{SS+j}, v{SS+j}")
    A("s_nop 1")
    for j in range(4): A(f"v_cvt_pk_bf16_f32 v{P+j}, v{SS+2*j}, v{SS+2*j+1}")
    A("s_nop 2")
    A(f"v_mfma_f32_16x16x32_bf16 v[{LA}:{LA+3}], a[{A_ONE}:{A_ONE+3}], v[{P}:{P+3}], v[{LA}:{LA+3}]")
    for db in range(8):
        o = 4*db
        A(f"v_mfma_f32_16x16x32_bf16 v[{o}:{o+3}], v[{VF+4*db}:{VF+4*db+3}], v[{P}:{P+3}], v[{o}:{o+3}]")
    A("s_nop 3")
    A("s_add_u32 s61, s61, 8192")
    A("s_sub_u32 s63, s63, 1")
    A("s_cmp_lg_u32 s63, 0")
    A("s_cbranch_scc1 L_s_pv")
    A("s_nop 9")
    A(f"v_rcp_f32 v{T}, v{LA}")
    A("s_nop 1")
    for j in range(32): A(f"v_mul_f32 v{j}, v{T}, v{j}")
    for u in range(4):
        for j in range(4): A(f"v_cvt_pk_bf16_f32 v{8*u+j}, v{8*u+2*j}, v{8*u+2*j+1}")
        A(f"buffer_store_dwordx4 v[{8*u}:{8*u+3}], v{V_OOFF}, s[{S_O}:{S_O+3}], s59 offen offset:{64*u}")
    A("s_waitcnt vmcnt(0)")
    A("L_s_next:")
    A("s_add_u32 s56, s56, 1")
    A(f"s_cmp_lt_u32 s56, {4*opt.nblocks}")
    A("s_cbranch_scc1 L_s_item")
    return L

def stamp_out():
    if not opt.stamps: return []
    if opt.probe >= 0:
        n = stamp_n[0]
        ins = 's_memtime' if opt.scyc else 's_memrealtime'
        if opt.pavg:
            spin = lambda n: [f"L_spin{n}:", "s_sleep 2", "s_memrealtime s[54:55]", "s_waitcnt lgkmcnt(0)", "s_sub_u32 s54, s54, s96",
                              "s_cmp_lt_u32 s54, s3", f"s_cbranch_scc1 L_spin{n}"]
            return (["s_waitcnt vmcnt(0)", f"{ins} s[{S_STAMP+2*n}:{S_STAMP+2*n+1}]", "s_load_dwordx2 s[56:57], s[0:1], 32", "s_waitcnt lgkmcnt(0)",
                    "s_mov_b32 s58, 256", "s_mov_b32 s59, 0x20000",
                    f"s_sub_u32 s3, s{S_STAMP+2*opt.probe}, s{S_STAMP+2*opt.probe0}", "v_mov_b32 v2, s3", "v_mov_b32 v1, 0",
                    "s_mov_b64 exec, 1", "buffer_atomic_add v2, v1, s[56:59], 0 offen", "s_waitcnt vmcnt(0)", "s_mov_b64 exec, -1", "s_mov_b32 s3, 10000"] + spin(0) +
                    [f"s_add_u32 s3, s2, s{S_W}", "s_cmp_lg_u32 s3, 0", "s_cbranch_scc1 L_nospin",
                     "buffer_load_dword v2, v1, s[56:59], 0 offen sc0 sc1", "s_waitcnt vmcnt(0)", "v_readfirstlane_b32 s3, v2", "s_nop 3",
                     f"s_lshr_b32 s3, s3, {11 if opt.scyc else 8}", "s_add_u32 s3, s3, 10000"] + spin(1) + ["L_nospin:"])
        return ["s_waitcnt vmcnt(0)", f"{ins} s[{S_STAMP+2*n}:{S_STAMP+2*n+1}]", "s_waitcnt lgkmcnt(0)",
                f"s_sub_u32 s3, s{S_STAMP+2*opt.probe}, s{S_STAMP+2*opt.probe0}", "s_lshr_b32 s3, s3, 1" if opt.scyc else "s_lshl_b32 s3, s3, 2", "s_add_u32 s3, s3, 10000",
                "L_spin:", "s_sleep 2", "s_memrealtime s[56:57]", "s_waitcnt lgkmcnt(0)", f"s_sub_u32 s56, s56, s96",
                "s_cmp_lt_u32 s56, s3", "s_cbranch_scc1 L_spin"]
    L = ["s_waitcnt vmcnt(0)"] + [x.text for x in stamp()] + ["s_load_dwordx2 s[56:57], s[0:1], 40", "s_waitcnt lgkmcnt(0)"]
    n = stamp_n[0]
    L += [stamp_save(k).text for k in range(max(0, n - 12), n)]
    L += ["s_mov_b32 s58, 0x1000000", "s_mov_b32 s59, 0x20000", "s_lshl_b32 s3, s2, 2", f"s_add_u32 s3, s3, s{S_W}", "s_lshl_b32 s3, s3, 10",
          "v_mbcnt_lo_u32_b32 v1, -1, 0", "v_mbcnt_hi_u32_b32 v1, -1, v1", "v_lshl_add_u32 v1, v1, 2, s3", f"v_mov_b32 v2, {n}",
          "buffer_store_dword v2, v1, s[56:59], 0 offen offset:768"]
    for k in range(3): L.append(f"buffer_store_dword v{253+k}, v1, s[56:59], 0 offen offset:{256*k}")
    L += ["s_getpc_b64 s[60:61]", "L_pc2:", "s_load_dwordx2 s[56:57], s[0:1], 32", "s_waitcnt lgkmcnt(0)", "s_mov_b32 s58, 256",
          f"s_sub_u32 s60, s60, L_pc2 - {NAME}", "s_subb_u32 s61, s61, 0", "v_mov_b32 v2, s60", "v_mov_b32 v3, s61", "v_mov_b32 v1, 0",
          "buffer_store_dwordx2 v[2:3], v1, s[56:59], 0 offen"]
    L += ["s_waitcnt vmcnt(0)"]
    return L

HEADER = """; Attention forward, B8 H32 Sq736 Sk512 D128, bf16 in/out.
; q(8,32,736,128) k,v(8,32,512,128) out(8,32,736,128); kernarg: q,k,v,out,debug,ws pointers.
; 256 persistent workgroups x 4 waves (one wave per SIMD, 512 registers); each does three (head, 256-row) blocks.
; S^T = K Q^T and O^T = V^T P^T with 16x16x32 bf16 MFMA; K/V tiles (64 keys) stream through a 4-slot LDS ring by LDS-DMA.
; Softmax shift: per row, the maximum over the first 16 keys stands in for the row maximum (softmax is shift invariant);
; a run-time check on every row sum (must stay below 2^30, NaN fails too) sends the block to a fallback that
; recomputes it with the true row maximum.
; @launch grid=(256,1,1) block=(256,1,1) lds=%d
""" % LDS_BYTES

def sizes(code):
    import subprocess, re, tempfile, os
    texts = sorted({x.text for x in code if x.kind not in ("label", "branch") and "L_" not in x.text and "NSTUBS" not in x.text})
    d = tempfile.mkdtemp()
    open(d + "/a.s", "w").write('.amdgcn_target "amdgcn-amd-amdhsa--gfx950"\n.text\n' + "\n".join(texts) + "\ns_endpgm\n")
    subprocess.run(["clang", "-x", "assembler", "-target", "amdgcn-amd-amdhsa", "-mcpu=gfx950", "-c", d + "/a.s", "-o", d + "/a.o"], check=True)
    o = subprocess.run(["llvm-objdump", "-d", "--mcpu=gfx950", d + "/a.o"], capture_output=True, text=True).stdout
    ad = [int(m.group(1), 16) for m in re.finditer(r"// ([0-9A-F]{12}):", o)]
    assert len(ad) == len(texts) + 1
    return {t: ad[i+1] - ad[i] for i, t in enumerate(texts)}

def add_stubs(code):
    sz = sizes(code)
    k0 = next(i for i, x in enumerate(code) if x.text == "L_main:")
    out = code[:k0+1] + [I('L_stub0:', 'label'), salu(f's_cmp_eq_u32 s{S_WARM}, 1'), I('s_cbranch_scc1 L_ret0', 'branch')]; pos = 8; n = 1; nxt = 4096
    body = code[k0+1:]
    for i, x in enumerate(body):
        if x.kind != "label" and pos >= nxt:
            if out[-1].kind in ("mfma", "smfmac") or pos + sz.get(x.text, 4) + 8 > nxt + 64 - 8:
                if n < 4*opt.nstub_rounds:
                    out += [I(f"L_stub{n}:", "label"), salu(f"s_cmp_eq_u32 s{S_WARM}, 1"), I(f"s_cbranch_scc1 L_ret{n}", "branch")]
                    pos += 8
                n += 1; nxt += 4096
        out.append(x); pos += 0 if x.kind == "label" else sz.get(x.text, 4)
    for x in out: x.text = x.text.replace("NSTUBS", str(n - 1))
    res = []; used = set()
    for x in out:
        if x.text.startswith("STUB_CALLS"):
            rd = int(x.text[10:])
            if rd >= opt.nstub_rounds: continue
            calls = [salu(f"s_mov_b32 s{S_WARM}, 1")]
            for w in range(4):
                k = 4*rd + w
                if k >= n: continue
                calls += [salu(f"s_cmp_eq_u32 s{S_W}, {w}"), I(f"s_cbranch_scc1 L_stub{k}", "branch")]; used.add(k)
            calls += [I(f"L_ret{rd}:", "label"), salu(f"s_mov_b32 s{S_WARM}, 0")]
            res += calls
        else: res.append(x)
    out = []
    for x in res:
        if x.text.startswith("s_cbranch_scc1 L_ret"):
            k = int(x.text.split("L_ret")[1])
            x.text = f"s_cbranch_scc1 L_ret{k // 4}" if k in used else "s_nop 0"
        out.append(x)
    return out

def generate():
    stamp_n[0] = 0
    main, stats = None, None
    s = setup(); p = prologue(); main, stats = body()
    code = resolve(s + p + main)
    if opt.stubs: code = add_stubs(code)
    errs = check(code)
    lines = [x.text if x.kind == "label" else "  " + x.text for x in code]
    lines += [x if x.endswith(":") else "  " + x for x in stamp_out() + slow_path()]
    nbytes_guess = "(((L_end - L_pc) >> 10) << 10) - 1024"
    txt = HEADER + f""".amdgcn_target "amdgcn-amd-amdhsa--gfx950"
.text
.globl {NAME}
.p2align 8
.type {NAME},@function
{NAME}:
""" + "\n".join(lines).replace("CODE_LAST_KIB", nbytes_guess) + f"""
L_end:
  s_endpgm
.if L_end - L_main < 65536
  .fill (65536 - (L_end - L_main)) / 4, 4, 0xbf810000
.endif
.section .rodata,"a"
.p2align 6
.amdhsa_kernel {NAME}
  .amdhsa_next_free_vgpr 512
  .amdhsa_next_free_sgpr 102
  .amdhsa_accum_offset 256
  .amdhsa_group_segment_fixed_size 0
  .amdhsa_kernarg_size 48
  .amdhsa_user_sgpr_count 2
  .amdhsa_user_sgpr_kernarg_segment_ptr 1
  .amdhsa_system_sgpr_workgroup_id_x 1
  .amdhsa_float_denorm_mode_32 3
.end_amdhsa_kernel
"""
    return txt, errs, stats

if __name__ == "__main__":
    out = sys.argv[1]
    for a in sys.argv[2:]:
        k, v = a.split("="); t = type(getattr(opt, k)); setattr(opt, k, v if t is str else t(int(v)))
    txt, errs, stats = generate()
    for e in errs[:40]: print("HAZARD", e)
    print(len(errs), "hazards;", stats, len(txt), "chars")
    open(out, "w").write(txt)
    sys.exit(1 if errs else 0)
```

```python
import sys, heapq
from collections import defaultdict
import gen
from gen import *

opt.tail_k = 2
opt.bar_every = 1
opt.vm_sp = 8
opt.st_gap = 32
opt.vm_lat = 120
opt.ld_lat = 9
opt.pk_pre = True
opt.bar_pos = 88
opt.pre_start = 16
opt.dbg_sched = 0
opt.q_ahead = 400
opt.tail_st_gap = 14

MEMK = ("ds", "dma", "vstore", "vload")
VMK = ("dma", "vstore", "vload")
SCK = ("salu", "wait", "barrier")
COST2 = {"valu": 1, "trans": 2, "pk": 1, "perm": 1, "ds": 1, "dma": 1, "vstore": 3, "vload": 1}
BIG = 10**9

class Node:
    __slots__ = ("i", "m", "pred", "succ", "est", "dl", "pin", "gap", "pos", "left", "burst")
    def __init__(s, i, m=None):
        s.i, s.m, s.pred, s.succ, s.est, s.dl, s.pin, s.gap, s.pos, s.left, s.burst = i, m, {}, [], 0, BIG, None, None, None, 0, None

class Prog:
    def __init__(s):
        s.M = []; s.F = []; s.node = {}
        s.lw = {}; s.lr = defaultdict(list)
    def edge(s, p, x, dist=0, lat=0):
        if p is x: return
        d, l = x.pred.get(p, (0, 0))
        if p not in x.pred: p.succ.append(x)
        x.pred[p] = (max(d, dist), max(l, lat))
    def add(s, ins, est=0, dl=BIG, pin=None):
        ism = ins.kind in ("mfma", "smfmac")
        x = Node(ins, len(s.M) if ism else None)
        x.est, x.dl, x.pin = est, dl, pin
        if pin is not None: x.est = x.dl = pin
        for rg in ins.rd + ins.cread:
            p = s.lw.get(rg)
            if p: s.dep(p, x, rg, "raw")
        for rg in ins.wr:
            p = s.lw.get(rg)
            if p: s.dep(p, x, rg, "waw")
            for p in s.lr[rg]: s.dep(p, x, rg, "war")
        for rg in ins.wr: s.lw[rg] = x; s.lr[rg] = []
        for rg in ins.rd + ins.cread: s.lr[rg].append(x)
        (s.M if ism else s.F).append(x); s.node[id(ins)] = x
        return x
    def dep(s, p, x, rg, kind):
        d = edge_dist(p.i, x.i, rg, kind)
        lat = 0
        if p.i.kind == "ds" and kind != "war": lat = opt.ld_lat
        elif p.m is None and x.m is not None: lat = 2 if d else 1
        elif p.m is None and (d or (x.i.kind in MEMK + SCK and p.i.kind in VALK)): lat = 1
        s.edge(p, x, d, lat)

def phases():
    nt = NT(); A4 = (0, 1, 2, 3); A, B = (0, 1), (2, 3)
    k = opt.tail_k
    ph = [((T + 1, A4), (T, A4)) for T in range(nt - 1 - k)]
    if k == 0: return ph + [(None, (nt - 1, A4))]
    seq = [(T, A) for T in range(nt - k, nt)] + [(T, B) for T in range(nt - k, nt)]
    prev = (nt - k - 1, A4)
    for x in seq: ph.append((x, prev)); prev = x
    return ph + [(None, prev)]

def body2():
    nt = NT(); nb = opt.nblocks
    P = Prog()
    ph = phases()
    kcount = [0]; vcount = [0]
    reads = defaultdict(list)
    phase_start = []; group_start = []
    un = [0]
    done_db = defaultdict(set)
    items = []
    lnodes = {}
    tailitems = []
    pre_at = {8*r + 0: r for r in range(nb - 1)}
    pre_nodes = {}
    first_kset = True; first_vsets = 0

    def kset(T, kb):
        buf = kcount[0] & 1; kcount[0] += 1
        for t in range(4):
            if T == 1 and (kb == 0 or (kb == 1 and t == 0)): continue
            ins = k_read(T, kb, t, dest=A_K + 16*buf + 4*t)
            reads[("K", T)].append(P.add(ins))
        return A_K + 16*buf
    def vset(T, db):
        buf = vcount[0] & 3; vcount[0] += 1
        u, p = db >> 1, db & 1
        for ks in range(2):
            for hf in range(2):
                if T == 0 and 4*db + 2*ks + hf < 10: continue
                ins = v_read(T, db, ks, hf, dest=A_V + 8*buf + 4*ks + 2*hf)
                reads[("V", T)].append(P.add(ins))
        return A_V + 8*buf

    for pi, (qk, pv) in enumerate(ph):
        phase_start.append(len(P.M))
        if pv and pv[0] in pre_at and pv[1][0] == 0 and pv[0] not in pre_nodes:
            r = pre_at[pv[0]]; lst = []
            for k in range(16):
                kap = 16*(r + 1) + k
                if not kap & 1: w = P.add(wait(vm="auto", need=[("Q", kap >> 1)]))
                rd = P.add(q_read(kap)); P.edge(w, rd)
                ops = [P.add(o) for o in prescale_ops(V_RAW + 4*(kap & 1), q_reg(r + 1, k >> 2, k & 3), opt.pk_pre)]
                if opt.pk_pre:
                    for o in ops[8:12]: o.burst = ops[8:12]
                lst.append((kap, w, rd, ops))
            pre_nodes[pv[0]] = lst
        units = [(qk[0], kb, qb) for kb in range(4) for qb in qk[1]] if qk else []
        pairs = [(pv[0], db, pv[1][j:j+2]) for db in range(8) for j in range(0, len(pv[1]), 2)] if pv else []
        ns = max(len(units), len(pairs))
        smf = {}
        if pv:
            early = pv[0] % 8 == 7
            for n, qb in enumerate(pv[1]):
                smf.setdefault((1 + n // 2) if early else (ns // 8) * (1 + n * (8 // len(pv[1])) // 2 + (0 if len(pv[1]) == 4 else 1)), []).append(qb)
        iu = ip = 0; kb_cur = db_cur = None
        for s_ in range(ns):
            group_start.append(len(P.M))
            if iu < len(units) and iu * ns <= s_ * len(units):
                T1, kb, qb = units[iu]; iu += 1
                if kb != kb_cur: kreg = kset(T1, kb); kb_cur = kb
                special = T1 % 8 == 0 and kb == 0
                d = p_reg(T1, qb, 1) if special else V_S + 4*(un[0] & 1)
                un[0] += 1
                for t in range(4):
                    cc = None if t else ("0" if special else V_NEGM + 4*qb)
                    P.add(mfma("v", d, "a", kreg + 4*t, "a", q_reg(T1 // 8, qb, t), cc))
                if special:
                    for o in max_ops(d, qb):
                        if not isinstance(o, str): P.add(o)
                e, cv = soft_ops(d, p_reg(T1, qb, kb >> 1) + 2*(kb & 1))
                for o in e + cv: P.add(o)
            if ip < len(pairs) and ip * ns <= s_ * len(pairs):
                T0, db, qs = pairs[ip]; ip += 1
                if db != db_cur: vreg = vset(T0, db); db_cur = db
                for qb in qs:
                    for ks in range(2):
                        last = P.add(mfma("v", o_reg(db, qb), "a", vreg + 4*ks, "v", p_reg(T0, qb, ks), "0" if (T0 % 8 == 0 and ks == 0) else None))
                    if T0 % 8 == 7 and db & 1: items.append((T0 // 8, db >> 1, qb, last))
            for qb in smf.get(s_, []):
                P.add(smfmac(qb, p_reg(pv[0], qb, 0)))
                if pv[0] % 8 == 7:
                    r = pv[0] // 8
                    lnodes[(r, qb)] = [P.add(o) for o in l_ops(r, qb, r < nb - 1)]
            while items:
                r, u, qb, last = items.pop(0)
                tailitems.append((r, u, qb, last, None))
                tailitems[-1] = (r, u, qb, last, add_item(P, r, u, qb, last))
    n = len(P.M)
    gs = group_start
    full = lambda T: phase_start[T]
    bars = []
    ps = phase_start + [n]
    bpos = [ps[i] + (ps[i+1] - ps[i]) * opt.bar_pos // 132 for i in range(len(ph))]
    firstuse = {tg: min(y.m for x in lst for y in x.succ if y.m is not None) for tg, lst in reads.items() if lst}
    unpub = [("K", x) for x in range(2, nt)] + [("V", x) for x in range(1, nt)]
    enabled = {("K", x) for x in range(5)} | {("V", x) for x in range(4)}
    enable = {}; freeK = 0; freeV = -1
    blist = list(range(len(ph))) if opt.bar_every == 1 else [0] + list(range(1, nt - 4, 2)) + list(range(nt - 4, len(ph)))
    for bi, pi in enumerate(blist):
        if not unpub: break
        g = bpos[pi]
        nxt = bpos[blist[bi + 1]] if bi + 1 < len(blist) else n
        if all(tg in enabled for tg in unpub) and pi >= nt - 6: pub = list(unpub)
        else: pub = [tg for tg in unpub if firstuse[tg] - opt.ld_lat - 30 < nxt]
        assert all(tg in enabled for tg in pub), (pi, pub)
        unpub = [tg for tg in unpub if tg not in pub]
        free = []
        if pi <= nt - 2 - opt.tail_k:
            free = [("K", x) for x in range(freeK + 1, pi + 2)] + [("V", x) for x in range(freeV + 1, pi + 1)]
            freeK, freeV = pi + 1, pi
        free = [tg for tg in free if tg[1] + 4 < nt]
        w = P.add(wait(vm="auto", lg="bar", need=pub), pin=g - 1)
        b = P.add(barrier(), pin=g); P.edge(w, b, 0, 1)
        w.burst = [x for tg in free for x in reads[tg]]
        for tg in free:
            for x in reads[tg]: x.dl = min(x.dl, g - 1 - 7)
            enable[(tg[0], tg[1] + 4)] = b; enabled.add((tg[0], tg[1] + 4))
        for tg in pub:
            for x in reads[tg]: P.edge(b, x)
        bars.append((g, w, pub))
    assert not unpub
    pubgap = {tg: g for g, w, pub in bars for tg in pub}
    pubw = {tg: w for g, w, pub in bars for tg in pub}
    qplan = {}
    for T0, lst in pre_nodes.items():
        lo = gs[16*T0 + opt.pre_start + (10 if T0 == 0 else 0)]; hi = gs[16*(T0 + 6) + 8]
        for k, (kap, w, rd, ops) in enumerate(lst):
            a = lo + (hi - lo) * k // 16; b = lo + (hi - lo) * (k + 1) // 16
            qplan[kap] = a
            if not kap & 1: w.est = a - 8; w.dl = a - 1
            rd.est = a; rd.dl = a + 4
            for j, o in enumerate(ops): o.dl = min(o.dl, a + 4 + opt.ld_lat + (b - a) * (j + 1) // len(ops))
    jobs = []
    for kind, first in (("K", opt.first_k), ("V", opt.first_v)):
        for T in range(first, nt):
            b = enable.get((kind, T))
            est = b.pin if b else 0
            for t in range(4): jobs.append([est, pubgap[(kind, T)] - opt.vm_lat - 4*(3 - t) - (32 if pubgap.get((kind, T + 1)) == pubgap[(kind, T)] else 0), kind, T, t])
    for pc in range(8, 8*nb):
        est = qplan[2*(pc - NQS) + 1] + 4 + opt.ld_lat + 10 if pc - NQS >= 8 else 110
        est = max(est, qplan[2*pc] - opt.q_ahead)
        for hh in range(2): jobs.append([est, qplan[2*pc] - 8 - opt.vm_lat - 4*(1 - hh), "Q", pc, hh])
    order = []; t = 0
    jobs.sort()
    pend = list(jobs)
    while pend:
        av = [j for j in pend if j[0] <= t]
        if not av: t = min(j[0] for j in pend); continue
        j = min(av, key=lambda j: (j[1], j[2], j[3], j[4])); pend.remove(j); order.append(j); t += (opt.vm_sp + 1 if j[1] > t else 2)
    late = [P.add(o, dl=100) for o in gen.late_setup]
    for a, b in zip(late, late[1:]): P.edge(a, b, 0, 1)
    qfirst = {kap: ops[0] for lst in pre_nodes.values() for kap, w, rd, ops in lst}
    qwait = {kap: w for lst in pre_nodes.values() for kap, w, rd, ops in lst}
    for est, dl, kind, T, t in order:
        if kind == "Q":
            m, d = q_dma(T, t)
            mn = P.add(m); dn = P.add(d, est=est, dl=max(dl, est + 16 + 4*t))
            if 2*(T - NQS) + 1 in qfirst: P.edge(qfirst[2*(T - NQS) + 1], dn, 0, 1)
            P.edge(late[-1], dn); P.edge(dn, qwait[2*T], 0, 1)
        else:
            if t == 0:
                so = P.add(k_soff(T) if kind == "K" else v_soff(T))
                if T >= 8: P.edge(late[-1], so)
            m, d = (k_dma if kind == "K" else v_dma)(T, t)
            mn = P.add(m); dn = P.add(d, est=est, dl=max(dl, est + 16 + 4*t))
            b = enable.get((kind, T))
            if b: P.edge(b, dn)
            P.edge(dn, pubw[(kind, T)], 0, 1)
    if opt.jit_every:
        for k in range(opt.jit_first, 8):
            g = gs[int((k - opt.jit_first) * opt.jit_every * 1.6) + opt.jit_g0]
            ld, ad = jit_ops()
            P.add(ld, est=g, dl=g + 60); P.add(ad, est=g, dl=g + 100)
    plan_stores(P, tailitems, phase_start, gs)
    return schedule(P, phase_start, gs)

def add_item(P, r, u, qb, last):
    mul, cv, st = epi_ops(r, u, qb)
    mn = [P.add(o) for o in mul]
    if opt.pk_epi:
        for o in mn: o.burst = mn
    cn = [P.add(o) for o in cv]
    last_block = r == opt.nblocks - 1
    park = None if last_block else park_plan(r).get((u, qb))
    if isinstance(park, tuple): park = A_Q[r & 1] + 4*park[1]
    if park is None: sn = P.add(st)
    else:
        b = V_O + 32*u + 8*qb
        for j in range(4): P.add(valu(f"v_accvgpr_write_b32 {ar(park+j)}, {vr(b+j)}", R("v", b+j), R("a", park+j)))
        sn = P.add(vstore(park, V_OOFF, S_O, S_QO + 4*r + qb, 64*u, "a"))
    sn.burst = (mn, cn)
    return sn

_pp = {}
def park_plan(r):
    if "plan" not in _pp:
        sp = opt.st_gap / 8.25
        items = [(u, qb) for u in range(4) for qb in range(4)]
        avail = {it: max(4*it[0] + 3 + (it[1] >> 1), 5) + 1.5 for it in items}
        dead = {it: 16 + 4*it[0] + (it[1] >> 1) - 0.5 for it in items}
        left = list(items); t = 6.5; slots = {}
        while True:
            cand = [it for it in left if avail[it] <= t < dead[it]]
            if cand:
                it = min(cand, key=lambda x: dead[x]); left.remove(it); slots[it] = t
            elif not any(t < dead[it] for it in left): break
            t += sp
        for it in left: slots[it] = t; t += sp
        nq = max(0, len(left) - 10)
        _pp["plan"] = {it: (("q", 16 - nq + n) if n < nq else A_PARK + 4*(n - nq)) for n, it in enumerate(left)}
        _pp["slot"] = slots
    return _pp["plan"]

def plan_stores(P, tailitems, phase_start, gs):
    nb = opt.nblocks
    for r, u, qb, last, sn in tailitems:
        if r < nb - 1:
            park_plan(r)
            t = _pp["slot"][(u, qb)]
            g = gs[16*(8*r + 7) + int(t)] + int(8*(t - int(t)))
            sn.est = g; sn.dl = min(sn.dl, g + 12)
    n = len(P.M); tv = ts = 0
    for r, u, qb, last, sn in sorted([x for x in tailitems if x[0] == nb - 1], key=lambda x: x[3].m):
        mn, cn = sn.burst
        tv = max(last.m + 8, tv + 4); ts = max(tv + 5, ts + opt.tail_st_gap)
        if tv + 3 < n:
            for o in mn: o.dl = tv
            for j, o in enumerate(cn): o.dl = tv + 1 + j // 2
        if ts < n: sn.dl = ts

def schedule(P, phase_start, gs):
    M, F = P.M, P.F; n = len(M)
    indeg = {}
    for x in F: indeg[x] = sum(1 for y in x.succ if y.m is None)
    stack = [x for x in F if indeg[x] == 0]; seen = 0
    while stack:
        x = stack.pop(); seen += 1
        for y in x.succ:
            d, l = y.pred[x]
            lim = (y.m - max(l, 1)) if y.m is not None else (y.dl - l if y.dl < BIG else BIG)
            if x.pin is None: x.dl = min(x.dl, lim)
        for p in x.pred:
            if p.m is None:
                indeg[p] -= 1
                if indeg[p] == 0: stack.append(p)
    assert seen == len(F), "cycle"
    for k, x in enumerate(F): x.left = len(x.pred); x.pos = None
    seq = {x: k for k, x in enumerate(F)}
    pool = [x for x in F if x.left == 0]
    gaps = []; pos = [0]; out_nops = 0
    lastvm = -99; lastst = -99; late = []
    def placed(x, g):
        x.gap = g; x.pos = pos[0]; pos[0] += x.i.nops
        for y in x.succ:
            if y.m is None:
                y.left -= 1
                if y.left == 0: pool.append(y)
    def short(x, at):
        return max([d - (at - p.pos - p.i.nops) for p, (d, l) in x.pred.items()] + [0])
    def latok(x, g):
        for p, (d, l) in x.pred.items():
            if p.m is None and p.gap + (l if p.i.kind != "ds" or x.i.kind in VALK else 0) > g: return False
        return True
    for g in range(n + 1):
        final = g == n
        cur = []
        if not final:
            m = M[g]
            for p in m.pred:
                assert p.pos is not None, ("unplaced predecessor", g, m.i, p.i, p.dl, p.est)
            s_ = short(m, pos[0])
            if s_: cur.append(nop(s_)); pos[0] += s_; out_nops += s_
            placed(m, g); cur.append(m.i)
        gp = dict(pre=cur, shadow=[], mem=[], valu=[]); gaps.append(gp)
        load = 0
        def emit(x, where):
            nonlocal load, lastvm, lastst, out_nops
            pool.remove(x)
            s_ = short(x, pos[0])
            if s_: gp[where].append(nop(s_)); pos[0] += s_; load += s_; out_nops += s_
            if x.dl < g: late.append((g, x.dl, x.i.text))
            placed(x, g); gp[where].append(x.i)
            if x.i.kind in VMK: lastvm = g
            if x.i.kind == "vstore": lastst = g
            load += COST2.get(x.i.kind, 0)
        key = lambda x: (x.dl, seq[x])
        if final:
            while pool:
                c = [x for x in pool if short(x, pos[0]) == 0] or pool
                emit(min(c, key=lambda x: seq[x]), "valu")
            break
        sc = sorted([x for x in pool if x.i.kind in SCK and x.est <= g and (latok(x, g) or x.dl <= g)], key=key)
        if sc and (sc[0].dl <= g + 40 or g % 2): emit(sc[0], "shadow")
        elif not gp["shadow"]: pos[0] += 0
        while True:
            sc = [x for x in pool if x.i.kind in SCK and x.dl <= g and x.est <= g]
            if not sc: break
            emit(min(sc, key=key), "shadow"); load += 1
        def vm_ok(x):
            if x.i.kind not in VMK or x.dl <= g: return True
            stg = opt.tail_st_gap if g >= phase_start[-1 - 2*opt.tail_k] else opt.st_gap
            if x.i.kind == "vstore" and g - lastst < stg: return False
            return g - lastvm >= (opt.vm_sp if x.i.kind != "vstore" else 3)
        def cands(kinds):
            return sorted([x for x in pool if x.i.kind in kinds and x.est <= g and latok(x, g) and short(x, pos[0]) == 0 and vm_ok(x)], key=key)
        mem = cands(MEMK); val = cands(("valu", "trans", "perm"))
        pkc = cands(("pk",))
        burst = None
        if pkc:
            b = pkc[0]
            if all(y in pool or y.pos is not None for y in b.burst) and b.dl - g <= 10:
                avail = sum(COST2[x.i.kind] for x in val)
                if avail >= 4 or b.dl <= g: burst = [y for y in b.burst if y.pos is None]
        cap = 4 if burst else 2
        nvm = 0
        for x in mem:
            forced = x.dl <= g
            c = COST2[x.i.kind]
            if x.i.kind in VMK and nvm and not forced: continue
            if not forced:
                if load + min(c, 2) > cap: continue
                if val and val[0].i.kind == "trans" and load == 0 and key(val[0]) < key(x): break
                if load == 0 and cap == 2 and c == 1:
                    other = [y for y in mem + val if y is not x and COST2[y.i.kind] == 1 and not (y.i.kind in VMK and x.i.kind in VMK)]
                    if not other and any(y.i.kind == "trans" for y in val) and x.dl > g + 2: continue
            if short(x, pos[0]) and not forced: continue
            emit(x, "mem"); nvm += x.i.kind in VMK
        while True:
            f = [x for x in pool if x.i.kind in MEMK and x.dl <= g and x.est <= g]
            if not f or gp["valu"]: break
            emit(min(f, key=key), "mem")
        while True:
            val = cands(("valu", "trans", "perm"))
            f = sorted([x for x in pool if x.i.kind in VALK and x.dl <= g and x.est <= g and x.i.kind != "pk"], key=key)
            if f: emit(f[0], "valu"); continue
            fit = [x for x in val if load + COST2[x.i.kind] <= cap]
            if not fit: break
            x = fit[0]
            if cap - load == 2 and COST2[x.i.kind] == 1:
                ones = [y for y in fit if COST2[y.i.kind] == 1]
                tr = [y for y in fit if y.i.kind == "trans"]
                follow = any(y.left == 1 and y.m is None and y.i.kind in ("valu",) and y.pred[x][0] == 0 for y in x.succ)
                if len(ones) < 2 and tr and not follow and x.dl > g + 1: x = tr[0]
            emit(x, "valu")
        if burst:
            for y in burst: emit(y, "valu")
        while True:
            f = [x for x in pool if x.dl <= g and x.est <= g]
            if not f: break
            emit(min(f, key=key), "valu")
        gp["load"] = load
    assert not pool and all(x.pos is not None for x in F)
    dsn = 0; ds_gap = []; prod = {}
    need = [-1]*(n + 2)
    for g, gp in enumerate(gaps):
        for part in ("pre", "shadow", "mem", "valu"):
            for ins in gp[part]:
                for rg in ins.rd + ins.cread + ins.wr:
                    if rg in prod:
                        gi = g - 1 if part == "pre" else g
                        need[gi] = max(need[gi], prod[rg])
                for rg in ins.wr: prod.pop(rg, None)
                if ins.kind == "ds":
                    for rg in ins.wr: prod[rg] = dsn
                    ins.lg = dsn; ds_gap.append(g); dsn += 1
    before = [0]*(n + 2)
    for g in range(n + 1): before[g + 1] = before[g] + sum(1 for part in ("mem", "valu") for i in gaps[g][part] if i.kind == "ds")
    cov = -1; extra = 0
    for g in range(n + 1):
        for ins in gaps[g]["shadow"]:
            if ins.kind == "wait" and ins.lg == "bar":
                x = P.node[id(ins)]
                tgt = max([y.i.lg for y in x.burst] + [-1])
                assert tgt < before[g]
                if tgt > cov: ins.lg = min(15, before[g] - 1 - tgt); cov = before[g] - 1 - ins.lg
                else: ins.lg = None
        if need[g] > cov:
            h = g
            while h > ds_gap[need[g]] + 2 and h > g - 4 and gaps[h]["shadow"]: h -= 1
            if gaps[h]["shadow"] or h <= ds_gap[need[g]]:
                h = g
                assert ds_gap[need[g]] < g, ("read and use in one gap", g)
                wv = [i for i in gaps[g]["shadow"] if i.kind == "wait" and i.lg is None]
            else: wv = []
            tgt = max(need[g], before[max(0, h - 6)] - 1)
            cnt = min(15, before[h] - 1 - tgt)
            if wv: wv[0].lg = cnt
            else:
                if gaps[h]["shadow"]: extra += 1; gaps[h]["load"] = gaps[h].get("load", 0) + 1
                gaps[h]["shadow"].append(wait(lg=cnt))
            cov = before[h] - 1 - cnt
    for g in range(n + 1):
        for part in ("mem", "valu"):
            for ins in gaps[g][part]:
                if ins.kind == "ds": ins.lg = None
    c = []
    sper = [int(x) for x in opt.sper.split('_')] if opt.sper else [0, 1, 7, 8, 9, 15, 16, 17] + list(range(20, len(phase_start)))
    marks = {phase_start[T] for T in sper if T < len(phase_start)}
    if opt.sgrp: marks = {gs[int(x)] for x in opt.sgrp.split('_')}
    for g, gp in enumerate(gaps):
        if g in marks or g == n: c += stamp()
        lst = gp["pre"] + gp["shadow"] + gp["mem"] + gp["valu"]
        if opt.sgrp and min(marks) <= g <= max(marks):
            for ins in lst:
                if ins.kind in VMK or ins.kind == "barrier" or (ins.kind == "wait" and ins.vm is not None): c += stamp() + [ins] + stamp()
                else: c.append(ins)
        else: c += lst
    c += stamp()
    cyc = [max(16, 8 + 4*gp.get("load", 0)) for gp in gaps[:n]]
    ps = phase_start + [n]
    stats = dict(nbar=sum(1 for x in F if x.i.kind == 'barrier'), per=[sum(cyc[a:b]) for a, b in zip(ps, ps[1:])], gaps=n, est_cycles=sum(cyc), tail_instr=len(gaps[n]["valu"]),
                 under=sum(max(0, 2 - gp.get("load", 0)) for gp in gaps[:n]), nops=out_nops, extra_waits=extra, late=len(late))
    if opt.dbg_sched:
        for l in late[:40]: print("late", l)
    return c, stats

opt.first_k = 3
opt.first_v = 2
gen.body = body2

if __name__ == "__main__":
    out = sys.argv[1]
    for a in sys.argv[2:]:
        k, v = a.split("="); t = type(getattr(opt, k)); setattr(opt, k, v if t is str else t(int(v)))
    txt, errs, stats = gen.generate()
    for e in errs[:40]: print("HAZARD", e)
    print(len(errs), "hazards;", stats, len(txt), "chars")
    open(out, "w").write(txt)
    sys.exit(1 if errs else 0)
```

```python
import sys, struct, math, json
from collections import defaultdict

NAME = "standalone__gqa_softmax__near_ridge_kernel"

class Opt:
    stamps = False
    force_slow = False
    code_prefetch = False
    pk_epi = True
    pk_pre = False
    nblocks = 3
    kv_pol = ''
    q_pol = ''
    o_pol = ''
    olast_pol = ''
    olastb_pol = ''
    full_line = 1
    late_issue = 1
    st_sp = 25
    st_g0 = 6
    scyc = 0
    sper = ''
    sgrp = ''
    line_prefetch = 1
    head_prefetch = 1
    stub_n0 = 1
    stub_n1 = 2
    stub_late = 1
    stub_early = 0
    nstub_rounds = 4
    jit_every = 29
    jit_first = 2
    jit_g0 = 23
    stubs = 1
    abl = ''
    lin_dma = 0
    probe0 = 0
    pavg = 0
    probe = -1
opt = Opt()

def f2u(x): return struct.unpack("<I", struct.pack("<f", x))[0]
CSCALE = f2u(math.log2(math.e) / math.sqrt(128.0))
THR = f2u(2.0 ** 30)

VE = 0
KB = 65552
VPAR = 32768 + 8
QB = 131088
QW = 7168
NQS = 3
LDS_BYTES = 163840

V_O = 0
V_P = 128
V_S = 192
V_NEGM = 200
V_RAW = 216
V_T = 224
V_JIT = 252
A_DUMMY = 255
V_RCP = 232
V_MT = 224
V_LT = 226
V_KADDR = 240
V_VADDR = 242
V_QADDR = 249
V_KOFF = 245
V_VOFF = 246
V_OOFF = 247
V_IDX = 248
V_OOFF2 = 251
V_TMP = 64
A_Q = [0, 64]
A_K = 128
A_V = 160
A_L = 192
A_ONE = 208
A_PARK = 212
S_K, S_V, S_Q, S_O = 4, 8, 12, 16
S_KV = 20
S_W = 23
S_QO = 24
S_MK, S_MV, S_MQ = 36, 37, 38
S_SK, S_SV = 39, 40
S_LMASK = 58
VCC = ("s", 106)
S_MQ1 = 62
S_C = 42
S_THR = 44
S_FLAG = 46
S_CMP = 52
S_T = 54
S_WARM = 99
S_PC = 100
S_STAMP = 64

def vr(b, n=1): return f"v{b}" if n == 1 else f"v[{b}:{b+n-1}]"
def ar(b, n=1): return f"a{b}" if n == 1 else f"a[{b}:{b+n-1}]"
def sr(b, n=1): return f"s{b}" if n == 1 else f"s[{b}:{b+n-1}]"
def R(c, b, n=1): return [(c, b + i) for i in range(n)]

class I:
    __slots__ = ("text", "kind", "rd", "wr", "tag", "cread", "nops", "need", "vm", "lg", "after")
    def __init__(s, text, kind, rd=(), wr=(), tag=None, cread=(), nops=1):
        s.text, s.kind, s.rd, s.wr, s.tag, s.cread, s.nops = text, kind, list(rd), list(wr), tag, list(cread), nops
        s.need = None; s.vm = None; s.lg = None; s.after = []
    def __repr__(s): return s.text

def mfma(dc, d, ac, a, bc, b, c=None):
    f = {"v": vr, "a": ar}
    if c is None: ct, cr = f[dc](d, 4), R(dc, d, 4)
    elif c == "0": ct, cr = "0", []
    else: ct, cr = f[dc](c, 4), R(dc, c, 4)
    return I(f"v_mfma_f32_16x16x32_bf16 {f[dc](d,4)}, {f[ac](a,4)}, {f[bc](b,4)}, {ct}", "mfma",
             rd=R(ac, a, 4) + R(bc, b, 4), wr=R(dc, d, 4), cread=cr)
def smfmac(qb, pb):
    return I(f"v_smfmac_f32_16x16x64_bf16 {ar(A_L+4*qb,4)}, {ar(A_ONE,4)}, {vr(pb,8)}, {vr(V_IDX)}", "smfmac",
             rd=R("a", A_ONE, 4) + R("v", pb, 8) + R("v", V_IDX), wr=R("a", A_L + 4*qb, 4), cread=R("a", A_L + 4*qb, 4))
def valu(text, rd, wr, kind="valu"): return I(text, kind, rd, wr)
def vexp(r): return I(f"v_exp_f32 {vr(r)}, {vr(r)}", "trans", R("v", r), R("v", r))
def vcvt(d, a, b): return I(f"v_cvt_pk_bf16_f32 {vr(d)}, {vr(a)}, {vr(b)}", "valu", R("v", a) + R("v", b), R("v", d))
def salu(text, rd=(), wr=()): return I(text, "salu", rd, wr)
def nop(n): return I(f"s_nop {n-1}", "nop", nops=n)
def wait(vm=None, lg=None, need=None):
    i = I("s_waitcnt", "wait"); i.vm, i.lg, i.need = vm, lg, need; return i
def barrier(): return I("s_barrier", "barrier")
def dsr(dc, d, addr, off, tag):
    f = {"v": vr, "a": ar}[dc]
    return I(f"ds_read_b128 {f(d,4)}, {vr(addr)} offset:{off}", "ds", R("v", addr), R(dc, d, 4), tag)
def dst(d, addr, off, tag):
    return I(f"ds_read_b64_tr_b16 {ar(d,2)}, {vr(addr)} offset:{off}", "ds", R("v", addr), R("a", d, 2), tag)
def setm0(sbase, imm):

    return I(f"s_add_u32 m0, {sr(sbase)}, {imm}", "salu", R("s", sbase), [("m", 0)])
def pol(p): return ''.join(' ' + x for x in p.split('_') if x)
def dma(voff, srd, soff, imm, tag):
    o = f" offset:{imm}" if imm else ""
    o += pol(opt.q_pol if srd == S_Q else opt.kv_pol)
    return I(f"buffer_load_dwordx4 {vr(voff)}, {sr(srd,4)}, {sr(soff)} offen{o} lds", "dma",
             R("v", voff) + R("s", srd, 4) + R("s", soff) + [("m", 0)], [], tag)
def vload(d, voff, srd, soff, imm):
    o = f" offset:{imm}" if imm else ""
    o += pol(opt.q_pol)
    return I(f"buffer_load_dwordx4 {vr(d,4)}, {vr(voff)}, {sr(srd,4)}, {sr(soff)} offen{o}", "vload",
             R("v", voff) + R("s", srd, 4) + R("s", soff), R("v", d, 4))
def vstore(d, voff, srd, soff, imm, dc="v", last=False):
    o = f" offset:{imm}" if imm else ""
    if 'L' in opt.abl and last: voff = V_KOFF; imm = kq_imm(imm // 64); o = f" offset:{imm}" if imm else ""
    o += pol((opt.olast_pol if (soff - S_QO) % 4 < 2 else opt.olastb_pol) if last else opt.o_pol)
    return I(f"buffer_store_dwordx4 {(vr if dc == 'v' else ar)(d,4)}, {vr(voff)}, {sr(srd,4)}, {sr(soff)} offen{o}", "vstore",
             R(dc, d, 4) + R("v", voff) + R("s", srd, 4) + R("s", soff), [])

def o_reg(db, qb): return V_O + 32*(db >> 1) + 8*qb + 4*(db & 1)
def p_reg(T, qb, ks): return V_P + 32*(T & 1) + 8*qb + 4*ks
def q_reg(r, qb, t): return A_Q[r & 1] + 16*qb + 4*t
def k_reg(kb, t): return A_K + 16*(kb & 1) + 4*t
def v_reg(db, ks): return A_V + 8*(db & 3) + 4*ks
def k_read(T, kb, t, dest=None):
    return dsr("a", k_reg(kb, t) if dest is None else dest, V_KADDR + (t & 1), (T & 3)*16384 + kb*4096 + (t >> 1)*2048, ("K", T))
def v_read(T, db, ks, hf, dest=None):
    u, p = db >> 1, db & 1
    return dst(v_reg(db, ks) + 2*hf if dest is None else dest, V_VADDR + (u & 1), (T & 3)*8192 + (2*ks + hf)*2048 + (u >> 1)*1024 + 8*p, ("V", T))
def kq_imm(j): return (j & 1)*2048 + (j >> 1)*128
def k_dma(T, j):
    return setm0(S_MK, (T & 3)*16384 + j*1024 - kq_imm(j)), dma(V_KOFF, S_K, S_SK, kq_imm(j), ("K", T))
def v_dma(T, j):
    par, up = j & 1, j >> 1; imm = par*1024 + up*128
    return setm0(S_MV, par*VPAR + (T & 3)*8192 + up*1024 - imm), dma(V_VOFF, S_V, S_SV, imm, ("V", T))
def k_soff(T): return salu(f"s_add_u32 {sr(S_SK)}, {sr(S_KV + T//8)}, {(T % 8)*16384}", R("s", S_KV + T//8), R("s", S_SK))
def v_soff(T): return salu(f"s_add_u32 {sr(S_SV)}, {sr(S_KV + T//8)}, {(T % 8)*16384}", R("s", S_KV + T//8), R("s", S_SV))
def q_dma(pc, hh):
    r, qb, tp = pc // 8, (pc >> 1) & 3, pc & 1
    j = 2*tp + hh
    return setm0(S_MQ, (pc % NQS)*2048 + hh*1024 - kq_imm(j)), dma(V_KOFF, S_Q, S_QO + 4*r + qb, kq_imm(j), ("Q", pc))
def qp_dma(qb, j):
    base, off = [(S_MQ, 0), (S_MQ1, 0), (S_MK, 32768), (S_MK, 49152)][qb]
    return setm0(base, off + 1024*j - kq_imm(j)), dma(V_KOFF, S_Q, S_QO + qb, kq_imm(j), ("P", 2*qb + (j >> 1)))
def qp_read(qb, t):
    addr, off = [(V_QADDR, 0), (V_RCP, 0), (V_RCP + 2, 32768), (V_RCP + 2, 49152)][qb]
    return dsr("v", V_O + 16*qb + 4*t, addr + (t & 1), off + 2048*(t >> 1), ("P", 2*qb + (t >> 1)))
def q_read(kap):
    return dsr("v", V_RAW + 4*(kap & 1), V_QADDR + (kap & 1), ((kap >> 1) % NQS)*2048, ("Q", kap >> 1))

def prescale_ops(src, dst_a, pk, tbase=V_T):
    ops = []
    if pk:
        for j in range(4):
            ops.append(valu(f"v_lshlrev_b32 {vr(tbase+2*j)}, 16, {vr(src+j)}", R("v", src+j), R("v", tbase+2*j)))
            ops.append(valu(f"v_and_b32 {vr(tbase+2*j+1)}, 0xffff0000, {vr(src+j)}", R("v", src+j), R("v", tbase+2*j+1)))
        for j in range(4):
            ops.append(valu(f"v_pk_mul_f32 {vr(tbase+2*j,2)}, {vr(tbase+2*j,2)}, {sr(S_C,2)}", R("v", tbase+2*j, 2) + R("s", S_C, 2), R("v", tbase+2*j, 2), "pk"))
        for j in range(4):
            ops.append(vcvt(src+j, tbase+2*j, tbase+2*j+1))
        for j in range(4):
            ops.append(valu(f"v_accvgpr_write_b32 {ar(dst_a+j)}, {vr(src+j)}", R("v", src+j), R("a", dst_a+j)))
    else:
        for j in range(4):
            t0 = tbase + 2*(j & 1)
            ops.append(valu(f"v_lshlrev_b32 {vr(t0)}, 16, {vr(src+j)}", R("v", src+j), R("v", t0)))
            ops.append(valu(f"v_and_b32 {vr(t0+1)}, 0xffff0000, {vr(src+j)}", R("v", src+j), R("v", t0+1)))
            ops.append(valu(f"v_mul_f32 {vr(t0)}, {sr(S_C)}, {vr(t0)}", R("v", t0) + R("s", S_C), R("v", t0)))
            ops.append(valu(f"v_mul_f32 {vr(t0+1)}, {sr(S_C)}, {vr(t0+1)}", R("v", t0+1) + R("s", S_C), R("v", t0+1)))
            ops.append(vcvt(src+j, t0, t0+1))
            ops.append(valu(f"v_accvgpr_write_b32 {ar(dst_a+j)}, {vr(src+j)}", R("v", src+j), R("a", dst_a+j)))
    return ops

def max_ops(x, qb, mt=V_MT):
    m, t, n = mt, mt + 1, V_NEGM + 4*qb
    ops = [valu(f"v_max3_f32 {vr(m)}, {vr(x)}, {vr(x+1)}, {vr(x+2)}", R("v", x, 3), R("v", m)),
           valu(f"v_max_f32 {vr(m)}, {vr(m)}, {vr(x+3)}", R("v", m) + R("v", x+3), R("v", m)),
           valu(f"v_mov_b32 {vr(t)}, {vr(m)}", R("v", m), R("v", t)),
           "gap2",
           valu(f"v_permlane32_swap_b32 {vr(m)}, {vr(t)}", R("v", m, 2), R("v", m, 2), "perm"),
           valu(f"v_max_f32 {vr(m)}, {vr(m)}, {vr(t)}", R("v", m, 2), R("v", m)),
           valu(f"v_mov_b32 {vr(t)}, {vr(m)}", R("v", m), R("v", t)),
           "gap2",
           valu(f"v_permlane16_swap_b32 {vr(m)}, {vr(t)}", R("v", m, 2), R("v", m, 2), "perm")]
    for j in range(4):
        ops.append(valu(f"v_min_f32_e64 {vr(n+j)}, -{vr(m)}, -{vr(t)}", R("v", m, 2), R("v", n+j)))
    for j in range(4):
        ops.append(valu(f"v_add_f32 {vr(x+j)}, {vr(n)}, {vr(x+j)}", R("v", n) + R("v", x+j), R("v", x+j)))
    return ops

def soft_ops(x, pd):
    return [vexp(x), vexp(x+1), vexp(x+2), vexp(x+3)], [vcvt(pd, x, x+1), vcvt(pd+1, x+2, x+3)]

def l_ops(r, qb, more):
    a = A_L + 4*qb
    ops = [valu(f"v_accvgpr_read_b32 {vr(V_LT)}, {ar(a)}", R("a", a), R("v", V_LT)),
           valu(f"v_accvgpr_read_b32 {vr(V_LT+1)}, {ar(a+1)}", R("a", a+1), R("v", V_LT+1)),
           valu(f"v_add_f32 {vr(V_LT)}, {vr(V_LT)}, {vr(V_LT+1)}", R("v", V_LT, 2), R("v", V_LT)),
           I(f"v_rcp_f32 {vr(V_RCP+2*qb)}, {vr(V_LT)}", "trans", R("v", V_LT), R("v", V_RCP+2*qb))]
    cm = S_CMP + 2*(qb - 1)
    dst = S_FLAG + 2*r if qb == 0 else cm
    ops.append(valu(f"v_cmp_nlt_f32_e64 {sr(dst,2)}, {vr(V_LT)}, {sr(S_THR)}", R("v", V_LT) + R("s", S_THR), R("s", dst, 2)))
    if opt.pk_epi:
        ops.append(valu(f"v_mov_b32 {vr(V_RCP+2*qb+1)}, {vr(V_RCP+2*qb)}", R("v", V_RCP+2*qb), R("v", V_RCP+2*qb+1)))
    if more:
        ops.append(valu(f"v_accvgpr_write_b32 {ar(a)}, 0", [], R("a", a)))
        ops.append(valu(f"v_accvgpr_write_b32 {ar(a+1)}, 0", [], R("a", a+1)))
    if qb:
        ops.append(salu(f"s_or_b64 {sr(S_FLAG+2*r,2)}, {sr(S_FLAG+2*r,2)}, {sr(cm,2)}", R("s", S_FLAG+2*r, 2) + R("s", cm, 2), R("s", S_FLAG+2*r, 2)))
    return ops

def epi_ops(r, u, qb, park=None):
    b = V_O + 32*u + 8*qb
    rc = V_RCP + 2*qb
    mul = []
    if opt.pk_epi:
        for j in range(0, 8, 2):
            mul.append(valu(f"v_pk_mul_f32 {vr(b+j,2)}, {vr(b+j,2)}, {vr(rc,2)}", R("v", b+j, 2) + R("v", rc, 2), R("v", b+j, 2), "pk"))
    else:
        for j in range(8):
            mul.append(valu(f"v_mul_f32 {vr(b+j)}, {vr(rc)}, {vr(b+j)}", R("v", b+j) + R("v", rc), R("v", b+j)))
    cv = [vcvt(b+j, b+2*j, b+2*j+1) for j in range(4)]
    if park is None:
        st = vstore(b, V_OOFF, S_O, S_QO + 4*r + qb, 64*u, last=(r == opt.nblocks - 1))
    else:
        cv += [valu(f"v_accvgpr_write_b32 {ar(park+j)}, {vr(b+j)}", R("v", b+j), R("a", park+j)) for j in range(4)]
        st = vstore(park, V_OOFF, S_O, S_QO + 4*r + qb, 64*u, "a")
    return mul, cv, st

def line_ops(r, v, qb):
    a, b = V_O + 64*v + 8*qb, V_O + 64*v + 32 + 8*qb
    dpp = " row_ror:8 row_mask:0xf bank_mask:0xf"
    ops = [salu(f"s_mov_b64 vcc, {sr(S_LMASK,2)}", [], [VCC])]
    ops += [valu(f"v_cndmask_b32_dpp {vr(a+4+j)}, {vr(b+j)}, {vr(a+j)}, vcc{dpp}", R("v", a+j) + R("v", b+j) + [VCC], R("v", a+4+j), "perm") for j in range(4)]
    s1 = vstore(a+4, V_OOFF2, S_O, S_QO + 4*r + qb, 128*v, last=True)
    ops2 = [salu(f"s_not_b64 vcc, {sr(S_LMASK,2)}", [], [VCC])]
    ops2 += [valu(f"v_cndmask_b32_dpp {vr(b+4+j)}, {vr(a+j)}, {vr(b+j)}, vcc{dpp}", R("v", a+j) + R("v", b+j) + [VCC], R("v", b+4+j), "perm") for j in range(4)]
    s2 = vstore(b+4, V_OOFF2, S_O, S_QO + 4*r + qb, 2048 + 128*v, last=True)
    return ops, s1, ops2, s2

stamp_n = [0]
def stamp(pro=False):
    if not opt.stamps: return []
    if pro and (opt.sper or opt.sgrp): return []
    n = stamp_n[0]; stamp_n[0] += 1
    ins = 's_memtime' if opt.scyc else 's_memrealtime'
    if opt.probe >= 0:
        assert S_STAMP + 2*n + 3 <= 95
        return [I(f"{ins} {sr(S_STAMP+2*n,2)}", "smem", [], R("s", S_STAMP+2*n, 2))]
    out = [I(f"{ins} {sr(S_STAMP+2*(n%16),2)}", "smem", [], [])]
    if n >= 12: out.append(stamp_save(n - 12))
    return out
def stamp_save(n):
    assert n < 192
    return I(f"v_writelane_b32 v{253 + n//64}, s{S_STAMP+2*(n%16)}, {n%64}", "salu")

def jit_ops():
    return [I(f"global_load_dword a{A_DUMMY}, v{V_JIT}, s[{S_PC}:{S_PC+1}]", "vload", R("v", V_JIT) + R("s", S_PC, 2), []),
            valu(f"v_add_u32 v{V_JIT}, 0x2000, v{V_JIT}", R("v", V_JIT), R("v", V_JIT))]
late_setup = []
def setup():
    c = []
    T = V_TMP
    A = lambda t: c.append(salu(t))
    def V(t, rd, wr): c.append(valu(t, rd, wr))
    c.append(salu("s_cmpk_ge_u32 s2, 0x100"))
    c.append(I("s_cbranch_scc1 L_end", "branch"))
    c.append(I("s_load_dwordx4 s[56:59], s[0:1], 0", "smem", [], R("s", 56, 4)))
    c.append(I("s_load_dwordx4 s[60:63], s[0:1], 16", "smem", [], R("s", 60, 4)))
    c += stamp()
    if opt.probe >= 0: c.append(I("s_memrealtime s[96:97]", "smem"))
    A(f"s_mov_b32 s{S_WARM}, 0")
    if opt.stubs:
        c.append(I(f"s_getpc_b64 s[{S_PC}:{S_PC+1}]", "salu", [], R("s", S_PC, 2)))
        c.append(I("L_pc:", "label"))
        if opt.head_prefetch:
            V(f"v_and_b32 v{V_LT}, 15, v0", R("v", 0), R("v", V_LT))
            V(f"v_lshrrev_b32 v{V_LT+1}, 6, v0", R("v", 0), R("v", V_LT+1))
            V(f"v_lshl_add_u32 v{V_LT}, v{V_LT+1}, 4, v{V_LT}", R("v", V_LT, 2), R("v", V_LT))
            V(f"v_lshlrev_b32 v{V_LT}, 7, v{V_LT}", R("v", V_LT), R("v", V_LT))
            c.append(I(f"global_load_dword a{A_DUMMY}, v{V_LT}, s[{S_PC}:{S_PC+1}] offset:256", "vload", R("v", V_LT), []))
        A(f"s_add_u32 s{S_PC}, s{S_PC}, L_main - L_pc")
        A(f"s_addc_u32 s{S_PC+1}, s{S_PC+1}, 0")
        if opt.line_prefetch:
            V(f"v_bfe_u32 v{V_LT}, v0, 2, 2", R("v", 0), R("v", V_LT))
            V(f"v_lshrrev_b32 v{V_LT+1}, 6, v0", R("v", 0), R("v", V_LT+1))
            V(f"v_lshl_add_u32 v{V_LT}, v{V_LT}, 2, v{V_LT+1}", R("v", V_LT, 2), R("v", V_LT))
            V(f"v_lshlrev_b32 v{V_LT}, 5, v{V_LT}", R("v", V_LT), R("v", V_LT))
            V(f"v_and_b32 v{V_LT+1}, 3, v0", R("v", 0), R("v", V_LT+1))
            V(f"v_add_u32 v{V_LT}, v{V_LT}, v{V_LT+1}", R("v", V_LT, 2), R("v", V_LT))
            V(f"v_lshlrev_b32 v{V_LT}, 7, v{V_LT}", R("v", V_LT), R("v", V_LT))
            c.append(I(f"global_load_dword a{A_DUMMY}, v{V_LT}, s[{S_PC}:{S_PC+1}]", "vload", R("v", V_LT), []))
    V(f"v_lshrrev_b32 v{T}, 6, v0", R("v", 0), R("v", T))
    V(f"v_and_b32 v{T+1}, 63, v0", R("v", 0), R("v", T+1))
    V(f"v_readfirstlane_b32 s{S_W}, v{T}", R("v", T), R("s", S_W))
    if opt.stubs and opt.stub_early: c.append(nop(4)); c.append(I("STUB_CALLS0", "label"))
    A(f"s_and_b32 s54, s2, 7")
    A(f"s_lshl_b32 s54, s54, 5")
    A(f"s_lshr_b32 s55, s2, 3")
    def blk(r):
        A(f"s_add_u32 s3, s55, {32*r}")
        A(f"s_mul_i32 s45, s3, 43691")
        A(f"s_lshr_b32 s45, s45, 17")
        A(f"s_mul_i32 s41, s45, 3")
        A(f"s_sub_u32 s3, s3, s41")
        A(f"s_add_u32 s45, s45, s54")
        A(f"s_lshl_b32 s{S_KV+r}, s45, 17")
        A(f"s_mul_i32 s45, s45, 188416")
        A(f"s_lshl_b32 s41, s3, 16")
        A(f"s_add_u32 s45, s45, s41")
        A(f"s_mul_i32 s41, s{S_W}, 12288")
        A(f"s_add_u32 s{S_QO+4*r}, s45, s41")
        A(f"s_add_u32 s{S_QO+4*r+1}, s{S_QO+4*r}, 4096")
        A(f"s_lshl_b32 s3, s3, 2")
        A(f"s_add_u32 s3, s3, s{S_W}")
        A(f"s_add_u32 s3, s3, 5")
        A(f"s_lshr_b32 s3, s3, 4")
        A(f"s_mul_i32 s41, s3, 0x70000000")
        A(f"s_add_u32 s41, s41, s{S_QO+4*r}")
        A(f"s_add_u32 s{S_QO+4*r+2}, s41, 8192")
        A(f"s_add_u32 s{S_QO+4*r+3}, s41, 12288")
    L = T + 1
    V(f"v_lshrrev_b32 v{T+6}, 3, v{L}", R("v", L), R("v", T+6))
    V(f"v_and_b32 v{T+4}, 6, v{T+6}", R("v", T+6), R("v", T+4))
    V(f"v_and_b32 v{T+5}, 7, v{L}", R("v", L), R("v", T+5))
    V(f"v_xor_b32 v{T+4}, v{T+4}, v{T+5}", R("v", T+4, 2), R("v", T+4))
    V(f"v_lshlrev_b32 v{T+2}, 8, v{T+6}", R("v", T+6), R("v", T+2))
    V(f"v_lshl_add_u32 v{T+2}, v{T+4}, 4, v{T+2}", R("v", T+4) + R("v", T+2), R("v", T+2))
    V(f"v_lshl_add_u32 v{V_KOFF}, v{T}, 12, v{T+2}", R("v", T) + R("v", T+2), R("v", V_KOFF))
    V(f"v_lshrrev_b32 v{T+3}, 4, v{L}", R("v", L), R("v", T+3))
    V(f"v_and_b32 v{T+4}, 15, v{L}", R("v", L), R("v", T+4))
    V(f"v_lshlrev_b32 v{T+2}, 8, v{T+4}", R("v", T+4), R("v", T+2))
    V(f"v_lshl_add_u32 v{T+2}, v{T+3}, 4, v{T+2}", R("v", T+3) + R("v", T+2), R("v", T+2))
    V(f"v_lshl_add_u32 v{V_OOFF}, v{T}, 12, v{T+2}", R("v", T) + R("v", T+2), R("v", V_OOFF))
    blk(0)
    A(f"s_lshl_b32 s{S_MK}, s{S_W}, 12")
    A(f"s_add_u32 s{S_MK}, s{S_MK}, {KB}")
    c.append(wait(lg=0))
    for srd, p, n in ((S_K, 58, 33554432), (S_Q, 56, 48234496), (S_V, 60, 33554432), (S_O, 62, 48234496)):
        A(f"s_mov_b32 s{srd}, s{p}")
        A(f"s_mov_b32 s{srd+1}, s{p+1}")
        A(f"s_mov_b32 s{srd+2}, {n}")
        A(f"s_mov_b32 s{srd+3}, 0x20000")
    c += stamp(True)
    A(f"s_mul_i32 s3, s{S_W}, {QW}")
    A(f"s_add_u32 s{S_MQ}, s3, {QB}")
    for t in range(4):
        m, d = qp_dma(0, t); c += [m, nop(1), d]
    c.append(k_soff(0))
    for t in range(4):
        m, d = k_dma(0, t); c += [m, nop(1), d]
    c += stamp(True)
    if opt.stubs and not opt.stub_late:
        for rd in range(1 if opt.stub_early else 0, 5): c.append(I(f"STUB_CALLS{rd}", "label"))
    c += stamp(True)
    A(f"s_lshr_b32 s3, s{S_W}, 1")
    A(f"s_mul_i32 s3, s3, {VPAR + 8 - 8192}")
    A(f"s_add_u32 s3, s3, s{S_MK}")
    A(f"s_add_u32 s{S_MQ1}, s3, {VE + 24576 - KB}")
    for t in range(4):
        m, d = qp_dma(1, t); c += [m, nop(1), d]
    c += stamp(True)
    V(f"v_and_b32 v{T+2}, 2, v{T+6}", R("v", T+6), R("v", T+2))
    V(f"v_lshlrev_b32 v{T+2}, 1, v{T+2}", R("v", T+2), R("v", T+2))
    V(f"v_xor_b32 v{T+2}, v{T+2}, v{T+5}", R("v", T+2) + R("v", T+5), R("v", T+2))
    V(f"v_and_b32 v{T+5}, 4, v{T+6}", R("v", T+6), R("v", T+5))
    V(f"v_add_u32 v{T+5}, v{T+5}, v{T+6}", R("v", T+5, 2), R("v", T+5))
    V(f"v_lshlrev_b32 v{T+5}, 8, v{T+5}", R("v", T+5), R("v", T+5))
    V(f"v_lshl_add_u32 v{T+2}, v{T+2}, 4, v{T+5}", R("v", T+2) + R("v", T+5), R("v", T+2))
    V(f"v_lshl_add_u32 v{V_VOFF}, v{T}, 12, v{T+2}", R("v", T) + R("v", T+2), R("v", V_VOFF))
    assert VE == 0
    A(f"s_lshl_b32 s{S_MV}, s{S_W}, 11")
    V(f"v_and_b32 v{T+2}, 6, v{T+4}", R("v", T+4), R("v", T+2))
    V(f"v_xor_b32 v{T+2}, v{T+2}, v{T+3}", R("v", T+2) + R("v", T+3), R("v", T+2))
    V(f"v_lshlrev_b32 v{T+2}, 4, v{T+2}", R("v", T+2), R("v", T+2))
    V(f"v_lshl_add_u32 v{V_KADDR}, v{T+4}, 7, v{T+2}", R("v", T+4) + R("v", T+2), R("v", V_KADDR))
    V(f"v_xor_b32 v{V_KADDR+1}, 64, v{V_KADDR}", R("v", V_KADDR), R("v", V_KADDR+1))
    for b in range(2):
        V(f"v_add_u32 v{V_QADDR+b}, s{S_MQ}, v{V_KADDR+b}", R("v", V_KADDR+b) + R("s", S_MQ), R("v", V_QADDR+b))
        V(f"v_add_u32 v{V_RCP+b}, s{S_MQ1}, v{V_KADDR+b}", R("v", V_KADDR+b) + R("s", S_MQ1), R("v", V_RCP+b))
        V(f"v_add_u32 v{V_RCP+2+b}, s{S_MK}, v{V_KADDR+b}", R("v", V_KADDR+b) + R("s", S_MK), R("v", V_RCP+2+b))
        V(f"v_add_u32 v{V_KADDR+b}, {KB}, v{V_KADDR+b}", R("v", V_KADDR+b), R("v", V_KADDR+b))
    V(f"v_and_b32 v{T+2}, 1, v{T+3}", R("v", T+3), R("v", T+2))
    V(f"v_mul_u32_u24 v{T+2}, {VPAR}, v{T+2}", R("v", T+2), R("v", T+2))
    V(f"v_lshrrev_b32 v{T+6}, 1, v{T+3}", R("v", T+3), R("v", T+6))
    V(f"v_lshl_add_u32 v{T+2}, v{T+6}, 9, v{T+2}", R("v", T+6) + R("v", T+2), R("v", T+2))
    V(f"v_bfe_u32 v{T+6}, v{L}, 2, 2", R("v", L), R("v", T+6))
    V(f"v_lshl_add_u32 v{T+2}, v{T+6}, 7, v{T+2}", R("v", T+6) + R("v", T+2), R("v", T+2))
    V(f"v_and_b32 v{T+5}, 3, v{L}", R("v", L), R("v", T+5))
    V(f"v_lshl_add_u32 v{T+2}, v{T+5}, 4, v{T+2}", R("v", T+5) + R("v", T+2), R("v", T+2))
    V(f"v_and_b32 v{T+6}, 2, v{T+6}", R("v", T+6), R("v", T+6))
    V(f"v_lshlrev_b32 v{T+6}, 5, v{T+6}", R("v", T+6), R("v", T+6))
    V(f"v_add_u32 v{V_VADDR}, v{T+2}, v{T+6}", R("v", T+2) + R("v", T+6), R("v", V_VADDR))
    V(f"v_xor_b32 v{T+6}, 64, v{T+6}", R("v", T+6), R("v", T+6))
    V(f"v_add_u32 v{V_VADDR+1}, v{T+2}, v{T+6}", R("v", T+2) + R("v", T+6), R("v", V_VADDR+1))
    V(f"v_and_b32 v{T+2}, 1, v{L}", R("v", L), R("v", T+2))
    V(f"v_mul_u32_u24 v{T+2}, 0xaaaa, v{T+2}", R("v", T+2), R("v", T+2))
    V(f"v_add_u32 v{T+2}, 0x4444, v{T+2}", R("v", T+2), R("v", T+2))
    V(f"v_lshl_add_u32 v{V_IDX}, v{T+2}, 16, v{T+2}", R("v", T+2), R("v", V_IDX))
    V(f"v_mov_b32 v{T+2}, 0x3f803f80", [], R("v", T+2))
    for j in range(4): V(f"v_accvgpr_write_b32 a{A_ONE+j}, v{T+2}", R("v", T+2), R("a", A_ONE+j))
    for j in range(16): V(f"v_accvgpr_write_b32 a{A_L+j}, 0", [], R("a", A_L+j))
    if opt.jit_every:
        A(f"s_lshl_b32 s3, s55, 2")
        A(f"s_add_u32 s3, s3, s{S_W}")
        A(f"s_and_b32 s3, s3, 63")
        A(f"s_lshl_b32 s3, s3, 7")
        V(f"v_mov_b32 v{V_JIT}, s3", [], R("v", V_JIT))
        for k in range(opt.jit_first): c += jit_ops()
    if opt.full_line:
        V(f"v_and_b32 v{T+2}, 8, v{L}", R("v", L), R("v", T+2))
        V(f"v_mul_u32_u24 v{T+2}, 248, v{T+2}", R("v", T+2), R("v", T+2))
        V(f"v_sub_u32 v{V_OOFF2}, v{V_OOFF}, v{T+2}", R("v", V_OOFF) + R("v", T+2), R("v", V_OOFF2))
        A(f"s_mov_b32 s{S_LMASK}, 0x00ff00ff")
        A(f"s_mov_b32 s{S_LMASK+1}, 0x00ff00ff")
    A(f"s_mov_b32 s{S_C}, {CSCALE:#x}")
    A(f"s_mov_b32 s{S_C+1}, {CSCALE:#x}")
    A(f"s_mov_b32 s{S_THR}, {0 if opt.force_slow else THR:#x}")
    for j in range(6): A(f"s_mov_b32 s{S_FLAG+j}, 0")
    c += stamp(True)
    if opt.stubs:
        for rd in range(opt.stub_n0): c.append(I(f"STUB_CALLS{rd}", "label"))
    for t in range(4):
        m, d = qp_dma(2, t); c += [m, nop(1), d]
    c += stamp(True)
    late_setup.clear()
    n0 = len(c); blk(1); blk(2); late_setup.extend(c[n0:]); del c[n0:]
    if opt.stubs:
        c.append(I("s_branch L_main", "branch"))
        c.append(I(".p2align 12", "label"))
        c.append(I("L_main:", "label"))
    return c

def flat(ops):
    out = []
    for o in ops:
        out.append(nop(2) if o == "gap2" else o)
    return out

def issue_tile(kind, Tt):
    c = [v_soff(Tt) if kind == "V" else k_soff(Tt)]
    for t in range(4): c += list((v_dma if kind == "V" else k_dma)(Tt, t))
    return c

def weave(ops, pairs, every, start=0):
    out = []; pairs = list(pairs)
    for k, o in enumerate(ops):
        if pairs and k >= start and (k - start) % every == 0:
            p = pairs.pop(0); out += p[:-1] + [o, p[-1]]
        else: out.append(o)
    assert not pairs
    return out

def prologue():
    c = []
    KT = A_Q[1]
    X = lambda qb, kb: V_O + 64 + 16*qb + 4*kb
    def chain(qb, kb):
        return [mfma("v", X(qb, kb), "a", KT + 16*kb + 4*t, "a", q_reg(0, qb, t), (("0" if kb == 0 else V_NEGM + 4*qb) if t == 0 else None)) for t in range(4)]
    def soft(qb, kb):
        e, cv = soft_ops(X(qb, kb), p_reg(0, qb, kb >> 1) + 2*(kb & 1)); return e + cv
    def B(qb): return [o for t in range(4) for o in prescale_ops(V_O + 16*qb + 4*t, q_reg(0, qb, t), True)]
    def D(qb): return [o for o in max_ops(X(qb, 0), qb, V_S) if not isinstance(o, str)]
    def dep(lst, op):
        for x in lst: x.after.append(op)
        return lst
    def paced(tile, anchors):
        so, rest = tile[0], tile[1:]
        for k in range(4): dep(rest[2*k:2*k+2], anchors[k])
        return tile
    ch = lambda qb: [x for kb in (1, 2, 3) for x in chain(qb, kb)]
    b0, b1, b2, b3 = B(0), B(1), B(2), B(3)
    c += stamp(True) + [wait(vm="auto", need=[("P", 0)])] + stamp(True) + [qp_read(0, t) for t in (0, 1)]
    c += [wait(vm="auto", need=[("P", 1)])] + [qp_read(0, t) for t in (2, 3)] + [wait(lg="auto")]
    b0w = weave(b0, [list(qp_dma(3, t)) for t in range(4)], 16, 10)
    c += b0w[:44] + [wait(lg="auto")] + b0w[44:]
    c += stamp(True)
    if opt.stubs:
        for rd in range(opt.stub_n1): c.append(I(f"STUB_CALLS{opt.stub_n0 + rd}", "label"))
    c += stamp(True)
    c += [wait(vm="auto", need=[("K", 0)]), barrier()]
    c += stamp(True)
    c += [k_read(0, kb, t, dest=KT + 16*kb + 4*t) for kb in range(4) for t in range(4)]
    c += listsched(issue_tile("K", 1)[:5])[0]
    c.append(wait(lg="auto"))
    s0 = soft(0, 0) + soft(0, 1) + soft(0, 2) + soft(0, 3)
    s1 = soft(1, 0) + soft(1, 1) + soft(1, 2) + soft(1, 3)
    s2 = soft(2, 0) + soft(2, 1) + soft(2, 2) + soft(2, 3)
    def fetch(qb, anchor, anchor2, first):
        w = wait(lg="auto"); dep(first, w)
        return dep([wait(vm="auto", need=[("P", 2*qb), ("P", 2*qb + 1)])], anchor) + [qp_read(qb, t) for t in range(4)] + dep([w], anchor2)
    c3 = ch(3); c0 = ch(0)
    k1 = issue_tile("K", 1)[5:]
    wk = wait(lg=0); d0 = D(0); c00 = chain(0, 0)
    seq = c00 + dep([wk], c00[3]) + d0 + dep(c0[:1], wk) + c0[1:] + dep(k1[:2], c0[0]) + dep(k1[2:], c0[4])
    seq += s0[:12] + fetch(1, c0[8], s0[11], b1[:8]) + b1
    seq += chain(1, 0) + s0[12:] + fetch(2, b1[70], s0[16], b2[:8]) + D(1) + ch(1)
    seq += b2 + paced(issue_tile("V", 0), [b2[0], b2[20], b2[40], b2[60]])
    seq += chain(2, 0) + s1 + fetch(3, b2[70], s1[8], b3[:8]) + D(2) + ch(2)
    seq += b3
    if getattr(opt, "first_k", 2) == 3: seq += paced(issue_tile("K", 2), [b3[0], b3[12], b3[24], b3[36]])
    if getattr(opt, "first_v", 1) == 2: seq += paced(issue_tile("V", 1), [b3[48], b3[60], b3[70], b3[79]])
    seq += chain(3, 0) + s2 + D(3) + c3
    seq += dep([wait(vm="auto", lg=0, need=[("K", 1), ("V", 0)]), barrier()], c3[0])
    seq += [v_read(0, n >> 2, (n >> 1) & 1, n & 1) for n in range(4)] + [k_read(1, 0, t) for t in range(4)]
    seq += [v_read(0, n >> 2, (n >> 1) & 1, n & 1) for n in range(4, 10)] + [k_read(1, 1, 0)]
    seq += soft(3, 0) + soft(3, 1) + soft(3, 2) + soft(3, 3)
    p2, t2 = listsched(order_fix(seq), [x for x in c[-30:] if x.kind != "label"])
    if opt.stamps:
        out = []
        for x in p2:
            if x.kind == "wait" and x.vm is not None: out += stamp(True) + [x] + stamp(True)
            else: out.append(x)
        p2 = out
    c += p2
    c.append(wait(lg="auto"))
    return c

def order_fix(seq):
    seen = set()
    for x in seq:
        assert all(id(a) in seen for a in x.after), x
        seen.add(id(x))
    return seq

VALK = ("valu", "trans", "pk", "perm")
def edge_dist(w, x, rg, kind):
    if kind == "raw":
        if w.kind in ("mfma", "smfmac"):
            need = 8 if w.kind == "mfma" else 12
            if x.kind in ("mfma", "smfmac") and rg in x.cread and rg not in x.rd:
                return 0 if (x.cread == w.wr and x.kind == w.kind) else need - 2
            return need
        if w.kind in VALK:
            if rg[0] == "s": return 5 if x.kind in ("dma", "vload", "vstore") else (2 if x.kind in VALK else 0)
            if x.kind in ("mfma", "smfmac", "perm"): return 2
            if w.kind == "trans" and x.kind in VALK and x.kind != "trans": return 1
        if w.kind == "salu" and rg[0] == "m" and x.kind == "dma": return 1
        return 0
    if kind == "waw":
        if w.kind in ("mfma", "smfmac"):
            need = 8 if w.kind == "mfma" else 12
            if x.kind in ("mfma", "smfmac"): return 0 if x.wr == w.wr else need - 2
            return need
        return 0
    if rg in w.cread and x.kind in VALK: return 3 if w.kind == "mfma" else 7
    if w.kind == "vstore" and rg in w.rd[:4]: return 2
    return 0

def listsched(ops, pre=()):
    allops = list(pre) + list(ops); n0 = len(pre); n = len(allops)
    deps = [dict() for _ in range(n)]
    lw = {}; lr = defaultdict(list); lastmem = None
    for k, x in enumerate(allops):
        def add(p, d): deps[k][p] = max(deps[k].get(p, 0), d)
        for rg in x.rd + x.cread:
            if rg in lw: add(lw[rg], edge_dist(allops[lw[rg]], x, rg, "raw"))
        for rg in x.wr:
            if rg in lw: add(lw[rg], edge_dist(allops[lw[rg]], x, rg, "waw"))
            for p in lr[rg]:
                if p != k: add(p, edge_dist(allops[p], x, rg, "war"))
        if x.kind in ("dma", "vload", "vstore", "ds", "wait", "barrier", "smem"):
            if lastmem is not None: add(lastmem, 0)
            lastmem = k
        for a in x.after: add(next(i for i, y in enumerate(allops) if y is a), 0)
        for rg in x.wr: lw[rg] = k; lr[rg] = []
        for rg in x.rd + x.cread: lr[rg].append(k)
    pos = {}; cur = 0
    for k in range(n0): pos[k] = cur; cur += allops[k].nops
    out = []; left = list(range(n0, n)); t = 0; tm = -100; prev = None
    cost = {"mfma": 8, "smfmac": 8, "trans": 8, "vstore": 12}
    while left:
        ready = [k for k in left if all(p in pos and cur - pos[p] - allops[p].nops >= d for p, d in deps[k].items())]
        pick = None
        if ready:
            mf = [k for k in ready if allops[k].kind in ("mfma", "smfmac")]
            ot = [k for k in ready if k not in mf]
            aftermf = prev is not None and prev.kind in ("mfma", "smfmac", "salu", "wait", "ds", "dma", "vstore", "barrier")
            mem = [k for k in ot if allops[k].kind in ("ds", "dma", "vstore", "vload")]
            sc = [k for k in ot if allops[k].kind in ("salu", "wait", "barrier", "smem")]
            va = [k for k in ot if k not in mem and k not in sc]
            vnp = [k for k in va if allops[k].kind != "pk" or t - tm >= 24]
            if mf and (t - tm >= 16 or not (vnp or mem or sc)): pick = mf[0]
            elif sc: pick = sc[0]
            elif mem and (aftermf or allops[mem[0]].after or not mf and not any(allops[k].kind in ("mfma", "smfmac") for k in left) or not vnp): pick = mem[0]
            elif vnp: pick = vnp[0]
            elif va: pick = va[0]
            else: pick = ready[0]
        if pick is None:
            x = nop(1); out.append(x); cur += 1; t += 4; prev = x; continue
        x = allops[pick]
        if x.kind in ("mfma", "smfmac"): t = max(t, tm + 16); tm = t
        if x.kind == "pk": t = max(t, tm + 24)
        pos[pick] = cur; cur += x.nops; t += cost.get(x.kind, 4)
        out.append(x); left.remove(pick); prev = x
    return out, t

COST = {"valu": 1, "trans": 2, "pk": 1, "perm": 1, "ds": 1, "dma": 1, "vstore": 3, "vload": 1}
class Gap:
    def __init__(s, m): s.m, s.shadow, s.mem, s.valu = m, None, [], []
    def load(s): return sum(COST[o.kind] for o in s.mem + s.valu)
    def emit(s):
        return [s.m] + ([s.shadow] if s.shadow else []) + s.mem + s.valu

NT = lambda: 8 * opt.nblocks

class Sched:
    def __init__(s):
        s.groups = []
        s.cur = defaultdict(int)
        s.gaps = []
        s.gstart = []
    def add_group(s, gaps):
        s.gstart.append(len(s.gaps)); s.groups.append(gaps); s.gaps += gaps
    def rng(s, G): return s.gstart[G], s.gstart[G] + len(s.groups[G])
    def put_valu(s, stream, G, op, mingap=0, fat=False):
        a, b = s.rng(G); lo = max(a + mingap, s.cur[stream])
        while lo >= b:
            G += 1; a, b = s.rng(G)
        pick = None
        if not fat:
            for g in range(lo, b):
                if s.gaps[g].load() + COST[op.kind] <= 2: pick = g; break
            if pick is None:
                pick = min(range(lo, b), key=lambda g: (s.gaps[g].load(), g))
        else: pick = lo
        s.gaps[pick].valu.append(op); s.cur[stream] = pick
        return pick
    def put_mem(s, stream, G, op, allowed, pre=None):
        a, b = s.rng(G)
        for gi, si in allowed:
            g = a + gi
            if g >= b or g <= s.cur[stream]: continue
            if any(o.kind in ("dma", "vstore") for o in s.gaps[g].mem): continue
            if pre is not None:
                sg = a + si
                if s.gaps[sg].shadow is not None: continue
                s.gaps[sg].shadow = pre
            s.gaps[g].mem.append(op); s.cur[stream] = g
            return g
        raise AssertionError(("no mem slot", stream, G, op))
    def put_shadow(s, G, op, lo=0, hi=None, stream=None):
        a, b = s.rng(G)
        start = a + lo
        if stream is not None: start = max(start, s.cur[stream] + 1)
        end = b if hi is None else a + hi
        g = start
        while True:
            if g >= end and hi is not None: raise AssertionError(("no shadow", G, op))
            if s.gaps[g].shadow is None and not (g + 1 in s.gstart_set or g + 1 == len(s.gaps)):
                s.gaps[g].shadow = op
                if stream is not None: s.cur[stream] = g
                return g
            g += 1

def fatten(S, G):
    g4, g5 = S.groups[G][4], S.groups[G][5]
    if [o.kind for o in g4.valu] == ["trans"] and [o.kind for o in g5.valu] == ["trans"] and not g4.mem and not g5.mem:
        g4.valu.append(g5.valu.pop()); return True
    return False

def spread(n, lo, hi):
    return [lo + (k * (hi - lo + 1)) // n for k in range(n)]

def body():
    nt = NT(); nb = opt.nblocks
    S = Sched()
    for T in range(nt):
        r, j = T // 8, T % 8
        hasqk = T + 1 < nt
        smf = {1: [0, 1], 2: [2, 3]} if j == 7 else {2: [0], 4: [1], 6: [2], 8: [3]}
        for i in range(16):
            gaps = []
            if hasqk:
                T1 = T + 1; r1 = T1 // 8; kb, qb = i >> 2, i & 3
                special = (T1 % 8 == 0 and kb == 0)
                d = p_reg(T1, qb, 1) if special else V_S + 4*(i & 1)
                for t in range(4):
                    cc = None if t else ("0" if special else V_NEGM + 4*qb)
                    gaps.append(Gap(mfma("v", d, "a", k_reg(kb, t), "a", q_reg(r1, qb, t), cc)))
            db = i >> 1
            for qb in (2*(i & 1), 2*(i & 1) + 1):
                for ks in range(2):
                    gaps.append(Gap(mfma("v", o_reg(db, qb), "a", v_reg(db, ks), "v", p_reg(T, qb, ks), "0" if (j == 0 and ks == 0) else None)))
            for qb in smf.get(i, []):
                gaps.append(Gap(smfmac(qb, p_reg(T, qb, 0))))
            S.add_group(gaps)
    S.gstart_set = set(S.gstart)
    for T in range(nt):
        hasqk = T + 1 < nt
        for i in range(16):
            G = 16*T + i; gp = S.groups[G]
            for n in (2*G + 10, 2*G + 11):
                Tv = n // 32
                if Tv < nt:
                    rem = n % 32
                    gp[0].mem.append(v_read(Tv, rem >> 2, (rem >> 1) & 1, rem & 1))
            kk = ((i + 1) >> 2) + 1; tt = (i + 1) & 3
            Tk = T + 1 if kk < 4 else T + 2
            if Tk < nt: gp[1].mem.append(k_read(Tk, kk & 3, tt))
            if i == 0: Tu, iu = T, 15
            else: Tu, iu = T + 1, i - 1
            if Tu < nt and not (T == 0 and i == 0) and not (Tu % 8 == 0 and iu < 4):
                kb, qb = iu >> 2, iu & 3
                e, cv = soft_ops(V_S + 4*(iu & 1), p_reg(Tu, qb, kb >> 1) + 2*(kb & 1))
                if hasqk:
                    for k in range(4): gp[2 + k].valu.append(e[k])
                    gp[6].valu.append(cv[0]); gp[7].valu.append(cv[1])
                else:
                    gp[0].valu += e[:1]; gp[1].valu += e[1:3]; gp[2].valu += e[3:] + cv[:1]; gp[3].valu += cv[1:]
            need = None; lg = "auto"; vm = None
            if i == 10:
                need = [x for x in (("K", T + 2), ("V", T + 1)) if x[1] < nt]
                vm = "auto" if need else None; lg = 0
            gp[-1].shadow = wait(vm=vm, lg=lg, need=need)
            if i == 11: gp[0].shadow = barrier()
    DM = [(1, 1), (6, 5)]
    for T in range(1, nt):
        lst = []
        if T + 5 < nt: lst += [k_dma(T + 5, t) for t in range(4)]; S.put_shadow(16*T + 10, k_soff(T + 5), 2, 6)
        if T + 4 < nt: lst += [v_dma(T + 4, u) for u in range(4)]; S.put_shadow(16*T + 10, v_soff(T + 4), 2, 6)
        for k, (m, d) in enumerate(lst):
            S.put_mem("kv", 16*T + 11 + k // 2, d, [DM[k & 1]], pre=m)
    extra = [("V", 1, 0), ("K", 2, 2), ("V", 2, 5), ("K", 3, 7), ("K", 4, 11), ("V", 3, 13), ("K", 5, 18), ("V", 4, 20)]
    for kind, Tt, G in extra:
        so = k_soff(Tt) if kind == "K" else v_soff(Tt)
        if G == 0: S.groups[0][0].shadow = so
        else: S.put_shadow(G - 1, so, 2, 5)
        for t in range(4):
            m, d = (k_dma if kind == "K" else v_dma)(Tt, t)
            S.put_mem("kv0", G + t // 2, d, [DM[t & 1]], pre=m)
    for o in late_setup: S.put_shadow(0, o, 0, stream="late")
    assert S.cur["late"] < S.gstart[15]
    if nb > 1:
        for k, G in enumerate((15, 15, 16, 16, 17, 17, 22)):
            m, d = q_dma(16 + k); S.put_mem("qd", G, d, DM, pre=m)
    if opt.jit_every:
        for k in range(opt.jit_first, 8):
            G = int((k - opt.jit_first) * opt.jit_every * 1.6) + opt.jit_g0
            while G % 16 in (10, 11, 12, 13, 14, 15, 0, 1): G += 1
            ld, ad = jit_ops()
            g = S.put_mem("jit", G, ld, [(6, None), (1, None), (7, None)])
            S.cur["jit"] = g; S.put_valu("jit", G, ad)
    for r in range(nb - 1):
        T = 8*r + 7
        for qb in range(4):
            G = 16*T + 1 + qb
            x = p_reg(T + 1, qb, 1)
            e, cv = soft_ops(x, p_reg(T + 1, qb, 0))
            ops = max_ops(x, qb) + e + ["gap1"] + cv
            a, b = S.rng(G)
            pos = [1, 1, 2, 2, None, 3, 3, 3, None, 4, 4, 4, 5, 5, 5, 5, 5, 6, 6, 6, 6, 7, None, 7, 7]
            pos = [1, 1, 2, None, 3, 3, 3, None, 4, 4, 4, 4, 4, 5, 5, 5, 5, 5, 6, 6, 6, None, 7, 7]
            assert len(pos) == len(ops), (len(pos), len(ops))
            for p_, o in zip(pos, ops):
                if isinstance(o, str): continue
                gp = S.groups[G][p_]
                if o.kind == "perm" and gp.shadow is None: gp.shadow = nop(1)
                gp.valu.append(o)
    tail = []; stores = []
    for r in range(nb):
        T = 8*r + 7; last = (r == nb - 1)
        for qb in range(4):
            G = 16*T + 3 + qb//2
            for o in l_ops(r, qb, not last):
                if o.kind == "salu": S.put_shadow(G + 2, o, stream="lor")
                else: S.put_valu("l", G, o)
        items = [(u, qb) for u in range(4) for qb in range(4)]
        avail = {it: 16*T + max(4*it[0] + 3 + (it[1] >> 1), 5 + (it[1] >> 1)) for it in items}
        plan = []
        if last:
            for u, qb in items: plan.append(((u, qb), 16*T + 4*u + 5 + qb, 16*T + 4*u + 6 + qb, None))
        else:
            dead = {it: 16*T + 16 + 4*it[0] + (it[1] >> 1) for it in items}
            slots = [16*T + opt.st_g0 + (opt.st_sp * n) // 10 for n in range(16)]
            left = list(items); direct = []
            for sl in slots:
                cand = [it for it in left if avail[it] + 1 <= sl and sl < dead[it]]
                if not cand: continue
                it = min(cand, key=lambda x: dead[x]); left.remove(it); direct.append((it, sl))
            used = [sl for _, sl in direct]
            rest = [sl for sl in slots if sl not in used]
            assert all(sl > max(used) for sl in rest), (slots, used)
            for it, sl in direct: plan.append((it, sl - 1, sl, None))
            busy = defaultdict(int)
            for it, sl in direct: busy[sl - 1] += 1
            for n, (it, sl) in enumerate(zip(left, rest)):
                g = min(range(avail[it], dead[it]), key=lambda x: (busy[x], -x)); busy[g] += 1
                plan.append((it, g, sl, A_PARK + 4*n))
            assert len(left) <= 10
        for (u, qb), G, Gs, park in sorted(plan, key=lambda x: x[1]):
            mul, cv, st = epi_ops(r, u, qb, park)
            if G >= 16*nt:
                tail.append((mul, cv, st)); continue
            ng = len(S.groups[G])
            if opt.pk_epi and ng >= 8 and fatten(S, G):
                S.groups[G][4].valu += mul
                S.cur["epi"] = S.gstart[G] + 5
                for o in cv: S.put_valu("epi", G, o)
                assert park is not None or S.cur["epi"] < S.gstart[G + 1]
                assert last or S.cur["epi"] < S.gstart[dead[(u, qb)]] + 4
            elif opt.pk_epi:
                S.groups[G][ng - 2].valu += mul
                S.groups[G][ng - 1].valu += cv
            else:
                S.cur["epi"] = 0
                for o in mul + cv: S.put_valu("epi", G, o)
            if Gs >= 16*nt: tail.append(([], [], st)); continue
            stores.append((Gs, st))
    for Gs, st in sorted(stores, key=lambda x: x[0]):
        nn = len(S.groups[Gs])
        S.put_mem("epist", Gs, st, [(7, None), (6, None), (1, None), (2, None)] if nn >= 8 else [(1, None), (2, None), (3, None)])
    for r in range(nb - 1):
        rd = spread(16, 16*(8*r + 1) + (10 if r == 0 else 0), 16*(8*r + 6) + 8)
        for k in range(16):
            kap = 16*(r + 1) + k; G = rd[k]
            S.put_shadow(G - 1, wait(vm="auto", need=[("Q", kap)]), 2, 7)
            S.groups[G][1].mem.append(q_read(kap))
            nxt = rd[k + 1] if k < 15 else G + 6
            ops = prescale_ops(V_RAW + 4*(kap & 1), q_reg(r + 1, k >> 2, k & 3), opt.pk_pre)
            last_g = min(nxt, G + 6)
            if opt.pk_pre:
                gf = G + 1 + (last_g - G) * 8 // 16
                for o, g in zip(ops[:8], spread(8, G + 1, max(G + 1, gf - 1))): S.put_valu("pre", g, o)
                while S.cur["pre"] >= S.gstart[gf] + 4 or not fatten(S, gf): gf += 1
                S.groups[gf][4].valu += ops[8:12]; S.cur["pre"] = S.gstart[gf] + 5
                for o, g in zip(ops[12:], [gf, gf] + spread(6, gf, max(gf, last_g))): S.put_valu("pre", g, o)
            else:
                for o, g in zip(ops, spread(len(ops), G + 1, last_g)): S.put_valu("pre", g, o)
            k2 = kap + NQS
            if k2 < 16*nb:
                g = G + 2
                while True:
                    if g % 16 in (15, 0, 1):
                        try:
                            m, d = q_dma(k2)
                            S.put_mem("qd", g, d, DM, pre=m); break
                        except AssertionError: pass
                    g += 1
    c = []
    for G, gp in enumerate(S.groups):
        if opt.sgrp:
            gs = [int(x) for x in opt.sgrp.split('_')]
            if G in gs: c += stamp()
            for g in gp:
                e = g.emit()
                if G in gs and g.shadow is not None and g.shadow.kind == "wait" and g.shadow.vm is not None:
                    e = e[:1] + stamp() + e[1:2] + stamp() + e[2:]
                c += e
            continue
        if G % 16 == 0 and ((G // 16) in [int(x) for x in opt.sper.split('_')] if opt.sper else (G // 16) % 8 in (0, 1, 7)): c += stamp()
        for g in gp: c += g.emit()
    c += stamp()
    c.append(nop(8))
    for mul, cv, st in tail: c += mul + cv + [st]
    c += stamp()
    per = [sum(max(16, 8 + 4*g.load()) for gp in S.groups[16*T:16*T+16] for g in gp) for T in range(nt)]
    stats = dict(per=per, gaps=len(S.gaps), slots=sum(g.load() for g in S.gaps),
                 est_cycles=sum(max(16, 8 + 4*g.load()) for g in S.gaps),
                 under=sum(max(0, 2 - g.load()) for g in S.gaps), over=sum(max(0, g.load() - 2) for g in S.gaps))
    return c, stats

def resolve(code):
    n = len(code)
    isds = [x.kind == "ds" for x in code]
    isvm = [x.kind in ("dma", "vload", "vstore") for x in code]
    lgw = [k for k, x in enumerate(code) if x.kind == "wait" and x.lg is not None]
    vmw = [k for k, x in enumerate(code) if x.kind == "wait" and x.vm is not None]
    def touched(x): return x.rd + x.wr + x.cread
    lastload = {}
    writer_at = [None]*n
    for k, x in enumerate(code):
        dep = set()
        for rg in touched(x):
            if rg in lastload: dep.add(lastload[rg])
        writer_at[k] = dep
        for rg in x.wr: lastload.pop(rg, None)
        if x.kind in ("ds", "vload"):
            for rg in x.wr: lastload[rg] = k
    for lst, flag, attr, kind in ((lgw, isds, "lg", "ds"), (vmw, isvm, "vm", "vload")):
        for a, w in enumerate(lst):
            x = code[w]
            if getattr(x, attr) != "auto": continue
            end = lst[a + 1] if a + 1 < len(lst) else n
            young = -1
            for k in range(w + 1, end):
                for p in writer_at[k]:
                    if code[p].kind == kind and p < w: young = max(young, p)
            if attr == "vm" and x.need:
                for k in range(w):
                    if code[k].kind == "dma" and code[k].tag in x.need: young = max(young, k)
            if young < 0: setattr(x, attr, None)
            else:
                cnt = sum(flag[young + 1:w])
                setattr(x, attr, min(cnt, 15 if attr == "lg" else 63))
    for x in code:
        if x.kind == "wait":
            parts = []
            if x.vm is not None: parts.append(f"vmcnt({x.vm})")
            if x.lg is not None: parts.append(f"lgkmcnt({x.lg})")
            x.text = "s_waitcnt " + " ".join(parts) if parts else None
    return [x for x in code if x.text is not None]

def check(code):
    errs = []
    pos = 0
    P = []
    for x in code:
        P.append(pos); pos += 0 if x.kind == "label" else x.nops
    def dist(a, b): return P[b] - P[a] - code[a].nops
    lastw = {}; lastc = {}; laststore = {}
    dsq = []; vmq = []; done = set()
    smem_pending = set()
    dma_by_tag = defaultdict(list); read_by_tag = defaultdict(list)
    done_at = {}; barriers = []
    def slot_of(tag):
        if tag[0] == "P": return [("Q", 0), ("Q", 1), tag, ("V", 3), tag, ("K", 2), tag, ("K", 3)][tag[1]]
        return (tag[0], tag[1] & 3) if tag[0] in "KV" else ("Q", tag[1] % NQS)
    shared = lambda tag: tag[0] in "KV" or tag == ("P", 3)
    slot_last = {}
    VAL = ("valu", "trans", "pk", "perm")
    for k, x in enumerate(code):
        if x.kind == "wait":
            if x.lg is not None:
                while len(dsq) > x.lg: p = dsq.pop(0); done.add(p); done_at[p] = k
                if x.lg == 0: smem_pending.clear()
            if x.vm is not None:
                while len(vmq) > x.vm: p = vmq.pop(0); done.add(p); done_at[p] = k
            continue
        if x.kind == "barrier": barriers.append(k); continue
        def E(msg, p): errs.append(f"[{k}] {x.text}  <- [{p}] {code[p].text}: {msg}")
        for rg in x.rd + x.cread + x.wr:
            p = lastw.get(rg)
            if p is None: continue
            w = code[p]; d = dist(p, k)
            isread = rg in x.rd or rg in x.cread
            if w.kind in ("ds", "vload"):
                if p not in done: E("load not waited", p)
            elif w.kind in ("mfma", "smfmac"):
                need = 8 if w.kind == "mfma" else 12
                if x.kind in ("mfma", "smfmac"):
                    if rg in x.rd:
                        if d < need: E("mfma D->A/B", p)
                    elif rg in x.cread:
                        if not (x.cread == w.wr and x.kind == w.kind) and d < need - 2: E("mfma D->C overlap", p)
                    else:
                        if d < need - 2 and x.wr != w.wr: E("mfma D->D", p)
                elif d < need: E("mfma D->valu/mem", p)
            elif w.kind in VAL:
                if rg[0] in "va":
                    if x.kind in ("mfma", "smfmac") and isread and d < 2: E("valu->mfma", p)
                    if x.kind == "perm" and isread and d < 2: E("valu->permlane", p)
                    if w.kind == "trans" and x.kind in VAL and x.kind != "trans" and isread and d < 1: E("trans->valu", p)
                    if "readfirstlane" in x.text and d < 1: E("valu->readfirstlane", p)
                if rg[0] == "s":
                    if x.kind in ("dma", "vload", "vstore") and d < 5: E("valu sgpr->vmem", p)
                    if x.kind in VAL and isread and d < 2: E("valu sgpr->valu", p)
            elif w.kind == "salu":
                if rg[0] == "m" and x.kind == "dma" and d < 1: E("m0->dma", p)
        for rg in x.wr:
            p = lastc.get(rg)
            if p is not None and x.kind in VAL and dist(p, k) < (3 if code[p].kind == "mfma" else 7): E("mfma C read -> valu write", p)
            p = laststore.get(rg)
            if p is not None and dist(p, k) < 2: E("store data WAR", p)
        if x.kind == "ds" and x.tag:
            ds = dma_by_tag[x.tag]
            if len(ds) != (2 if x.tag[0] in "QP" else 4): errs.append(f"[{k}] {x.text}: tile {x.tag} has {len(ds)} dma")
            for p in ds:
                if p not in done: E("dma not waited", p)
                elif x.tag[0] in "KV" and not any(done_at[p] < b < k for b in barriers): E("no barrier after dma wait", p)
            if slot_last.get(slot_of(x.tag)) != x.tag: errs.append(f"[{k}] {x.text}: slot holds {slot_last.get(slot_of(x.tag))} not {x.tag}")
            read_by_tag[x.tag].append(k)
        if x.kind == "dma":
            old = slot_last.get(slot_of(x.tag))
            if old is not None and old != x.tag:
                rs = read_by_tag[old]
                exp = {"K": 16, "V": 32, "Q": 2, "P": 2}[old[0]]
                if len(rs) != exp: errs.append(f"[{k}] {x.text}: overwrites {old} after {len(rs)} reads")
                for p in rs:
                    if p not in done: E("slot WAR: read not waited", p)
                    elif shared(old) and not any(done_at[p] < b < k for b in barriers): E("slot WAR: no barrier", p)
            slot_last[slot_of(x.tag)] = x.tag
            dma_by_tag[x.tag].append(k)
        if x.kind == "ds": dsq.append(k)
        if x.kind in ("dma", "vload", "vstore"):
            vmq.append(k)
            if len(vmq) > 63: errs.append(f"[{k}] more than 63 vmem in flight")
        for rg in x.wr: lastw[rg] = k
        for rg in x.cread: lastc[rg] = k
        if x.kind == "vstore":
            for rg in x.rd[:4]: laststore[rg] = k
    return errs

def slow_path():
    L = []
    A = L.append
    Q, K, SS, P, M, T, LA, VF = 128, 144, 176, 184, 188, 189, 192, 64
    VK, VL, VS, MC = 200, 201, 202, 203
    A("s_or_b64 s[54:55], s[46:47], s[48:49]")
    A("s_or_b64 s[54:55], s[54:55], s[50:51]")
    A("s_cmp_eq_u64 s[54:55], 0")
    A("s_cbranch_scc1 L_end")
    A("s_waitcnt vmcnt(0) lgkmcnt(0)")
    A(f"s_lshl_b32 s3, s{S_W}, 12")
    A(f"v_subrev_u32 v{VK}, s3, v{V_OOFF}")
    A(f"v_mbcnt_lo_u32_b32 v{T}, -1, 0")
    A(f"v_mbcnt_hi_u32_b32 v{T}, -1, v{T}")
    A(f"v_lshlrev_b32 v{VL}, 4, v{T}")
    A(f"v_lshrrev_b32 v{M}, 2, v{T}")
    A(f"v_lshlrev_b32 v{M}, 8, v{M}")
    A(f"v_and_b32 v{T}, 3, v{T}")
    A(f"v_lshl_add_u32 v{M}, v{T}, 4, v{M}")
    A(f"v_add_u32 v{VS}, s{S_MQ}, v{M}")
    A("s_mov_b32 s56, 0")
    A("L_s_item:")
    A("s_lshr_b32 s57, s56, 2")
    A("s_lshl_b32 s58, s57, 1")
    A("s_mov_b32 m0, s58")
    A("s_nop 1")
    A(f"s_movrels_b64 s[54:55], s[{S_FLAG}:{S_FLAG+1}]")
    A("s_cmp_eq_u64 s[54:55], 0")
    A("s_cbranch_scc1 L_s_next")
    A("s_mov_b32 m0, s56")
    A("s_nop 1")
    A(f"s_movrels_b32 s59, s{S_QO}")
    A("s_mov_b32 m0, s57")
    A("s_nop 1")
    A(f"s_movrels_b32 s60, s{S_KV}")
    for t in range(4): A(f"buffer_load_dwordx4 v[{Q+4*t}:{Q+4*t+3}], v{V_OOFF}, s[{S_Q}:{S_Q+3}], s59 offen offset:{64*t}")
    A(f"v_mov_b32 v{M}, 0xff800000")
    A("s_mov_b32 s61, s60")
    A("s_mov_b32 s63, 32")
    A("L_s_max:")
    for t in range(4): A(f"buffer_load_dwordx4 v[{K+4*t}:{K+4*t+3}], v{VK}, s[{S_K}:{S_K+3}], s61 offen offset:{64*t}")
    A("s_waitcnt vmcnt(0)")
    for t in range(4): A(f"v_mfma_f32_16x16x32_bf16 v[{SS}:{SS+3}], v[{K+4*t}:{K+4*t+3}], v[{Q+4*t}:{Q+4*t+3}], " + ("0" if t == 0 else f"v[{SS}:{SS+3}]"))
    A("s_nop 9")
    A(f"v_max3_f32 v{M}, v{M}, v{SS}, v{SS+1}")
    A(f"v_max3_f32 v{M}, v{M}, v{SS+2}, v{SS+3}")
    A("s_add_u32 s61, s61, 4096")
    A("s_sub_u32 s63, s63, 1")
    A("s_cmp_lg_u32 s63, 0")
    A("s_cbranch_scc1 L_s_max")
    for sw in ("32", "16"):
        A(f"v_mov_b32 v{T}, v{M}")
        A("s_nop 2")
        A(f"v_permlane{sw}_swap_b32 v{M}, v{T}")
        A("s_nop 1")
        A(f"v_max_f32 v{M}, v{M}, v{T}")
    A(f"v_mul_f32 v{MC}, s{S_C}, v{M}")
    for j in range(32): A(f"v_mov_b32 v{j}, 0")
    for j in range(4): A(f"v_mov_b32 v{LA+j}, 0")
    A("s_mov_b32 s61, s60")
    A("s_mov_b32 s63, 16")
    A("L_s_pv:")
    A(f"s_mov_b32 m0, s{S_MQ}")
    for h in range(2):
        A(f"s_add_u32 s3, s61, {4096*h}")
        for t in range(4): A(f"buffer_load_dwordx4 v[{K+16*h+4*t}:{K+16*h+4*t+3}], v{VK}, s[{S_K}:{S_K+3}], s3 offen offset:{64*t}")
        for t in range(4): A(f"buffer_load_dwordx4 v{VL}, s[{S_V}:{S_V+3}], s3 offen offset:{1024*t} lds")
        A("s_waitcnt vmcnt(0)")
        for db in range(8): A(f"ds_read_b64_tr_b16 v[{VF+4*db+2*h}:{VF+4*db+2*h+1}], v{VS} offset:{64*(db >> 1) + 8*(db & 1)}")
        A("s_waitcnt lgkmcnt(0)")
    for h in range(2):
        for t in range(4): A(f"v_mfma_f32_16x16x32_bf16 v[{SS+4*h}:{SS+4*h+3}], v[{K+16*h+4*t}:{K+16*h+4*t+3}], v[{Q+4*t}:{Q+4*t+3}], " + ("0" if t == 0 else f"v[{SS+4*h}:{SS+4*h+3}]"))
    A("s_nop 9")
    for j in range(8): A(f"v_fma_f32 v{SS+j}, v{SS+j}, s{S_C}, -v{MC}")
    for j in range(8): A(f"v_exp_f32 v{SS+j}, v{SS+j}")
    A("s_nop 1")
    for j in range(4): A(f"v_cvt_pk_bf16_f32 v{P+j}, v{SS+2*j}, v{SS+2*j+1}")
    A("s_nop 2")
    A(f"v_mfma_f32_16x16x32_bf16 v[{LA}:{LA+3}], a[{A_ONE}:{A_ONE+3}], v[{P}:{P+3}], v[{LA}:{LA+3}]")
    for db in range(8):
        o = 4*db
        A(f"v_mfma_f32_16x16x32_bf16 v[{o}:{o+3}], v[{VF+4*db}:{VF+4*db+3}], v[{P}:{P+3}], v[{o}:{o+3}]")
    A("s_nop 3")
    A("s_add_u32 s61, s61, 8192")
    A("s_sub_u32 s63, s63, 1")
    A("s_cmp_lg_u32 s63, 0")
    A("s_cbranch_scc1 L_s_pv")
    A("s_nop 9")
    A(f"v_rcp_f32 v{T}, v{LA}")
    A("s_nop 1")
    for j in range(32): A(f"v_mul_f32 v{j}, v{T}, v{j}")
    for u in range(4):
        for j in range(4): A(f"v_cvt_pk_bf16_f32 v{8*u+j}, v{8*u+2*j}, v{8*u+2*j+1}")
        A(f"buffer_store_dwordx4 v[{8*u}:{8*u+3}], v{V_OOFF}, s[{S_O}:{S_O+3}], s59 offen offset:{64*u}")
    A("s_waitcnt vmcnt(0)")
    A("L_s_next:")
    A("s_add_u32 s56, s56, 1")
    A(f"s_cmp_lt_u32 s56, {4*opt.nblocks}")
    A("s_cbranch_scc1 L_s_item")
    return L

def stamp_out():
    if not opt.stamps: return []
    if opt.probe >= 0:
        n = stamp_n[0]
        ins = 's_memtime' if opt.scyc else 's_memrealtime'
        if opt.pavg:
            spin = lambda n: [f"L_spin{n}:", "s_sleep 2", "s_memrealtime s[54:55]", "s_waitcnt lgkmcnt(0)", "s_sub_u32 s54, s54, s96",
                              "s_cmp_lt_u32 s54, s3", f"s_cbranch_scc1 L_spin{n}"]
            return (["s_waitcnt vmcnt(0)", f"{ins} s[{S_STAMP+2*n}:{S_STAMP+2*n+1}]", "s_load_dwordx2 s[56:57], s[0:1], 32", "s_waitcnt lgkmcnt(0)",
                    "s_mov_b32 s58, 256", "s_mov_b32 s59, 0x20000",
                    f"s_sub_u32 s3, s{S_STAMP+2*opt.probe}, s{S_STAMP+2*opt.probe0}", "v_mov_b32 v2, s3", "v_mov_b32 v1, 0",
                    "s_mov_b64 exec, 1", "buffer_atomic_add v2, v1, s[56:59], 0 offen", "s_waitcnt vmcnt(0)", "s_mov_b64 exec, -1", "s_mov_b32 s3, 10000"] + spin(0) +
                    [f"s_add_u32 s3, s2, s{S_W}", "s_cmp_lg_u32 s3, 0", "s_cbranch_scc1 L_nospin",
                     "buffer_load_dword v2, v1, s[56:59], 0 offen sc0 sc1", "s_waitcnt vmcnt(0)", "v_readfirstlane_b32 s3, v2", "s_nop 3",
                     f"s_lshr_b32 s3, s3, {11 if opt.scyc else 8}", "s_add_u32 s3, s3, 10000"] + spin(1) + ["L_nospin:"])
        return ["s_waitcnt vmcnt(0)", f"{ins} s[{S_STAMP+2*n}:{S_STAMP+2*n+1}]", "s_waitcnt lgkmcnt(0)",
                f"s_sub_u32 s3, s{S_STAMP+2*opt.probe}, s{S_STAMP+2*opt.probe0}", "s_lshr_b32 s3, s3, 1" if opt.scyc else "s_lshl_b32 s3, s3, 2", "s_add_u32 s3, s3, 10000",
                "L_spin:", "s_sleep 2", "s_memrealtime s[56:57]", "s_waitcnt lgkmcnt(0)", f"s_sub_u32 s56, s56, s96",
                "s_cmp_lt_u32 s56, s3", "s_cbranch_scc1 L_spin"]
    L = ["s_waitcnt vmcnt(0)"] + [x.text for x in stamp()] + ["s_load_dwordx2 s[56:57], s[0:1], 40", "s_waitcnt lgkmcnt(0)"]
    n = stamp_n[0]
    L += [stamp_save(k).text for k in range(max(0, n - 12), n)]
    L += ["s_mov_b32 s58, 0x1000000", "s_mov_b32 s59, 0x20000", "s_lshl_b32 s3, s2, 2", f"s_add_u32 s3, s3, s{S_W}", "s_lshl_b32 s3, s3, 10",
          "v_mbcnt_lo_u32_b32 v1, -1, 0", "v_mbcnt_hi_u32_b32 v1, -1, v1", "v_lshl_add_u32 v1, v1, 2, s3", f"v_mov_b32 v2, {n}",
          "buffer_store_dword v2, v1, s[56:59], 0 offen offset:768"]
    for k in range(3): L.append(f"buffer_store_dword v{253+k}, v1, s[56:59], 0 offen offset:{256*k}")
    L += ["s_getpc_b64 s[60:61]", "L_pc2:", "s_load_dwordx2 s[56:57], s[0:1], 32", "s_waitcnt lgkmcnt(0)", "s_mov_b32 s58, 256",
          f"s_sub_u32 s60, s60, L_pc2 - {NAME}", "s_subb_u32 s61, s61, 0", "v_mov_b32 v2, s60", "v_mov_b32 v3, s61", "v_mov_b32 v1, 0",
          "buffer_store_dwordx2 v[2:3], v1, s[56:59], 0 offen"]
    L += ["s_waitcnt vmcnt(0)"]
    return L

HEADER = """; Attention forward, B8 H32 Sq736 Sk512 D128, bf16 in/out.
; q(8,32,736,128) k,v(8,32,512,128) out(8,32,736,128); kernarg: q,k,v,out,debug,ws pointers.
; 256 persistent workgroups x 4 waves (one wave per SIMD, 512 registers); each does three (head, 256-row) blocks.
; S^T = K Q^T and O^T = V^T P^T with 16x16x32 bf16 MFMA; K/V tiles (64 keys) stream through a 4-slot LDS ring by LDS-DMA.
; Softmax shift: per row, the maximum over the first 16 keys stands in for the row maximum (softmax is shift invariant);
; a run-time check on every row sum (must stay below 2^30, NaN fails too) sends the block to a fallback that
; recomputes it with the true row maximum.
; @launch grid=(256,1,1) block=(256,1,1) lds=%d
""" % LDS_BYTES

def sizes(code):
    import subprocess, re, tempfile, os
    texts = sorted({x.text for x in code if x.kind not in ("label", "branch") and "L_" not in x.text and "NSTUBS" not in x.text})
    d = tempfile.mkdtemp()
    open(d + "/a.s", "w").write('.amdgcn_target "amdgcn-amd-amdhsa--gfx950"\n.text\n' + "\n".join(texts) + "\ns_endpgm\n")
    subprocess.run(["clang", "-x", "assembler", "-target", "amdgcn-amd-amdhsa", "-mcpu=gfx950", "-c", d + "/a.s", "-o", d + "/a.o"], check=True)
    o = subprocess.run(["llvm-objdump", "-d", "--mcpu=gfx950", d + "/a.o"], capture_output=True, text=True).stdout
    ad = [int(m.group(1), 16) for m in re.finditer(r"// ([0-9A-F]{12}):", o)]
    assert len(ad) == len(texts) + 1
    return {t: ad[i+1] - ad[i] for i, t in enumerate(texts)}

def add_stubs(code):
    opt.nstub_rounds = opt.stub_n0 + opt.stub_n1
    sz = sizes(code)
    k0 = next(i for i, x in enumerate(code) if x.text == "L_main:")
    out = code[:k0+1] + [I('L_stub0:', 'label'), salu(f's_cmp_eq_u32 s{S_WARM}, 1'), I('s_cbranch_scc1 L_ret0', 'branch')]; pos = 8; n = 1; nxt = 4096
    body = code[k0+1:]
    for i, x in enumerate(body):
        if x.kind != "label" and pos >= nxt:
            if out[-1].kind in ("mfma", "smfmac") or pos + sz.get(x.text, 4) + 8 > nxt + 64 - 8:
                if n < 4*opt.nstub_rounds:
                    out += [I(f"L_stub{n}:", "label"), salu(f"s_cmp_eq_u32 s{S_WARM}, 1"), I(f"s_cbranch_scc1 L_ret{n}", "branch")]
                    pos += 8
                n += 1; nxt += 4096
        out.append(x); pos += (40 if x.text.startswith("STUB_CALLS") else 0) if x.kind == "label" else sz.get(x.text, 4)
    for x in out: x.text = x.text.replace("NSTUBS", str(n - 1))
    res = []; used = set()
    for x in out:
        if x.text.startswith("STUB_CALLS"):
            rd = int(x.text[10:])
            if rd >= opt.nstub_rounds: continue
            calls = [salu(f"s_mov_b32 s{S_WARM}, 1")]
            for w in range(4):
                k = 4*rd + w
                if k >= n: continue
                calls += [salu(f"s_cmp_eq_u32 s{S_W}, {w}"), I(f"s_cbranch_scc1 L_stub{k}", "branch")]; used.add(k)
            calls += [I(f"L_ret{rd}:", "label"), salu(f"s_mov_b32 s{S_WARM}, 0")]
            res += calls
        else: res.append(x)
    out = []
    for x in res:
        if x.text.startswith("s_cbranch_scc1 L_ret"):
            k = int(x.text.split("L_ret")[1])
            x.text = f"s_cbranch_scc1 L_ret{k // 4}" if k in used else "s_nop 0"
        out.append(x)
    return out

def generate():
    stamp_n[0] = 0
    main, stats = None, None
    s = setup(); p = prologue(); main, stats = body()
    code = resolve(s + p + main)
    if opt.stubs: code = add_stubs(code)
    errs = check(code)
    if opt.abl:
        k0 = len(s) + len(p) + 60
        def keep(k, x):
            if k < k0: return True
            a = opt.abl
            if 'd' in a and x.kind == "dma" and x.tag[0] in "KV": return False
            if 'q' in a and x.kind == "dma" and x.tag[0] == "Q": return False
            if 'r' in a and x.kind == "ds": return False
            if 'o' in a and x.kind == "vstore": return False
            if 's' in a and x.kind == "smfmac": return False
            if 'e' in a and x.kind == "trans": return False
            if 'c' in a and x.text.startswith("v_cvt_pk"): return False
            if 'p' in a and (x.kind == "pk" or x.text.startswith(("v_lshlrev_b32", "v_and_b32", "v_accvgpr_write"))): return False
            if 'b' in a and x.kind == "barrier": return False
            return True
        code = [x for k, x in enumerate(code) if keep(k, x)]
    lines = [x.text if x.kind == "label" else "  " + x.text for x in code]
    lines += [x if x.endswith(":") else "  " + x for x in stamp_out() + ([] if opt.abl else slow_path())]
    nbytes_guess = "(((L_end - L_pc) >> 10) << 10) - 1024"
    txt = HEADER + f""".amdgcn_target "amdgcn-amd-amdhsa--gfx950"
.text
.globl {NAME}
.p2align 8
.type {NAME},@function
{NAME}:
""" + "\n".join(lines).replace("CODE_LAST_KIB", nbytes_guess) + f"""
L_end:
  s_endpgm
.if L_end - L_main < 65536
  .fill (65536 - (L_end - L_main)) / 4, 4, 0xbf810000
.endif
.section .rodata,"a"
.p2align 6
.amdhsa_kernel {NAME}
  .amdhsa_next_free_vgpr 512
  .amdhsa_next_free_sgpr 102
  .amdhsa_accum_offset 256
  .amdhsa_group_segment_fixed_size 0
  .amdhsa_kernarg_size 48
  .amdhsa_user_sgpr_count 2
  .amdhsa_user_sgpr_kernarg_segment_ptr 1
  .amdhsa_system_sgpr_workgroup_id_x 1
  .amdhsa_float_denorm_mode_32 3
.end_amdhsa_kernel
"""
    return txt, errs, stats

if __name__ == "__main__":
    out = sys.argv[1]
    for a in sys.argv[2:]:
        k, v = a.split("="); t = type(getattr(opt, k)); setattr(opt, k, v if t is str else t(int(v)))
    txt, errs, stats = generate()
    for e in errs[:40]: print("HAZARD", e)
    print(len(errs), "hazards;", stats, len(txt), "chars")
    open(out, "w").write(txt)
    sys.exit(1 if errs else 0)
```

```python
import sys, heapq
from collections import defaultdict
import gen
from gen import *

opt.tail_k = 2
opt.bar_every = 1
opt.vm_sp = 8
opt.st_gap = 32
opt.vm_lat = 120
opt.ld_lat = 9
opt.pk_pre = True
opt.bar_pos = 88
opt.pre_start = 16
opt.dbg_sched = 0
opt.vm_burst = 1
opt.q_ahead = 400
opt.tail_st_gap = 14

MEMK = ("ds", "dma", "vstore", "vload")
VMK = ("dma", "vstore", "vload")
SCK = ("salu", "wait", "barrier")
COST2 = {"valu": 1, "trans": 2, "pk": 1, "perm": 1, "ds": 1, "dma": 1, "vstore": 3, "vload": 1}
BIG = 10**9

class Node:
    __slots__ = ("i", "m", "pred", "succ", "est", "dl", "pin", "gap", "pos", "left", "burst")
    def __init__(s, i, m=None):
        s.i, s.m, s.pred, s.succ, s.est, s.dl, s.pin, s.gap, s.pos, s.left, s.burst = i, m, {}, [], 0, BIG, None, None, None, 0, None

class Prog:
    def __init__(s):
        s.M = []; s.F = []; s.node = {}
        s.lw = {}; s.lr = defaultdict(list)
    def edge(s, p, x, dist=0, lat=0):
        if p is x: return
        d, l = x.pred.get(p, (0, 0))
        if p not in x.pred: p.succ.append(x)
        x.pred[p] = (max(d, dist), max(l, lat))
    def add(s, ins, est=0, dl=BIG, pin=None):
        ism = ins.kind in ("mfma", "smfmac")
        x = Node(ins, len(s.M) if ism else None)
        x.est, x.dl, x.pin = est, dl, pin
        if pin is not None: x.est = x.dl = pin
        for rg in ins.rd + ins.cread:
            p = s.lw.get(rg)
            if p: s.dep(p, x, rg, "raw")
        for rg in ins.wr:
            p = s.lw.get(rg)
            if p: s.dep(p, x, rg, "waw")
            for p in s.lr[rg]: s.dep(p, x, rg, "war")
        for rg in ins.wr: s.lw[rg] = x; s.lr[rg] = []
        for rg in ins.rd + ins.cread: s.lr[rg].append(x)
        (s.M if ism else s.F).append(x); s.node[id(ins)] = x
        return x
    def dep(s, p, x, rg, kind):
        d = edge_dist(p.i, x.i, rg, kind)
        lat = 0
        if p.i.kind == "ds" and kind != "war": lat = opt.ld_lat
        elif p.m is None and x.m is not None: lat = 2 if d else 1
        elif p.m is None and (d or (x.i.kind in MEMK + SCK and p.i.kind in VALK)): lat = 1
        s.edge(p, x, d, lat)

def phases():
    nt = NT(); A4 = (0, 1, 2, 3); A, B = (0, 1), (2, 3)
    k = opt.tail_k
    ph = [((T + 1, A4), (T, A4)) for T in range(nt - 1 - k)]
    if k == 0: return ph + [(None, (nt - 1, A4))]
    seq = [(T, A) for T in range(nt - k, nt)] + [(T, B) for T in range(nt - k, nt)]
    prev = (nt - k - 1, A4)
    for x in seq: ph.append((x, prev)); prev = x
    return ph + [(None, prev)]

def body2():
    nt = NT(); nb = opt.nblocks
    P = Prog()
    ph = phases()
    kcount = [0]; vcount = [0]
    reads = defaultdict(list)
    phase_start = []; group_start = []
    un = [0]
    done_db = defaultdict(set)
    items = []
    lnodes = {}
    tailitems = []
    pre_at = {8*r + 0: r for r in range(nb - 1)}
    pre_nodes = {}
    first_kset = True; first_vsets = 0

    def kset(T, kb):
        buf = kcount[0] & 1; kcount[0] += 1
        for t in range(4):
            if T == 1 and (kb == 0 or (kb == 1 and t == 0)): continue
            ins = k_read(T, kb, t, dest=A_K + 16*buf + 4*t)
            reads[("K", T)].append(P.add(ins))
        return A_K + 16*buf
    def vset(T, db):
        buf = vcount[0] & 3; vcount[0] += 1
        u, p = db >> 1, db & 1
        for ks in range(2):
            for hf in range(2):
                if T == 0 and 4*db + 2*ks + hf < 10: continue
                ins = v_read(T, db, ks, hf, dest=A_V + 8*buf + 4*ks + 2*hf)
                reads[("V", T)].append(P.add(ins))
        return A_V + 8*buf

    for pi, (qk, pv) in enumerate(ph):
        phase_start.append(len(P.M))
        if pv and pv[0] in pre_at and pv[1][0] == 0 and pv[0] not in pre_nodes:
            r = pre_at[pv[0]]; lst = []
            for k in range(16):
                kap = 16*(r + 1) + k
                if not kap & 1: w = P.add(wait(vm="auto", need=[("Q", kap >> 1)]))
                rd = P.add(q_read(kap)); P.edge(w, rd)
                ops = [P.add(o) for o in prescale_ops(V_RAW + 4*(kap & 1), q_reg(r + 1, k >> 2, k & 3), opt.pk_pre)]
                if opt.pk_pre:
                    for o in ops[8:12]: o.burst = ops[8:12]
                lst.append((kap, w, rd, ops))
            pre_nodes[pv[0]] = lst
        units = [(qk[0], kb, qb) for kb in range(4) for qb in qk[1]] if qk else []
        pairs = [(pv[0], db, pv[1][j:j+2]) for db in range(8) for j in range(0, len(pv[1]), 2)] if pv else []
        ns = max(len(units), len(pairs))
        smf = {}
        if pv:
            early = pv[0] % 8 == 7
            for n, qb in enumerate(pv[1]):
                smf.setdefault((1 + n // 2) if early else (ns // 8) * (1 + n * (8 // len(pv[1])) // 2 + (0 if len(pv[1]) == 4 else 1)), []).append(qb)
        iu = ip = 0; kb_cur = db_cur = None
        for s_ in range(ns):
            group_start.append(len(P.M))
            if iu < len(units) and iu * ns <= s_ * len(units):
                T1, kb, qb = units[iu]; iu += 1
                if kb != kb_cur: kreg = kset(T1, kb); kb_cur = kb
                special = T1 % 8 == 0 and kb == 0
                d = p_reg(T1, qb, 1) if special else V_S + 4*(un[0] & 1)
                un[0] += 1
                for t in range(4):
                    cc = None if t else ("0" if special else V_NEGM + 4*qb)
                    P.add(mfma("v", d, "a", kreg + 4*t, "a", q_reg(T1 // 8, qb, t), cc))
                if special:
                    for o in max_ops(d, qb):
                        if not isinstance(o, str): P.add(o)
                e, cv = soft_ops(d, p_reg(T1, qb, kb >> 1) + 2*(kb & 1))
                for o in e + cv: P.add(o)
            if ip < len(pairs) and ip * ns <= s_ * len(pairs):
                T0, db, qs = pairs[ip]; ip += 1
                if db != db_cur: vreg = vset(T0, db); db_cur = db
                for qb in qs:
                    for ks in range(2):
                        last = P.add(mfma("v", o_reg(db, qb), "a", vreg + 4*ks, "v", p_reg(T0, qb, ks), "0" if (T0 % 8 == 0 and ks == 0) else None))
                    if T0 % 8 == 7 and db & 1: items.append((T0 // 8, db >> 1, qb, last))
            for qb in smf.get(s_, []):
                P.add(smfmac(qb, p_reg(pv[0], qb, 0)))
                if pv[0] % 8 == 7:
                    r = pv[0] // 8
                    lnodes[(r, qb)] = [P.add(o) for o in l_ops(r, qb, r < nb - 1)]
            while items:
                r, u, qb, last = items.pop(0)
                tailitems.append((r, u, qb, last, None))
                tailitems[-1] = (r, u, qb, last, add_item(P, r, u, qb, last))
    n = len(P.M)
    gs = group_start
    full = lambda T: phase_start[T]
    bars = []
    ps = phase_start + [n]
    bpos = [ps[i] + (ps[i+1] - ps[i]) * opt.bar_pos // 132 for i in range(len(ph))]
    firstuse = {tg: min(y.m for x in lst for y in x.succ if y.m is not None) for tg, lst in reads.items() if lst}
    unpub = [("K", x) for x in range(2, nt)] + [("V", x) for x in range(1, nt)]
    enabled = {("K", x) for x in range(5)} | {("V", x) for x in range(4)}
    enable = {}; freeK = 0; freeV = -1
    blist = list(range(len(ph))) if opt.bar_every == 1 else [0] + list(range(1, nt - 4, 2)) + list(range(nt - 4, len(ph)))
    for bi, pi in enumerate(blist):
        if not unpub: break
        g = bpos[pi]
        nxt = bpos[blist[bi + 1]] if bi + 1 < len(blist) else n
        if all(tg in enabled for tg in unpub) and pi >= nt - 6: pub = list(unpub)
        else: pub = [tg for tg in unpub if firstuse[tg] - opt.ld_lat - 30 < nxt]
        assert all(tg in enabled for tg in pub), (pi, pub)
        unpub = [tg for tg in unpub if tg not in pub]
        free = []
        if pi <= nt - 2 - opt.tail_k:
            free = [("K", x) for x in range(freeK + 1, pi + 2)] + [("V", x) for x in range(freeV + 1, pi + 1)]
            freeK, freeV = pi + 1, pi
        free = [tg for tg in free if tg[1] + 4 < nt]
        w = P.add(wait(vm="auto", lg="bar", need=pub), pin=g - 1)
        b = P.add(barrier(), pin=g); P.edge(w, b, 0, 1)
        w.burst = [x for tg in free for x in reads[tg]]
        for tg in free:
            for x in reads[tg]: x.dl = min(x.dl, g - 1 - 7)
            enable[(tg[0], tg[1] + 4)] = b; enabled.add((tg[0], tg[1] + 4))
        for tg in pub:
            for x in reads[tg]: P.edge(b, x)
        bars.append((g, w, pub))
    assert not unpub
    pubgap = {tg: g for g, w, pub in bars for tg in pub}
    pubw = {tg: w for g, w, pub in bars for tg in pub}
    qplan = {}
    for T0, lst in pre_nodes.items():
        lo = gs[16*T0 + opt.pre_start + (10 if T0 == 0 else 0)]; hi = gs[16*(T0 + 6) + 8]
        for k, (kap, w, rd, ops) in enumerate(lst):
            a = lo + (hi - lo) * k // 16; b = lo + (hi - lo) * (k + 1) // 16
            qplan[kap] = a
            if not kap & 1: w.est = a - 8; w.dl = a - 1
            rd.est = a; rd.dl = a + 4
            for j, o in enumerate(ops): o.dl = min(o.dl, a + 4 + opt.ld_lat + (b - a) * (j + 1) // len(ops))
    jobs = []
    for kind, first in (("K", opt.first_k), ("V", opt.first_v)):
        for T in range(first, nt):
            b = enable.get((kind, T))
            est = b.pin if b else 0
            for t in range(4): jobs.append([est, pubgap[(kind, T)] - opt.vm_lat - 4*(3 - t) - (32 if pubgap.get((kind, T + 1)) == pubgap[(kind, T)] else 0), kind, T, t])
    for pc in range(8, 8*nb):
        est = qplan[2*(pc - NQS) + 1] + 4 + opt.ld_lat + 10 if pc - NQS >= 8 else 110
        est = max(est, qplan[2*pc] - opt.q_ahead)
        for hh in range(2): jobs.append([est, qplan[2*pc] - 8 - opt.vm_lat - 4*(1 - hh), "Q", pc, hh])
    order = []; t = 0
    jobs.sort()
    pend = list(jobs)
    while pend:
        av = [j for j in pend if j[0] <= t]
        if not av: t = min(j[0] for j in pend); continue
        j = min(av, key=lambda j: (j[1], j[2], j[3], j[4])); pend.remove(j); order.append(j); t += (opt.vm_sp + 1 if j[1] > t else 2)
    late = [P.add(o, dl=100) for o in gen.late_setup]
    for a, b in zip(late, late[1:]): P.edge(a, b, 0, 1)
    qfirst = {kap: ops[0] for lst in pre_nodes.values() for kap, w, rd, ops in lst}
    qwait = {kap: w for lst in pre_nodes.values() for kap, w, rd, ops in lst}
    for est, dl, kind, T, t in order:
        if kind == "Q":
            m, d = q_dma(T, t)
            mn = P.add(m); dn = P.add(d, est=est, dl=max(dl, est + 16 + 4*t))
            if 2*(T - NQS) + 1 in qfirst: P.edge(qfirst[2*(T - NQS) + 1], dn, 0, 1)
            P.edge(late[-1], dn); P.edge(dn, qwait[2*T], 0, 1)
        else:
            if t == 0:
                so = P.add(k_soff(T) if kind == "K" else v_soff(T))
                if T >= 8: P.edge(late[-1], so)
            m, d = (k_dma if kind == "K" else v_dma)(T, t)
            mn = P.add(m); dn = P.add(d, est=est, dl=max(dl, est + 16 + 4*t))
            b = enable.get((kind, T))
            if b: P.edge(b, dn)
            P.edge(dn, pubw[(kind, T)], 0, 1)
    if opt.jit_every:
        for k in range(opt.jit_first, 8):
            g = gs[int((k - opt.jit_first) * opt.jit_every * 1.6) + opt.jit_g0]
            ld, ad = jit_ops()
            P.add(ld, est=g, dl=g + 60); P.add(ad, est=g, dl=g + 100)
    plan_stores(P, tailitems, phase_start, gs)
    return schedule(P, phase_start, gs)

def add_item(P, r, u, qb, last):
    mul, cv, st = epi_ops(r, u, qb)
    mn = [P.add(o) for o in mul]
    if opt.pk_epi:
        for o in mn: o.burst = mn
    cn = [P.add(o) for o in cv]
    last_block = r == opt.nblocks - 1
    if last_block and opt.full_line:
        if not u & 1:
            _pp[("half", qb)] = (mn, cn); return None
        o1, s1, o2, s2 = line_ops(r, u >> 1, qb)
        x1 = [P.add(o) for o in o1]; sn1 = P.add(s1); x2 = [P.add(o) for o in o2]; sn2 = P.add(s2)
        sn1.burst = (_pp[("half", qb)], (mn, cn), x1, x2, sn2)
        return sn1
    park = None if last_block else park_plan(r).get((u, qb))
    if isinstance(park, tuple): park = A_Q[r & 1] + 4*park[1]
    if park is None: sn = P.add(st)
    else:
        b = V_O + 32*u + 8*qb
        for j in range(4): P.add(valu(f"v_accvgpr_write_b32 {ar(park+j)}, {vr(b+j)}", R("v", b+j), R("a", park+j)))
        sn = P.add(vstore(park, V_OOFF, S_O, S_QO + 4*r + qb, 64*u, "a"))
    sn.burst = (mn, cn)
    return sn

_pp = {}
def park_plan(r):
    if "plan" not in _pp:
        sp = opt.st_gap / 8.25
        items = [(u, qb) for u in range(4) for qb in range(4)]
        avail = {it: max(4*it[0] + 3 + (it[1] >> 1), 5) + 1.5 for it in items}
        dead = {it: 16 + 4*it[0] + (it[1] >> 1) - 0.5 for it in items}
        left = list(items); t = 6.5; slots = {}
        while True:
            cand = [it for it in left if avail[it] <= t < dead[it]]
            if cand:
                it = min(cand, key=lambda x: dead[x]); left.remove(it); slots[it] = t
            elif not any(t < dead[it] for it in left): break
            t += sp
        for it in left: slots[it] = t; t += sp
        nq = max(0, len(left) - 10)
        _pp["plan"] = {it: (("q", 16 - nq + n) if n < nq else A_PARK + 4*(n - nq)) for n, it in enumerate(left)}
        _pp["slot"] = slots
    return _pp["plan"]

def plan_stores(P, tailitems, phase_start, gs):
    nb = opt.nblocks
    for r, u, qb, last, sn in tailitems:
        if r < nb - 1:
            park_plan(r)
            t = _pp["slot"][(u, qb)]
            g = gs[16*(8*r + 7) + int(t)] + int(8*(t - int(t)))
            sn.est = g; sn.dl = min(sn.dl, g + (12 if opt.vm_burst == 1 else 40))
    n = len(P.M); tv = ts = 0
    for r, u, qb, last, sn in sorted([x for x in tailitems if x[0] == nb - 1 and x[4]], key=lambda x: x[3].m):
        if opt.full_line:
            h0, h1, x1, x2, sn2 = sn.burst
            tv = max(last.m + 8, tv + 8)
            for (mn, cn), t0 in ((h0, tv - 4), (h1, tv)):
                if t0 + 3 < n:
                    for o in mn: o.dl = t0
                    for j, o in enumerate(cn): o.dl = t0 + 1 + j // 2
            for xs, st, t0 in ((x1, sn, tv + 4), (x2, sn2, tv + 6)):
                if t0 + 2 < n:
                    for o in xs: o.dl = t0
                ts = max(t0 + 2, ts + opt.tail_st_gap)
                if ts < n: st.dl = ts
            continue
        mn, cn = sn.burst
        tv = max(last.m + 8, tv + 4); ts = max(tv + 5, ts + opt.tail_st_gap)
        if tv + 3 < n:
            for o in mn: o.dl = tv
            for j, o in enumerate(cn): o.dl = tv + 1 + j // 2
        if ts < n: sn.dl = ts

def schedule(P, phase_start, gs):
    M, F = P.M, P.F; n = len(M)
    indeg = {}
    for x in F: indeg[x] = sum(1 for y in x.succ if y.m is None)
    stack = [x for x in F if indeg[x] == 0]; seen = 0
    while stack:
        x = stack.pop(); seen += 1
        for y in x.succ:
            d, l = y.pred[x]
            lim = (y.m - max(l, 1)) if y.m is not None else (y.dl - l if y.dl < BIG else BIG)
            if x.pin is None: x.dl = min(x.dl, lim)
        for p in x.pred:
            if p.m is None:
                indeg[p] -= 1
                if indeg[p] == 0: stack.append(p)
    assert seen == len(F), "cycle"
    for k, x in enumerate(F): x.left = len(x.pred); x.pos = None
    seq = {x: k for k, x in enumerate(F)}
    pool = [x for x in F if x.left == 0]
    gaps = []; pos = [0]; out_nops = 0
    lastvm = -99; lastst = -99; late = []; bst = [-99, 0]
    def placed(x, g):
        x.gap = g; x.pos = pos[0]; pos[0] += x.i.nops
        for y in x.succ:
            if y.m is None:
                y.left -= 1
                if y.left == 0: pool.append(y)
    def short(x, at):
        return max([d - (at - p.pos - p.i.nops) for p, (d, l) in x.pred.items()] + [0])
    def latok(x, g):
        for p, (d, l) in x.pred.items():
            if p.m is None and p.gap + (l if p.i.kind != "ds" or x.i.kind in VALK else 0) > g: return False
        return True
    for g in range(n + 1):
        final = g == n
        cur = []
        if not final:
            m = M[g]
            for p in m.pred:
                assert p.pos is not None, ("unplaced predecessor", g, m.i, p.i, p.dl, p.est)
            s_ = short(m, pos[0])
            if s_: cur.append(nop(s_)); pos[0] += s_; out_nops += s_
            placed(m, g); cur.append(m.i)
        gp = dict(pre=cur, shadow=[], mem=[], valu=[]); gaps.append(gp)
        load = 0
        def emit(x, where):
            nonlocal load, lastvm, lastst, out_nops
            pool.remove(x)
            s_ = short(x, pos[0])
            if s_: gp[where].append(nop(s_)); pos[0] += s_; load += s_; out_nops += s_
            if x.dl < g: late.append((g, x.dl, x.i.text))
            placed(x, g); gp[where].append(x.i)
            if x.i.kind in VMK:
                if g - lastvm <= 4 and bst[1] < opt.vm_burst: bst[1] += 1
                else: bst[0] = g; bst[1] = 1
                lastvm = g
            if x.i.kind == "vstore": lastst = g
            load += COST2.get(x.i.kind, 0)
        key = lambda x: (x.dl, seq[x])
        if final:
            while pool:
                c = [x for x in pool if short(x, pos[0]) == 0] or pool
                emit(min(c, key=lambda x: seq[x]), "valu")
            break
        sc = sorted([x for x in pool if x.i.kind in SCK and x.est <= g and (latok(x, g) or x.dl <= g)], key=key)
        m0s = [x for x in sc if "m0" in x.i.text]
        if sc and sc[0].dl > g + 3 and m0s: emit(m0s[0], "shadow")
        elif sc and (sc[0].dl <= g + 40 or g % 2): emit(sc[0], "shadow")
        elif not gp["shadow"]: pos[0] += 0
        while True:
            sc = [x for x in pool if x.i.kind in SCK and x.dl <= g and x.est <= g]
            if not sc: break
            emit(min(sc, key=key), "shadow"); load += 1
        def vm_ok(x):
            if x.i.kind not in VMK or x.dl <= g: return True
            stg = opt.tail_st_gap if g >= phase_start[-1 - 2*opt.tail_k] else opt.st_gap
            if x.i.kind == "vstore" and g - lastst < stg: return False
            if opt.vm_burst > 1:
                if g - lastvm < 2: return False
                return (g - lastvm <= 4 and bst[1] < opt.vm_burst) or g - bst[0] >= bst[1] * opt.vm_sp
            return g - lastvm >= (opt.vm_sp if x.i.kind != "vstore" else 3)
        def cands(kinds):
            return sorted([x for x in pool if x.i.kind in kinds and x.est <= g and latok(x, g) and short(x, pos[0]) == 0 and vm_ok(x)], key=key)
        mem = cands(MEMK); val = cands(("valu", "trans", "perm"))
        pkc = cands(("pk",))
        burst = None
        if pkc:
            b = pkc[0]
            if all(y in pool or y.pos is not None for y in b.burst) and b.dl - g <= 10:
                avail = sum(COST2[x.i.kind] for x in val)
                if avail >= 4 or b.dl <= g: burst = [y for y in b.burst if y.pos is None]
        cap = 4 if burst else 2
        nvm = 0
        for x in mem:
            forced = x.dl <= g
            c = COST2[x.i.kind]
            if x.i.kind in VMK and nvm and not forced: continue
            if not forced:
                if load + min(c, 2) > cap: continue
                inburst = opt.vm_burst > 1 and x.i.kind in VMK and g - lastvm <= 4 and val and val[0].dl > g
                if val and val[0].i.kind == "trans" and load == 0 and key(val[0]) < key(x) and not inburst: continue
                if load == 0 and cap == 2 and c == 1:
                    other = [y for y in mem + val if y is not x and COST2[y.i.kind] == 1 and not (y.i.kind in VMK and x.i.kind in VMK)]
                    if not other and any(y.i.kind == "trans" for y in val) and x.dl > g + 2 and not inburst: continue
            if short(x, pos[0]) and not forced: continue
            emit(x, "mem"); nvm += x.i.kind in VMK
        while True:
            f = [x for x in pool if x.i.kind in MEMK and x.dl <= g and x.est <= g]
            if not f or gp["valu"]: break
            emit(min(f, key=key), "mem")
        while True:
            val = cands(("valu", "trans", "perm"))
            f = sorted([x for x in pool if x.i.kind in VALK and x.dl <= g and x.est <= g and x.i.kind != "pk"], key=key)
            if f: emit(f[0], "valu"); continue
            fit = [x for x in val if load + COST2[x.i.kind] <= cap]
            if not fit: break
            x = fit[0]
            if cap - load == 2 and COST2[x.i.kind] == 1:
                ones = [y for y in fit if COST2[y.i.kind] == 1]
                tr = [y for y in fit if y.i.kind == "trans"]
                follow = any(y.left == 1 and y.m is None and y.i.kind in ("valu",) and y.pred[x][0] == 0 for y in x.succ)
                if len(ones) < 2 and tr and not follow and x.dl > g + 1: x = tr[0]
            emit(x, "valu")
        if burst:
            for y in burst: emit(y, "valu")
        while True:
            f = [x for x in pool if x.dl <= g and x.est <= g]
            if not f: break
            emit(min(f, key=key), "valu")
        gp["load"] = load
    assert not pool and all(x.pos is not None for x in F)
    dsn = 0; ds_gap = []; prod = {}
    need = [-1]*(n + 2)
    for g, gp in enumerate(gaps):
        for part in ("pre", "shadow", "mem", "valu"):
            for ins in gp[part]:
                for rg in ins.rd + ins.cread + ins.wr:
                    if rg in prod:
                        gi = g - 1 if part == "pre" else g
                        need[gi] = max(need[gi], prod[rg])
                for rg in ins.wr: prod.pop(rg, None)
                if ins.kind == "ds":
                    for rg in ins.wr: prod[rg] = dsn
                    ins.lg = dsn; ds_gap.append(g); dsn += 1
    before = [0]*(n + 2)
    for g in range(n + 1): before[g + 1] = before[g] + sum(1 for part in ("mem", "valu") for i in gaps[g][part] if i.kind == "ds")
    cov = -1; extra = 0
    for g in range(n + 1):
        for ins in gaps[g]["shadow"]:
            if ins.kind == "wait" and ins.lg == "bar":
                x = P.node[id(ins)]
                tgt = max([y.i.lg for y in x.burst] + [-1])
                assert tgt < before[g]
                if tgt > cov: ins.lg = min(15, before[g] - 1 - tgt); cov = before[g] - 1 - ins.lg
                else: ins.lg = None
        if need[g] > cov:
            h = g
            while h > ds_gap[need[g]] + 2 and h > g - 4 and gaps[h]["shadow"]: h -= 1
            if gaps[h]["shadow"] or h <= ds_gap[need[g]]:
                h = g
                assert ds_gap[need[g]] < g, ("read and use in one gap", g)
                wv = [i for i in gaps[g]["shadow"] if i.kind == "wait" and i.lg is None]
            else: wv = []
            tgt = max(need[g], before[max(0, h - 6)] - 1)
            cnt = min(15, before[h] - 1 - tgt)
            if wv: wv[0].lg = cnt
            else:
                if gaps[h]["shadow"]: extra += 1; gaps[h]["load"] = gaps[h].get("load", 0) + 1
                gaps[h]["shadow"].append(wait(lg=cnt))
            cov = before[h] - 1 - cnt
    for g in range(n + 1):
        for part in ("mem", "valu"):
            for ins in gaps[g][part]:
                if ins.kind == "ds": ins.lg = None
    c = []
    sper = [int(x) for x in opt.sper.split('_')] if opt.sper else [0, 1, 7, 8, 9, 15, 16, 17] + list(range(20, len(phase_start)))
    marks = {phase_start[T] for T in sper if T < len(phase_start)}
    if opt.sgrp: marks = {gs[int(x)] for x in opt.sgrp.split('_')}
    for g, gp in enumerate(gaps):
        if g in marks or g == n: c += stamp()
        lst = gp["pre"] + gp["shadow"] + gp["mem"] + gp["valu"]
        if opt.sgrp and min(marks) <= g <= max(marks):
            for ins in lst:
                if ins.kind in VMK or ins.kind == "barrier" or (ins.kind == "wait" and ins.vm is not None): c += stamp() + [ins] + stamp()
                else: c.append(ins)
        else: c += lst
    c += stamp()
    cyc = [max(16, 8 + 4*gp.get("load", 0)) for gp in gaps[:n]]
    ps = phase_start + [n]
    stats = dict(nbar=sum(1 for x in F if x.i.kind == 'barrier'), per=[sum(cyc[a:b]) for a, b in zip(ps, ps[1:])], gaps=n, est_cycles=sum(cyc), tail_instr=len(gaps[n]["valu"]),
                 under=sum(max(0, 2 - gp.get("load", 0)) for gp in gaps[:n]), nops=out_nops, extra_waits=extra, late=len(late))
    if opt.dbg_sched:
        for l in late[:40]: print("late", l)
    return c, stats

opt.first_k = 3
opt.first_v = 2
gen.body = body2

if __name__ == "__main__":
    out = sys.argv[1]
    for a in sys.argv[2:]:
        k, v = a.split("="); t = type(getattr(opt, k)); setattr(opt, k, v if t is str else t(int(v)))
    txt, errs, stats = gen.generate()
    for e in errs[:40]: print("HAZARD", e)
    print(len(errs), "hazards;", stats, len(txt), "chars")
    open(out, "w").write(txt)
    sys.exit(1 if errs else 0)
```

```python
import sys, struct, math, json
from collections import defaultdict

NAME = "standalone__gqa_softmax__near_ridge_kernel"

class Opt:
    stamps = False
    force_slow = False
    code_prefetch = False
    pk_epi = True
    pk_pre = False
    nblocks = 3
    kv_pol = ''
    q_pol = ''
    o_pol = ''
    olast_pol = ''
    olastb_pol = ''
    o1_pol = ''
    full_line = 1
    late_issue = 1
    st_sp = 25
    st_g0 = 6
    scyc = 0
    sper = ''
    sgrp = ''
    line_prefetch = 1
    head_prefetch = 1
    stub_n0 = 1
    stub_n1 = 2
    stub_late = 1
    stub_early = 0
    nstub_rounds = 4
    jit_every = 29
    jit_first = 2
    jit_g0 = 23
    stubs = 1
    abl = ''
    lin_dma = 0
    probe0 = 0
    pavg = 0
    probe = -1
opt = Opt()

def f2u(x): return struct.unpack("<I", struct.pack("<f", x))[0]
CSCALE = f2u(math.log2(math.e) / math.sqrt(128.0))
THR = f2u(2.0 ** 30)

VE = 0
KB = 65552
VPAR = 32768 + 8
QB = 131088
QW = 7168
NQS = 3
LDS_BYTES = 163840

V_O = 0
V_P = 128
V_S = 192
V_NEGM = 200
V_RAW = 216
V_T = 224
V_JIT = 252
A_DUMMY = 255
V_RCP = 232
V_MT = 224
V_LT = 226
V_KADDR = 240
V_VADDR = 242
V_QADDR = 249
V_KOFF = 245
V_VOFF = 246
V_OOFF = 247
V_IDX = 248
V_OOFF2 = 251
V_TMP = 64
A_Q = [0, 64]
A_K = 128
A_V = 160
A_L = 192
A_ONE = 208
A_PARK = 212
S_K, S_V, S_Q, S_O = 4, 8, 12, 16
S_KV = 20
S_W = 23
S_QO = 24
S_MK, S_MV, S_MQ = 36, 37, 38
S_SK, S_SV = 39, 40
S_LMASK = 58
VCC = ("s", 106)
S_MQ1 = 62
S_C = 42
S_THR = 44
S_FLAG = 46
S_CMP = 52
S_T = 54
S_WB = 98
S_WARM = 99
S_PC = 100
S_STAMP = 64

def vr(b, n=1): return f"v{b}" if n == 1 else f"v[{b}:{b+n-1}]"
def ar(b, n=1): return f"a{b}" if n == 1 else f"a[{b}:{b+n-1}]"
def sr(b, n=1): return f"s{b}" if n == 1 else f"s[{b}:{b+n-1}]"
def R(c, b, n=1): return [(c, b + i) for i in range(n)]

class I:
    __slots__ = ("text", "kind", "rd", "wr", "tag", "cread", "nops", "need", "vm", "lg", "after")
    def __init__(s, text, kind, rd=(), wr=(), tag=None, cread=(), nops=1):
        s.text, s.kind, s.rd, s.wr, s.tag, s.cread, s.nops = text, kind, list(rd), list(wr), tag, list(cread), nops
        s.need = None; s.vm = None; s.lg = None; s.after = []
    def __repr__(s): return s.text

def mfma(dc, d, ac, a, bc, b, c=None):
    f = {"v": vr, "a": ar}
    if c is None: ct, cr = f[dc](d, 4), R(dc, d, 4)
    elif c == "0": ct, cr = "0", []
    else: ct, cr = f[dc](c, 4), R(dc, c, 4)
    return I(f"v_mfma_f32_16x16x32_bf16 {f[dc](d,4)}, {f[ac](a,4)}, {f[bc](b,4)}, {ct}", "mfma",
             rd=R(ac, a, 4) + R(bc, b, 4), wr=R(dc, d, 4), cread=cr)
def smfmac(qb, pb):
    return I(f"v_smfmac_f32_16x16x64_bf16 {ar(A_L+4*qb,4)}, {ar(A_ONE,4)}, {vr(pb,8)}, {vr(V_IDX)}", "smfmac",
             rd=R("a", A_ONE, 4) + R("v", pb, 8) + R("v", V_IDX), wr=R("a", A_L + 4*qb, 4), cread=R("a", A_L + 4*qb, 4))
def valu(text, rd, wr, kind="valu"): return I(text, kind, rd, wr)
def vexp(r): return I(f"v_exp_f32 {vr(r)}, {vr(r)}", "trans", R("v", r), R("v", r))
def vcvt(d, a, b): return I(f"v_cvt_pk_bf16_f32 {vr(d)}, {vr(a)}, {vr(b)}", "valu", R("v", a) + R("v", b), R("v", d))
def salu(text, rd=(), wr=()): return I(text, "salu", rd, wr)
def nop(n): return I(f"s_nop {n-1}", "nop", nops=n)
def wait(vm=None, lg=None, need=None):
    i = I("s_waitcnt", "wait"); i.vm, i.lg, i.need = vm, lg, need; return i
def barrier(): return I("s_barrier", "barrier")
def dsr(dc, d, addr, off, tag):
    f = {"v": vr, "a": ar}[dc]
    return I(f"ds_read_b128 {f(d,4)}, {vr(addr)} offset:{off}", "ds", R("v", addr), R(dc, d, 4), tag)
def dst(d, addr, off, tag):
    return I(f"ds_read_b64_tr_b16 {ar(d,2)}, {vr(addr)} offset:{off}", "ds", R("v", addr), R("a", d, 2), tag)
def setm0(sbase, imm):

    return I(f"s_add_u32 m0, {sr(sbase)}, {imm}", "salu", R("s", sbase), [("m", 0)])
def pol(p): return ''.join(' ' + x for x in p.split('_') if x)
def dma(voff, srd, soff, imm, tag):
    o = f" offset:{imm}" if imm else ""
    o += pol(opt.q_pol if srd == S_Q else opt.kv_pol)
    return I(f"buffer_load_dwordx4 {vr(voff)}, {sr(srd,4)}, {sr(soff)} offen{o} lds", "dma",
             R("v", voff) + R("s", srd, 4) + R("s", soff) + [("m", 0)], [], tag)
def vload(d, voff, srd, soff, imm):
    o = f" offset:{imm}" if imm else ""
    o += pol(opt.q_pol)
    return I(f"buffer_load_dwordx4 {vr(d,4)}, {vr(voff)}, {sr(srd,4)}, {sr(soff)} offen{o}", "vload",
             R("v", voff) + R("s", srd, 4) + R("s", soff), R("v", d, 4))
def vstore(d, voff, srd, soff, imm, dc="v", last=False):
    o = f" offset:{imm}" if imm else ""
    if 'L' in opt.abl and last: voff = V_KOFF; imm = kq_imm(imm // 64); o = f" offset:{imm}" if imm else ""
    o += pol((opt.olast_pol if (soff - S_QO) % 4 < 2 else opt.olastb_pol) if last else (opt.o1_pol if (soff - S_QO) // 4 == opt.nblocks - 2 and opt.o1_pol else opt.o_pol))
    return I(f"buffer_store_dwordx4 {(vr if dc == 'v' else ar)(d,4)}, {vr(voff)}, {sr(srd,4)}, {sr(soff)} offen{o}", "vstore",
             R(dc, d, 4) + R("v", voff) + R("s", srd, 4) + R("s", soff), [])

def o_reg(db, qb): return V_O + 32*(db >> 1) + 8*qb + 4*(db & 1)
def p_reg(T, qb, ks): return V_P + 32*(T & 1) + 8*qb + 4*ks
def q_reg(r, qb, t): return A_Q[r & 1] + 16*qb + 4*t
def k_reg(kb, t): return A_K + 16*(kb & 1) + 4*t
def v_reg(db, ks): return A_V + 8*(db & 3) + 4*ks
def k_read(T, kb, t, dest=None):
    return dsr("a", k_reg(kb, t) if dest is None else dest, V_KADDR + (t & 1), (T & 3)*16384 + kb*4096 + (t >> 1)*2048, ("K", T))
def v_read(T, db, ks, hf, dest=None):
    u, p = db >> 1, db & 1
    return dst(v_reg(db, ks) + 2*hf if dest is None else dest, V_VADDR + (u & 1), (T & 3)*8192 + (2*ks + hf)*2048 + (u >> 1)*1024 + 8*p, ("V", T))
def kq_imm(j): return (j & 1)*2048 + (j >> 1)*128
def k_dma(T, j):
    return setm0(S_MK, (T & 3)*16384 + j*1024 - kq_imm(j)), dma(V_KOFF, S_K, S_SK, kq_imm(j), ("K", T))
def v_dma(T, j):
    par, up = j & 1, j >> 1; imm = par*1024 + up*128
    return setm0(S_MV, par*VPAR + (T & 3)*8192 + up*1024 - imm), dma(V_VOFF, S_V, S_SV, imm, ("V", T))
def k_soff(T): return salu(f"s_add_u32 {sr(S_SK)}, {sr(S_KV + T//8)}, {(T % 8)*16384}", R("s", S_KV + T//8), R("s", S_SK))
def v_soff(T): return salu(f"s_add_u32 {sr(S_SV)}, {sr(S_KV + T//8)}, {(T % 8)*16384}", R("s", S_KV + T//8), R("s", S_SV))
def q_dma(pc, hh):
    r, qb, tp = pc // 8, (pc >> 1) & 3, pc & 1
    j = 2*tp + hh
    return setm0(S_MQ, (pc % NQS)*2048 + hh*1024 - kq_imm(j)), dma(V_KOFF, S_Q, S_QO + 4*r + qb, kq_imm(j), ("Q", pc))
def qp_dma(qb, j):
    base, off = [(S_MQ, 0), (S_MQ1, 0), (S_MK, 32768), (S_MK, 49152)][qb]
    return setm0(base, off + 1024*j - kq_imm(j)), dma(V_KOFF, S_Q, S_QO + qb, kq_imm(j), ("P", 2*qb + (j >> 1)))
def qp_read(qb, t):
    addr, off = [(V_QADDR, 0), (V_RCP, 0), (V_RCP + 2, 32768), (V_RCP + 2, 49152)][qb]
    return dsr("v", V_O + 16*qb + 4*t, addr + (t & 1), off + 2048*(t >> 1), ("P", 2*qb + (t >> 1)))
def q_read(kap):
    return dsr("v", V_RAW + 4*(kap & 1), V_QADDR + (kap & 1), ((kap >> 1) % NQS)*2048, ("Q", kap >> 1))

def prescale_ops(src, dst_a, pk, tbase=V_T):
    ops = []
    if pk:
        for j in range(4):
            ops.append(valu(f"v_lshlrev_b32 {vr(tbase+2*j)}, 16, {vr(src+j)}", R("v", src+j), R("v", tbase+2*j)))
            ops.append(valu(f"v_and_b32 {vr(tbase+2*j+1)}, 0xffff0000, {vr(src+j)}", R("v", src+j), R("v", tbase+2*j+1)))
        for j in range(4):
            ops.append(valu(f"v_pk_mul_f32 {vr(tbase+2*j,2)}, {vr(tbase+2*j,2)}, {sr(S_C,2)}", R("v", tbase+2*j, 2) + R("s", S_C, 2), R("v", tbase+2*j, 2), "pk"))
        for j in range(4):
            ops.append(vcvt(src+j, tbase+2*j, tbase+2*j+1))
        for j in range(4):
            ops.append(valu(f"v_accvgpr_write_b32 {ar(dst_a+j)}, {vr(src+j)}", R("v", src+j), R("a", dst_a+j)))
    else:
        for j in range(4):
            t0 = tbase + 2*(j & 1)
            ops.append(valu(f"v_lshlrev_b32 {vr(t0)}, 16, {vr(src+j)}", R("v", src+j), R("v", t0)))
            ops.append(valu(f"v_and_b32 {vr(t0+1)}, 0xffff0000, {vr(src+j)}", R("v", src+j), R("v", t0+1)))
            ops.append(valu(f"v_mul_f32 {vr(t0)}, {sr(S_C)}, {vr(t0)}", R("v", t0) + R("s", S_C), R("v", t0)))
            ops.append(valu(f"v_mul_f32 {vr(t0+1)}, {sr(S_C)}, {vr(t0+1)}", R("v", t0+1) + R("s", S_C), R("v", t0+1)))
            ops.append(vcvt(src+j, t0, t0+1))
            ops.append(valu(f"v_accvgpr_write_b32 {ar(dst_a+j)}, {vr(src+j)}", R("v", src+j), R("a", dst_a+j)))
    return ops

def max_ops(x, qb, mt=V_MT):
    m, t, n = mt, mt + 1, V_NEGM + 4*qb
    ops = [valu(f"v_max3_f32 {vr(m)}, {vr(x)}, {vr(x+1)}, {vr(x+2)}", R("v", x, 3), R("v", m)),
           valu(f"v_max_f32 {vr(m)}, {vr(m)}, {vr(x+3)}", R("v", m) + R("v", x+3), R("v", m)),
           valu(f"v_mov_b32 {vr(t)}, {vr(m)}", R("v", m), R("v", t)),
           "gap2",
           valu(f"v_permlane32_swap_b32 {vr(m)}, {vr(t)}", R("v", m, 2), R("v", m, 2), "perm"),
           valu(f"v_max_f32 {vr(m)}, {vr(m)}, {vr(t)}", R("v", m, 2), R("v", m)),
           valu(f"v_mov_b32 {vr(t)}, {vr(m)}", R("v", m), R("v", t)),
           "gap2",
           valu(f"v_permlane16_swap_b32 {vr(m)}, {vr(t)}", R("v", m, 2), R("v", m, 2), "perm")]
    for j in range(4):
        ops.append(valu(f"v_min_f32_e64 {vr(n+j)}, -{vr(m)}, -{vr(t)}", R("v", m, 2), R("v", n+j)))
    for j in range(4):
        ops.append(valu(f"v_add_f32 {vr(x+j)}, {vr(n)}, {vr(x+j)}", R("v", n) + R("v", x+j), R("v", x+j)))
    return ops

def soft_ops(x, pd):
    return [vexp(x), vexp(x+1), vexp(x+2), vexp(x+3)], [vcvt(pd, x, x+1), vcvt(pd+1, x+2, x+3)]

def l_ops(r, qb, more):
    a = A_L + 4*qb
    ops = [valu(f"v_accvgpr_read_b32 {vr(V_LT)}, {ar(a)}", R("a", a), R("v", V_LT)),
           valu(f"v_accvgpr_read_b32 {vr(V_LT+1)}, {ar(a+1)}", R("a", a+1), R("v", V_LT+1)),
           valu(f"v_add_f32 {vr(V_LT)}, {vr(V_LT)}, {vr(V_LT+1)}", R("v", V_LT, 2), R("v", V_LT)),
           I(f"v_rcp_f32 {vr(V_RCP+2*qb)}, {vr(V_LT)}", "trans", R("v", V_LT), R("v", V_RCP+2*qb))]
    cm = S_CMP + 2*(qb - 1)
    dst = S_FLAG + 2*r if qb == 0 else cm
    ops.append(valu(f"v_cmp_nlt_f32_e64 {sr(dst,2)}, {vr(V_LT)}, {sr(S_THR)}", R("v", V_LT) + R("s", S_THR), R("s", dst, 2)))
    if opt.pk_epi:
        ops.append(valu(f"v_mov_b32 {vr(V_RCP+2*qb+1)}, {vr(V_RCP+2*qb)}", R("v", V_RCP+2*qb), R("v", V_RCP+2*qb+1)))
    if more:
        ops.append(valu(f"v_accvgpr_write_b32 {ar(a)}, 0", [], R("a", a)))
        ops.append(valu(f"v_accvgpr_write_b32 {ar(a+1)}, 0", [], R("a", a+1)))
    if qb:
        ops.append(salu(f"s_or_b64 {sr(S_FLAG+2*r,2)}, {sr(S_FLAG+2*r,2)}, {sr(cm,2)}", R("s", S_FLAG+2*r, 2) + R("s", cm, 2), R("s", S_FLAG+2*r, 2)))
    return ops

def epi_ops(r, u, qb, park=None):
    b = V_O + 32*u + 8*qb
    rc = V_RCP + 2*qb
    mul = []
    if opt.pk_epi:
        for j in range(0, 8, 2):
            mul.append(valu(f"v_pk_mul_f32 {vr(b+j,2)}, {vr(b+j,2)}, {vr(rc,2)}", R("v", b+j, 2) + R("v", rc, 2), R("v", b+j, 2), "pk"))
    else:
        for j in range(8):
            mul.append(valu(f"v_mul_f32 {vr(b+j)}, {vr(rc)}, {vr(b+j)}", R("v", b+j) + R("v", rc), R("v", b+j)))
    cv = [vcvt(b+j, b+2*j, b+2*j+1) for j in range(4)]
    if park is None:
        st = vstore(b, V_OOFF, S_O, S_QO + 4*r + qb, 64*u, last=(r == opt.nblocks - 1))
    else:
        cv += [valu(f"v_accvgpr_write_b32 {ar(park+j)}, {vr(b+j)}", R("v", b+j), R("a", park+j)) for j in range(4)]
        st = vstore(park, V_OOFF, S_O, S_QO + 4*r + qb, 64*u, "a")
    return mul, cv, st

def line_ops(r, v, qb):
    a, b = V_O + 64*v + 8*qb, V_O + 64*v + 32 + 8*qb
    dpp = " row_ror:8 row_mask:0xf bank_mask:0xf"
    ops = [salu(f"s_mov_b64 vcc, {sr(S_LMASK,2)}", [], [VCC])]
    ops += [valu(f"v_cndmask_b32_dpp {vr(a+4+j)}, {vr(b+j)}, {vr(a+j)}, vcc{dpp}", R("v", a+j) + R("v", b+j) + [VCC], R("v", a+4+j), "perm") for j in range(4)]
    s1 = vstore(a+4, V_OOFF2, S_O, S_QO + 4*r + qb, 128*v, last=True)
    ops2 = [salu(f"s_not_b64 vcc, {sr(S_LMASK,2)}", [], [VCC])]
    ops2 += [valu(f"v_cndmask_b32_dpp {vr(b+4+j)}, {vr(a+j)}, {vr(b+j)}, vcc{dpp}", R("v", a+j) + R("v", b+j) + [VCC], R("v", b+4+j), "perm") for j in range(4)]
    s2 = vstore(b+4, V_OOFF2, S_O, S_QO + 4*r + qb, 2048 + 128*v, last=True)
    return ops, s1, ops2, s2

stamp_n = [0]
def stamp(pro=False):
    if not opt.stamps: return []
    if pro and (opt.sper or opt.sgrp): return []
    n = stamp_n[0]; stamp_n[0] += 1
    ins = 's_memtime' if opt.scyc else 's_memrealtime'
    if opt.probe >= 0:
        assert S_STAMP + 2*n + 3 <= 95
        return [I(f"{ins} {sr(S_STAMP+2*n,2)}", "smem", [], R("s", S_STAMP+2*n, 2))]
    out = [I(f"{ins} {sr(S_STAMP+2*(n%16),2)}", "smem", [], [])]
    if n >= 12: out.append(stamp_save(n - 12))
    return out
def stamp_save(n):
    assert n < 192
    return I(f"v_writelane_b32 v{253 + n//64}, s{S_STAMP+2*(n%16)}, {n%64}", "salu")

def jit_ops():
    return [I(f"global_load_dword a{A_DUMMY}, v{V_JIT}, s[{S_PC}:{S_PC+1}]", "vload", R("v", V_JIT) + R("s", S_PC, 2), []),
            valu(f"v_add_u32 v{V_JIT}, 0x2000, v{V_JIT}", R("v", V_JIT), R("v", V_JIT))]
late_setup = []
def setup():
    c = []
    T = V_TMP
    A = lambda t: c.append(salu(t))
    def V(t, rd, wr): c.append(valu(t, rd, wr))
    c.append(salu("s_cmpk_ge_u32 s2, 0x100"))
    c.append(I("s_cbranch_scc1 L_end", "branch"))
    c.append(I("s_load_dwordx4 s[56:59], s[0:1], 0", "smem", [], R("s", 56, 4)))
    c.append(I("s_load_dwordx4 s[60:63], s[0:1], 16", "smem", [], R("s", 60, 4)))
    c += stamp()
    if opt.probe >= 0: c.append(I("s_memrealtime s[96:97]", "smem"))
    A(f"s_mov_b32 s{S_WARM}, 0")
    if opt.stubs:
        c.append(I(f"s_getpc_b64 s[{S_PC}:{S_PC+1}]", "salu", [], R("s", S_PC, 2)))
        c.append(I("L_pc:", "label"))
        if opt.head_prefetch:
            V(f"v_and_b32 v{V_LT}, 15, v0", R("v", 0), R("v", V_LT))
            V(f"v_lshrrev_b32 v{V_LT+1}, 6, v0", R("v", 0), R("v", V_LT+1))
            V(f"v_lshl_add_u32 v{V_LT}, v{V_LT+1}, 4, v{V_LT}", R("v", V_LT, 2), R("v", V_LT))
            V(f"v_lshlrev_b32 v{V_LT}, 7, v{V_LT}", R("v", V_LT), R("v", V_LT))
            c.append(I(f"global_load_dword a{A_DUMMY}, v{V_LT}, s[{S_PC}:{S_PC+1}] offset:256", "vload", R("v", V_LT), []))
        A(f"s_add_u32 s{S_PC}, s{S_PC}, L_main - L_pc")
        A(f"s_addc_u32 s{S_PC+1}, s{S_PC+1}, 0")
        if opt.line_prefetch:
            V(f"v_bfe_u32 v{V_LT}, v0, 2, 2", R("v", 0), R("v", V_LT))
            V(f"v_lshrrev_b32 v{V_LT+1}, 6, v0", R("v", 0), R("v", V_LT+1))
            V(f"v_lshl_add_u32 v{V_LT}, v{V_LT}, 2, v{V_LT+1}", R("v", V_LT, 2), R("v", V_LT))
            V(f"v_lshlrev_b32 v{V_LT}, 5, v{V_LT}", R("v", V_LT), R("v", V_LT))
            V(f"v_and_b32 v{V_LT+1}, 3, v0", R("v", 0), R("v", V_LT+1))
            V(f"v_add_u32 v{V_LT}, v{V_LT}, v{V_LT+1}", R("v", V_LT, 2), R("v", V_LT))
            V(f"v_lshlrev_b32 v{V_LT}, 7, v{V_LT}", R("v", V_LT), R("v", V_LT))
            c.append(I(f"global_load_dword a{A_DUMMY}, v{V_LT}, s[{S_PC}:{S_PC+1}]", "vload", R("v", V_LT), []))
    V(f"v_lshrrev_b32 v{T}, 6, v0", R("v", 0), R("v", T))
    V(f"v_and_b32 v{T+1}, 63, v0", R("v", 0), R("v", T+1))
    V(f"v_readfirstlane_b32 s{S_W}, v{T}", R("v", T), R("s", S_W))
    if opt.stubs and opt.stub_early: c.append(nop(4)); c.append(I("STUB_CALLS0", "label"))
    A(f"s_and_b32 s54, s2, 7")
    A(f"s_lshl_b32 s54, s54, 5")
    A(f"s_lshr_b32 s55, s2, 3")
    def blk(r):
        A(f"s_add_u32 s3, s55, {32*r}")
        A(f"s_mul_i32 s45, s3, 43691")
        A(f"s_lshr_b32 s45, s45, 17")
        A(f"s_mul_i32 s41, s45, 3")
        A(f"s_sub_u32 s3, s3, s41")
        A(f"s_add_u32 s45, s45, s54")
        A(f"s_lshl_b32 s{S_KV+r}, s45, 17")
        A(f"s_mul_i32 s45, s45, 188416")
        A(f"s_lshl_b32 s41, s3, 16")
        A(f"s_add_u32 s45, s45, s41")
        A(f"s_mul_i32 s41, s{S_W}, 12288")
        A(f"s_add_u32 s{S_QO+4*r}, s45, s41")
        A(f"s_add_u32 s{S_QO+4*r+1}, s{S_QO+4*r}, 4096")
        A(f"s_lshl_b32 s3, s3, 2")
        A(f"s_add_u32 s3, s3, s{S_W}")
        A(f"s_add_u32 s3, s3, 5")
        A(f"s_lshr_b32 s3, s3, 4")
        A(f"s_mul_i32 s41, s3, 0x70000000")
        A(f"s_add_u32 s41, s41, s{S_QO+4*r}")
        A(f"s_add_u32 s{S_QO+4*r+2}, s41, 8192")
        A(f"s_add_u32 s{S_QO+4*r+3}, s41, 12288")
    L = T + 1
    V(f"v_lshrrev_b32 v{T+6}, 3, v{L}", R("v", L), R("v", T+6))
    V(f"v_and_b32 v{T+4}, 6, v{T+6}", R("v", T+6), R("v", T+4))
    V(f"v_and_b32 v{T+5}, 7, v{L}", R("v", L), R("v", T+5))
    V(f"v_xor_b32 v{T+4}, v{T+4}, v{T+5}", R("v", T+4, 2), R("v", T+4))
    V(f"v_lshlrev_b32 v{T+2}, 8, v{T+6}", R("v", T+6), R("v", T+2))
    V(f"v_lshl_add_u32 v{T+2}, v{T+4}, 4, v{T+2}", R("v", T+4) + R("v", T+2), R("v", T+2))
    V(f"v_lshl_add_u32 v{V_KOFF}, v{T}, 12, v{T+2}", R("v", T) + R("v", T+2), R("v", V_KOFF))
    V(f"v_lshrrev_b32 v{T+3}, 4, v{L}", R("v", L), R("v", T+3))
    V(f"v_and_b32 v{T+4}, 15, v{L}", R("v", L), R("v", T+4))
    V(f"v_lshlrev_b32 v{T+2}, 8, v{T+4}", R("v", T+4), R("v", T+2))
    V(f"v_lshl_add_u32 v{T+2}, v{T+3}, 4, v{T+2}", R("v", T+3) + R("v", T+2), R("v", T+2))
    V(f"v_lshl_add_u32 v{V_OOFF}, v{T}, 12, v{T+2}", R("v", T) + R("v", T+2), R("v", V_OOFF))
    blk(0)
    A(f"s_lshl_b32 s{S_MK}, s{S_W}, 12")
    A(f"s_add_u32 s{S_MK}, s{S_MK}, {KB}")
    c.append(wait(lg=0))
    for srd, p, n in ((S_K, 58, 33554432), (S_Q, 56, 48234496), (S_V, 60, 33554432), (S_O, 62, 48234496)):
        A(f"s_mov_b32 s{srd}, s{p}")
        A(f"s_mov_b32 s{srd+1}, s{p+1}")
        A(f"s_mov_b32 s{srd+2}, {n}")
        A(f"s_mov_b32 s{srd+3}, 0x20000")
    c += stamp(True)
    A(f"s_mul_i32 s3, s{S_W}, {QW}")
    A(f"s_add_u32 s{S_MQ}, s3, {QB}")
    for t in range(4):
        m, d = qp_dma(0, t); c += [m, nop(1), d]
    c.append(k_soff(0))
    for t in range(4):
        m, d = k_dma(0, t); c += [m, nop(1), d]
    c += stamp(True)
    if opt.stubs and not opt.stub_late:
        for rd in range(1 if opt.stub_early else 0, 5): c.append(I(f"STUB_CALLS{rd}", "label"))
    c += stamp(True)
    A(f"s_lshr_b32 s3, s{S_W}, 1")
    A(f"s_mul_i32 s3, s3, {VPAR + 8 - 8192}")
    A(f"s_add_u32 s3, s3, s{S_MK}")
    A(f"s_add_u32 s{S_MQ1}, s3, {VE + 24576 - KB}")
    for t in range(4):
        m, d = qp_dma(1, t); c += [m, nop(1), d]
    c += stamp(True)
    V(f"v_and_b32 v{T+2}, 2, v{T+6}", R("v", T+6), R("v", T+2))
    V(f"v_lshlrev_b32 v{T+2}, 1, v{T+2}", R("v", T+2), R("v", T+2))
    V(f"v_xor_b32 v{T+2}, v{T+2}, v{T+5}", R("v", T+2) + R("v", T+5), R("v", T+2))
    V(f"v_and_b32 v{T+5}, 4, v{T+6}", R("v", T+6), R("v", T+5))
    V(f"v_add_u32 v{T+5}, v{T+5}, v{T+6}", R("v", T+5, 2), R("v", T+5))
    V(f"v_lshlrev_b32 v{T+5}, 8, v{T+5}", R("v", T+5), R("v", T+5))
    V(f"v_lshl_add_u32 v{T+2}, v{T+2}, 4, v{T+5}", R("v", T+2) + R("v", T+5), R("v", T+2))
    V(f"v_lshl_add_u32 v{V_VOFF}, v{T}, 12, v{T+2}", R("v", T) + R("v", T+2), R("v", V_VOFF))
    assert VE == 0
    A(f"s_lshl_b32 s{S_MV}, s{S_W}, 11")
    V(f"v_and_b32 v{T+2}, 6, v{T+4}", R("v", T+4), R("v", T+2))
    V(f"v_xor_b32 v{T+2}, v{T+2}, v{T+3}", R("v", T+2) + R("v", T+3), R("v", T+2))
    V(f"v_lshlrev_b32 v{T+2}, 4, v{T+2}", R("v", T+2), R("v", T+2))
    V(f"v_lshl_add_u32 v{V_KADDR}, v{T+4}, 7, v{T+2}", R("v", T+4) + R("v", T+2), R("v", V_KADDR))
    V(f"v_xor_b32 v{V_KADDR+1}, 64, v{V_KADDR}", R("v", V_KADDR), R("v", V_KADDR+1))
    for b in range(2):
        V(f"v_add_u32 v{V_QADDR+b}, s{S_MQ}, v{V_KADDR+b}", R("v", V_KADDR+b) + R("s", S_MQ), R("v", V_QADDR+b))
        V(f"v_add_u32 v{V_RCP+b}, s{S_MQ1}, v{V_KADDR+b}", R("v", V_KADDR+b) + R("s", S_MQ1), R("v", V_RCP+b))
        V(f"v_add_u32 v{V_RCP+2+b}, s{S_MK}, v{V_KADDR+b}", R("v", V_KADDR+b) + R("s", S_MK), R("v", V_RCP+2+b))
        V(f"v_add_u32 v{V_KADDR+b}, {KB}, v{V_KADDR+b}", R("v", V_KADDR+b), R("v", V_KADDR+b))
    V(f"v_and_b32 v{T+2}, 1, v{T+3}", R("v", T+3), R("v", T+2))
    V(f"v_mul_u32_u24 v{T+2}, {VPAR}, v{T+2}", R("v", T+2), R("v", T+2))
    V(f"v_lshrrev_b32 v{T+6}, 1, v{T+3}", R("v", T+3), R("v", T+6))
    V(f"v_lshl_add_u32 v{T+2}, v{T+6}, 9, v{T+2}", R("v", T+6) + R("v", T+2), R("v", T+2))
    V(f"v_bfe_u32 v{T+6}, v{L}, 2, 2", R("v", L), R("v", T+6))
    V(f"v_lshl_add_u32 v{T+2}, v{T+6}, 7, v{T+2}", R("v", T+6) + R("v", T+2), R("v", T+2))
    V(f"v_and_b32 v{T+5}, 3, v{L}", R("v", L), R("v", T+5))
    V(f"v_lshl_add_u32 v{T+2}, v{T+5}, 4, v{T+2}", R("v", T+5) + R("v", T+2), R("v", T+2))
    V(f"v_and_b32 v{T+6}, 2, v{T+6}", R("v", T+6), R("v", T+6))
    V(f"v_lshlrev_b32 v{T+6}, 5, v{T+6}", R("v", T+6), R("v", T+6))
    V(f"v_add_u32 v{V_VADDR}, v{T+2}, v{T+6}", R("v", T+2) + R("v", T+6), R("v", V_VADDR))
    V(f"v_xor_b32 v{T+6}, 64, v{T+6}", R("v", T+6), R("v", T+6))
    V(f"v_add_u32 v{V_VADDR+1}, v{T+2}, v{T+6}", R("v", T+2) + R("v", T+6), R("v", V_VADDR+1))
    V(f"v_and_b32 v{T+2}, 1, v{L}", R("v", L), R("v", T+2))
    V(f"v_mul_u32_u24 v{T+2}, 0xaaaa, v{T+2}", R("v", T+2), R("v", T+2))
    V(f"v_add_u32 v{T+2}, 0x4444, v{T+2}", R("v", T+2), R("v", T+2))
    V(f"v_lshl_add_u32 v{V_IDX}, v{T+2}, 16, v{T+2}", R("v", T+2), R("v", V_IDX))
    V(f"v_mov_b32 v{T+2}, 0x3f803f80", [], R("v", T+2))
    for j in range(4): V(f"v_accvgpr_write_b32 a{A_ONE+j}, v{T+2}", R("v", T+2), R("a", A_ONE+j))
    for j in range(16): V(f"v_accvgpr_write_b32 a{A_L+j}, 0", [], R("a", A_L+j))
    if opt.jit_every:
        A(f"s_lshl_b32 s3, s55, 2")
        A(f"s_add_u32 s3, s3, s{S_W}")
        A(f"s_and_b32 s3, s3, 63")
        A(f"s_lshl_b32 s3, s3, 7")
        V(f"v_mov_b32 v{V_JIT}, s3", [], R("v", V_JIT))
        for k in range(opt.jit_first): c += jit_ops()
    if opt.full_line:
        V(f"v_and_b32 v{T+2}, 8, v{L}", R("v", L), R("v", T+2))
        V(f"v_mul_u32_u24 v{T+2}, 248, v{T+2}", R("v", T+2), R("v", T+2))
        V(f"v_sub_u32 v{V_OOFF2}, v{V_OOFF}, v{T+2}", R("v", V_OOFF) + R("v", T+2), R("v", V_OOFF2))
        A(f"s_mov_b32 s{S_LMASK}, 0x00ff00ff")
        A(f"s_mov_b32 s{S_LMASK+1}, 0x00ff00ff")
    A(f"s_add_u32 s{S_WB}, s55, s{S_W}")
    A(f"s_mov_b32 s{S_C}, {CSCALE:#x}")
    A(f"s_mov_b32 s{S_C+1}, {CSCALE:#x}")
    A(f"s_mov_b32 s{S_THR}, {0 if opt.force_slow else THR:#x}")
    for j in range(6): A(f"s_mov_b32 s{S_FLAG+j}, 0")
    c += stamp(True)
    if opt.stubs:
        for rd in range(opt.stub_n0): c.append(I(f"STUB_CALLS{rd}", "label"))
    for t in range(4):
        m, d = qp_dma(2, t); c += [m, nop(1), d]
    c += stamp(True)
    late_setup.clear()
    n0 = len(c); blk(1); blk(2); late_setup.extend(c[n0:]); del c[n0:]
    if opt.stubs:
        c.append(I("s_branch L_main", "branch"))
        c.append(I(".p2align 12", "label"))
        c.append(I("L_main:", "label"))
    return c

def flat(ops):
    out = []
    for o in ops:
        out.append(nop(2) if o == "gap2" else o)
    return out

def issue_tile(kind, Tt):
    c = [v_soff(Tt) if kind == "V" else k_soff(Tt)]
    for t in range(4): c += list((v_dma if kind == "V" else k_dma)(Tt, t))
    return c

def weave(ops, pairs, every, start=0):
    out = []; pairs = list(pairs)
    for k, o in enumerate(ops):
        if pairs and k >= start and (k - start) % every == 0:
            p = pairs.pop(0); out += p[:-1] + [o, p[-1]]
        else: out.append(o)
    assert not pairs
    return out

def prologue():
    c = []
    KT = A_Q[1]
    X = lambda qb, kb: V_O + 64 + 16*qb + 4*kb
    def chain(qb, kb):
        return [mfma("v", X(qb, kb), "a", KT + 16*kb + 4*t, "a", q_reg(0, qb, t), (("0" if kb == 0 else V_NEGM + 4*qb) if t == 0 else None)) for t in range(4)]
    def soft(qb, kb):
        e, cv = soft_ops(X(qb, kb), p_reg(0, qb, kb >> 1) + 2*(kb & 1)); return e + cv
    def B(qb): return [o for t in range(4) for o in prescale_ops(V_O + 16*qb + 4*t, q_reg(0, qb, t), True)]
    def D(qb): return [o for o in max_ops(X(qb, 0), qb, V_S) if not isinstance(o, str)]
    def dep(lst, op):
        for x in lst: x.after.append(op)
        return lst
    def paced(tile, anchors):
        so, rest = tile[0], tile[1:]
        for k in range(4): dep(rest[2*k:2*k+2], anchors[k])
        return tile
    ch = lambda qb: [x for kb in (1, 2, 3) for x in chain(qb, kb)]
    b0, b1, b2, b3 = B(0), B(1), B(2), B(3)
    c += stamp(True) + [wait(vm="auto", need=[("P", 0)])] + stamp(True) + [qp_read(0, t) for t in (0, 1)]
    c += [wait(vm="auto", need=[("P", 1)])] + [qp_read(0, t) for t in (2, 3)] + [wait(lg="auto")]
    b0w = weave(b0, [list(qp_dma(3, t)) for t in range(4)], 16, 10)
    c += b0w[:44] + [wait(lg="auto")] + b0w[44:]
    c += stamp(True)
    if opt.stubs:
        for rd in range(opt.stub_n1): c.append(I(f"STUB_CALLS{opt.stub_n0 + rd}", "label"))
    c += stamp(True)
    c += [wait(vm="auto", need=[("K", 0)]), barrier()]
    c += stamp(True)
    c += [k_read(0, kb, t, dest=KT + 16*kb + 4*t) for kb in range(4) for t in range(4)]
    c += listsched(issue_tile("K", 1)[:5])[0]
    c.append(wait(lg="auto"))
    s0 = soft(0, 0) + soft(0, 1) + soft(0, 2) + soft(0, 3)
    s1 = soft(1, 0) + soft(1, 1) + soft(1, 2) + soft(1, 3)
    s2 = soft(2, 0) + soft(2, 1) + soft(2, 2) + soft(2, 3)
    def fetch(qb, anchor, anchor2, first):
        w = wait(lg="auto"); dep(first, w)
        return dep([wait(vm="auto", need=[("P", 2*qb), ("P", 2*qb + 1)])], anchor) + [qp_read(qb, t) for t in range(4)] + dep([w], anchor2)
    c3 = ch(3); c0 = ch(0)
    k1 = issue_tile("K", 1)[5:]
    wk = wait(lg=0); d0 = D(0); c00 = chain(0, 0)
    seq = c00 + dep([wk], c00[3]) + d0 + dep(c0[:1], wk) + c0[1:] + dep(k1[:2], c0[0]) + dep(k1[2:], c0[4])
    seq += s0[:12] + fetch(1, c0[8], s0[11], b1[:8]) + b1
    seq += chain(1, 0) + s0[12:] + fetch(2, b1[70], s0[16], b2[:8]) + D(1) + ch(1)
    seq += b2 + paced(issue_tile("V", 0), [b2[0], b2[20], b2[40], b2[60]])
    seq += chain(2, 0) + s1 + fetch(3, b2[70], s1[8], b3[:8]) + D(2) + ch(2)
    seq += b3
    if getattr(opt, "first_k", 2) == 3: seq += paced(issue_tile("K", 2), [b3[0], b3[12], b3[24], b3[36]])
    if getattr(opt, "first_v", 1) == 2: seq += paced(issue_tile("V", 1), [b3[48], b3[60], b3[70], b3[79]])
    seq += chain(3, 0) + s2 + D(3) + c3
    seq += dep([wait(vm="auto", lg=0, need=[("K", 1), ("V", 0)]), barrier()], c3[0])
    seq += [v_read(0, n >> 2, (n >> 1) & 1, n & 1) for n in range(4)] + [k_read(1, 0, t) for t in range(4)]
    seq += [v_read(0, n >> 2, (n >> 1) & 1, n & 1) for n in range(4, 10)] + [k_read(1, 1, 0)]
    seq += soft(3, 0) + soft(3, 1) + soft(3, 2) + soft(3, 3)
    p2, t2 = listsched(order_fix(seq), [x for x in c[-30:] if x.kind != "label"])
    if opt.stamps:
        out = []
        for x in p2:
            if x.kind == "wait" and x.vm is not None: out += stamp(True) + [x] + stamp(True)
            else: out.append(x)
        p2 = out
    c += p2
    c.append(wait(lg="auto"))
    return c

def order_fix(seq):
    seen = set()
    for x in seq:
        assert all(id(a) in seen for a in x.after), x
        seen.add(id(x))
    return seq

VALK = ("valu", "trans", "pk", "perm")
def edge_dist(w, x, rg, kind):
    if kind == "raw":
        if w.kind in ("mfma", "smfmac"):
            need = 8 if w.kind == "mfma" else 12
            if x.kind in ("mfma", "smfmac") and rg in x.cread and rg not in x.rd:
                return 0 if (x.cread == w.wr and x.kind == w.kind) else need - 2
            return need
        if w.kind in VALK:
            if rg[0] == "s": return 5 if x.kind in ("dma", "vload", "vstore") else (2 if x.kind in VALK else 0)
            if x.kind in ("mfma", "smfmac", "perm"): return 2
            if w.kind == "trans" and x.kind in VALK and x.kind != "trans": return 1
        if w.kind == "salu" and rg[0] == "m" and x.kind == "dma": return 1
        return 0
    if kind == "waw":
        if w.kind in ("mfma", "smfmac"):
            need = 8 if w.kind == "mfma" else 12
            if x.kind in ("mfma", "smfmac"): return 0 if x.wr == w.wr else need - 2
            return need
        return 0
    if rg in w.cread and x.kind in VALK: return 3 if w.kind == "mfma" else 7
    if w.kind == "vstore" and rg in w.rd[:4]: return 2
    return 0

def listsched(ops, pre=()):
    allops = list(pre) + list(ops); n0 = len(pre); n = len(allops)
    deps = [dict() for _ in range(n)]
    lw = {}; lr = defaultdict(list); lastmem = None
    for k, x in enumerate(allops):
        def add(p, d): deps[k][p] = max(deps[k].get(p, 0), d)
        for rg in x.rd + x.cread:
            if rg in lw: add(lw[rg], edge_dist(allops[lw[rg]], x, rg, "raw"))
        for rg in x.wr:
            if rg in lw: add(lw[rg], edge_dist(allops[lw[rg]], x, rg, "waw"))
            for p in lr[rg]:
                if p != k: add(p, edge_dist(allops[p], x, rg, "war"))
        if x.kind in ("dma", "vload", "vstore", "ds", "wait", "barrier", "smem"):
            if lastmem is not None: add(lastmem, 0)
            lastmem = k
        for a in x.after: add(next(i for i, y in enumerate(allops) if y is a), 0)
        for rg in x.wr: lw[rg] = k; lr[rg] = []
        for rg in x.rd + x.cread: lr[rg].append(k)
    pos = {}; cur = 0
    for k in range(n0): pos[k] = cur; cur += allops[k].nops
    out = []; left = list(range(n0, n)); t = 0; tm = -100; prev = None
    cost = {"mfma": 8, "smfmac": 8, "trans": 8, "vstore": 12}
    while left:
        ready = [k for k in left if all(p in pos and cur - pos[p] - allops[p].nops >= d for p, d in deps[k].items())]
        pick = None
        if ready:
            mf = [k for k in ready if allops[k].kind in ("mfma", "smfmac")]
            ot = [k for k in ready if k not in mf]
            aftermf = prev is not None and prev.kind in ("mfma", "smfmac", "salu", "wait", "ds", "dma", "vstore", "barrier")
            mem = [k for k in ot if allops[k].kind in ("ds", "dma", "vstore", "vload")]
            sc = [k for k in ot if allops[k].kind in ("salu", "wait", "barrier", "smem")]
            va = [k for k in ot if k not in mem and k not in sc]
            vnp = [k for k in va if allops[k].kind != "pk" or t - tm >= 24]
            if mf and (t - tm >= 16 or not (vnp or mem or sc)): pick = mf[0]
            elif sc: pick = sc[0]
            elif mem and (aftermf or allops[mem[0]].after or not mf and not any(allops[k].kind in ("mfma", "smfmac") for k in left) or not vnp): pick = mem[0]
            elif vnp: pick = vnp[0]
            elif va: pick = va[0]
            else: pick = ready[0]
        if pick is None:
            x = nop(1); out.append(x); cur += 1; t += 4; prev = x; continue
        x = allops[pick]
        if x.kind in ("mfma", "smfmac"): t = max(t, tm + 16); tm = t
        if x.kind == "pk": t = max(t, tm + 24)
        pos[pick] = cur; cur += x.nops; t += cost.get(x.kind, 4)
        out.append(x); left.remove(pick); prev = x
    return out, t

COST = {"valu": 1, "trans": 2, "pk": 1, "perm": 1, "ds": 1, "dma": 1, "vstore": 3, "vload": 1}
class Gap:
    def __init__(s, m): s.m, s.shadow, s.mem, s.valu = m, None, [], []
    def load(s): return sum(COST[o.kind] for o in s.mem + s.valu)
    def emit(s):
        return [s.m] + ([s.shadow] if s.shadow else []) + s.mem + s.valu

NT = lambda: 8 * opt.nblocks

class Sched:
    def __init__(s):
        s.groups = []
        s.cur = defaultdict(int)
        s.gaps = []
        s.gstart = []
    def add_group(s, gaps):
        s.gstart.append(len(s.gaps)); s.groups.append(gaps); s.gaps += gaps
    def rng(s, G): return s.gstart[G], s.gstart[G] + len(s.groups[G])
    def put_valu(s, stream, G, op, mingap=0, fat=False):
        a, b = s.rng(G); lo = max(a + mingap, s.cur[stream])
        while lo >= b:
            G += 1; a, b = s.rng(G)
        pick = None
        if not fat:
            for g in range(lo, b):
                if s.gaps[g].load() + COST[op.kind] <= 2: pick = g; break
            if pick is None:
                pick = min(range(lo, b), key=lambda g: (s.gaps[g].load(), g))
        else: pick = lo
        s.gaps[pick].valu.append(op); s.cur[stream] = pick
        return pick
    def put_mem(s, stream, G, op, allowed, pre=None):
        a, b = s.rng(G)
        for gi, si in allowed:
            g = a + gi
            if g >= b or g <= s.cur[stream]: continue
            if any(o.kind in ("dma", "vstore") for o in s.gaps[g].mem): continue
            if pre is not None:
                sg = a + si
                if s.gaps[sg].shadow is not None: continue
                s.gaps[sg].shadow = pre
            s.gaps[g].mem.append(op); s.cur[stream] = g
            return g
        raise AssertionError(("no mem slot", stream, G, op))
    def put_shadow(s, G, op, lo=0, hi=None, stream=None):
        a, b = s.rng(G)
        start = a + lo
        if stream is not None: start = max(start, s.cur[stream] + 1)
        end = b if hi is None else a + hi
        g = start
        while True:
            if g >= end and hi is not None: raise AssertionError(("no shadow", G, op))
            if s.gaps[g].shadow is None and not (g + 1 in s.gstart_set or g + 1 == len(s.gaps)):
                s.gaps[g].shadow = op
                if stream is not None: s.cur[stream] = g
                return g
            g += 1

def fatten(S, G):
    g4, g5 = S.groups[G][4], S.groups[G][5]
    if [o.kind for o in g4.valu] == ["trans"] and [o.kind for o in g5.valu] == ["trans"] and not g4.mem and not g5.mem:
        g4.valu.append(g5.valu.pop()); return True
    return False

def spread(n, lo, hi):
    return [lo + (k * (hi - lo + 1)) // n for k in range(n)]

def body():
    nt = NT(); nb = opt.nblocks
    S = Sched()
    for T in range(nt):
        r, j = T // 8, T % 8
        hasqk = T + 1 < nt
        smf = {1: [0, 1], 2: [2, 3]} if j == 7 else {2: [0], 4: [1], 6: [2], 8: [3]}
        for i in range(16):
            gaps = []
            if hasqk:
                T1 = T + 1; r1 = T1 // 8; kb, qb = i >> 2, i & 3
                special = (T1 % 8 == 0 and kb == 0)
                d = p_reg(T1, qb, 1) if special else V_S + 4*(i & 1)
                for t in range(4):
                    cc = None if t else ("0" if special else V_NEGM + 4*qb)
                    gaps.append(Gap(mfma("v", d, "a", k_reg(kb, t), "a", q_reg(r1, qb, t), cc)))
            db = i >> 1
            for qb in (2*(i & 1), 2*(i & 1) + 1):
                for ks in range(2):
                    gaps.append(Gap(mfma("v", o_reg(db, qb), "a", v_reg(db, ks), "v", p_reg(T, qb, ks), "0" if (j == 0 and ks == 0) else None)))
            for qb in smf.get(i, []):
                gaps.append(Gap(smfmac(qb, p_reg(T, qb, 0))))
            S.add_group(gaps)
    S.gstart_set = set(S.gstart)
    for T in range(nt):
        hasqk = T + 1 < nt
        for i in range(16):
            G = 16*T + i; gp = S.groups[G]
            for n in (2*G + 10, 2*G + 11):
                Tv = n // 32
                if Tv < nt:
                    rem = n % 32
                    gp[0].mem.append(v_read(Tv, rem >> 2, (rem >> 1) & 1, rem & 1))
            kk = ((i + 1) >> 2) + 1; tt = (i + 1) & 3
            Tk = T + 1 if kk < 4 else T + 2
            if Tk < nt: gp[1].mem.append(k_read(Tk, kk & 3, tt))
            if i == 0: Tu, iu = T, 15
            else: Tu, iu = T + 1, i - 1
            if Tu < nt and not (T == 0 and i == 0) and not (Tu % 8 == 0 and iu < 4):
                kb, qb = iu >> 2, iu & 3
                e, cv = soft_ops(V_S + 4*(iu & 1), p_reg(Tu, qb, kb >> 1) + 2*(kb & 1))
                if hasqk:
                    for k in range(4): gp[2 + k].valu.append(e[k])
                    gp[6].valu.append(cv[0]); gp[7].valu.append(cv[1])
                else:
                    gp[0].valu += e[:1]; gp[1].valu += e[1:3]; gp[2].valu += e[3:] + cv[:1]; gp[3].valu += cv[1:]
            need = None; lg = "auto"; vm = None
            if i == 10:
                need = [x for x in (("K", T + 2), ("V", T + 1)) if x[1] < nt]
                vm = "auto" if need else None; lg = 0
            gp[-1].shadow = wait(vm=vm, lg=lg, need=need)
            if i == 11: gp[0].shadow = barrier()
    DM = [(1, 1), (6, 5)]
    for T in range(1, nt):
        lst = []
        if T + 5 < nt: lst += [k_dma(T + 5, t) for t in range(4)]; S.put_shadow(16*T + 10, k_soff(T + 5), 2, 6)
        if T + 4 < nt: lst += [v_dma(T + 4, u) for u in range(4)]; S.put_shadow(16*T + 10, v_soff(T + 4), 2, 6)
        for k, (m, d) in enumerate(lst):
            S.put_mem("kv", 16*T + 11 + k // 2, d, [DM[k & 1]], pre=m)
    extra = [("V", 1, 0), ("K", 2, 2), ("V", 2, 5), ("K", 3, 7), ("K", 4, 11), ("V", 3, 13), ("K", 5, 18), ("V", 4, 20)]
    for kind, Tt, G in extra:
        so = k_soff(Tt) if kind == "K" else v_soff(Tt)
        if G == 0: S.groups[0][0].shadow = so
        else: S.put_shadow(G - 1, so, 2, 5)
        for t in range(4):
            m, d = (k_dma if kind == "K" else v_dma)(Tt, t)
            S.put_mem("kv0", G + t // 2, d, [DM[t & 1]], pre=m)
    for o in late_setup: S.put_shadow(0, o, 0, stream="late")
    assert S.cur["late"] < S.gstart[15]
    if nb > 1:
        for k, G in enumerate((15, 15, 16, 16, 17, 17, 22)):
            m, d = q_dma(16 + k); S.put_mem("qd", G, d, DM, pre=m)
    if opt.jit_every:
        for k in range(opt.jit_first, 8):
            G = int((k - opt.jit_first) * opt.jit_every * 1.6) + opt.jit_g0
            while G % 16 in (10, 11, 12, 13, 14, 15, 0, 1): G += 1
            ld, ad = jit_ops()
            g = S.put_mem("jit", G, ld, [(6, None), (1, None), (7, None)])
            S.cur["jit"] = g; S.put_valu("jit", G, ad)
    for r in range(nb - 1):
        T = 8*r + 7
        for qb in range(4):
            G = 16*T + 1 + qb
            x = p_reg(T + 1, qb, 1)
            e, cv = soft_ops(x, p_reg(T + 1, qb, 0))
            ops = max_ops(x, qb) + e + ["gap1"] + cv
            a, b = S.rng(G)
            pos = [1, 1, 2, 2, None, 3, 3, 3, None, 4, 4, 4, 5, 5, 5, 5, 5, 6, 6, 6, 6, 7, None, 7, 7]
            pos = [1, 1, 2, None, 3, 3, 3, None, 4, 4, 4, 4, 4, 5, 5, 5, 5, 5, 6, 6, 6, None, 7, 7]
            assert len(pos) == len(ops), (len(pos), len(ops))
            for p_, o in zip(pos, ops):
                if isinstance(o, str): continue
                gp = S.groups[G][p_]
                if o.kind == "perm" and gp.shadow is None: gp.shadow = nop(1)
                gp.valu.append(o)
    tail = []; stores = []
    for r in range(nb):
        T = 8*r + 7; last = (r == nb - 1)
        for qb in range(4):
            G = 16*T + 3 + qb//2
            for o in l_ops(r, qb, not last):
                if o.kind == "salu": S.put_shadow(G + 2, o, stream="lor")
                else: S.put_valu("l", G, o)
        items = [(u, qb) for u in range(4) for qb in range(4)]
        avail = {it: 16*T + max(4*it[0] + 3 + (it[1] >> 1), 5 + (it[1] >> 1)) for it in items}
        plan = []
        if last:
            for u, qb in items: plan.append(((u, qb), 16*T + 4*u + 5 + qb, 16*T + 4*u + 6 + qb, None))
        else:
            dead = {it: 16*T + 16 + 4*it[0] + (it[1] >> 1) for it in items}
            slots = [16*T + opt.st_g0 + (opt.st_sp * n) // 10 for n in range(16)]
            left = list(items); direct = []
            for sl in slots:
                cand = [it for it in left if avail[it] + 1 <= sl and sl < dead[it]]
                if not cand: continue
                it = min(cand, key=lambda x: dead[x]); left.remove(it); direct.append((it, sl))
            used = [sl for _, sl in direct]
            rest = [sl for sl in slots if sl not in used]
            assert all(sl > max(used) for sl in rest), (slots, used)
            for it, sl in direct: plan.append((it, sl - 1, sl, None))
            busy = defaultdict(int)
            for it, sl in direct: busy[sl - 1] += 1
            for n, (it, sl) in enumerate(zip(left, rest)):
                g = min(range(avail[it], dead[it]), key=lambda x: (busy[x], -x)); busy[g] += 1
                plan.append((it, g, sl, A_PARK + 4*n))
            assert len(left) <= 10
        for (u, qb), G, Gs, park in sorted(plan, key=lambda x: x[1]):
            mul, cv, st = epi_ops(r, u, qb, park)
            if G >= 16*nt:
                tail.append((mul, cv, st)); continue
            ng = len(S.groups[G])
            if opt.pk_epi and ng >= 8 and fatten(S, G):
                S.groups[G][4].valu += mul
                S.cur["epi"] = S.gstart[G] + 5
                for o in cv: S.put_valu("epi", G, o)
                assert park is not None or S.cur["epi"] < S.gstart[G + 1]
                assert last or S.cur["epi"] < S.gstart[dead[(u, qb)]] + 4
            elif opt.pk_epi:
                S.groups[G][ng - 2].valu += mul
                S.groups[G][ng - 1].valu += cv
            else:
                S.cur["epi"] = 0
                for o in mul + cv: S.put_valu("epi", G, o)
            if Gs >= 16*nt: tail.append(([], [], st)); continue
            stores.append((Gs, st))
    for Gs, st in sorted(stores, key=lambda x: x[0]):
        nn = len(S.groups[Gs])
        S.put_mem("epist", Gs, st, [(7, None), (6, None), (1, None), (2, None)] if nn >= 8 else [(1, None), (2, None), (3, None)])
    for r in range(nb - 1):
        rd = spread(16, 16*(8*r + 1) + (10 if r == 0 else 0), 16*(8*r + 6) + 8)
        for k in range(16):
            kap = 16*(r + 1) + k; G = rd[k]
            S.put_shadow(G - 1, wait(vm="auto", need=[("Q", kap)]), 2, 7)
            S.groups[G][1].mem.append(q_read(kap))
            nxt = rd[k + 1] if k < 15 else G + 6
            ops = prescale_ops(V_RAW + 4*(kap & 1), q_reg(r + 1, k >> 2, k & 3), opt.pk_pre)
            last_g = min(nxt, G + 6)
            if opt.pk_pre:
                gf = G + 1 + (last_g - G) * 8 // 16
                for o, g in zip(ops[:8], spread(8, G + 1, max(G + 1, gf - 1))): S.put_valu("pre", g, o)
                while S.cur["pre"] >= S.gstart[gf] + 4 or not fatten(S, gf): gf += 1
                S.groups[gf][4].valu += ops[8:12]; S.cur["pre"] = S.gstart[gf] + 5
                for o, g in zip(ops[12:], [gf, gf] + spread(6, gf, max(gf, last_g))): S.put_valu("pre", g, o)
            else:
                for o, g in zip(ops, spread(len(ops), G + 1, last_g)): S.put_valu("pre", g, o)
            k2 = kap + NQS
            if k2 < 16*nb:
                g = G + 2
                while True:
                    if g % 16 in (15, 0, 1):
                        try:
                            m, d = q_dma(k2)
                            S.put_mem("qd", g, d, DM, pre=m); break
                        except AssertionError: pass
                    g += 1
    c = []
    for G, gp in enumerate(S.groups):
        if opt.sgrp:
            gs = [int(x) for x in opt.sgrp.split('_')]
            if G in gs: c += stamp()
            for g in gp:
                e = g.emit()
                if G in gs and g.shadow is not None and g.shadow.kind == "wait" and g.shadow.vm is not None:
                    e = e[:1] + stamp() + e[1:2] + stamp() + e[2:]
                c += e
            continue
        if G % 16 == 0 and ((G // 16) in [int(x) for x in opt.sper.split('_')] if opt.sper else (G // 16) % 8 in (0, 1, 7)): c += stamp()
        for g in gp: c += g.emit()
    c += stamp()
    c.append(nop(8))
    for mul, cv, st in tail: c += mul + cv + [st]
    c += stamp()
    per = [sum(max(16, 8 + 4*g.load()) for gp in S.groups[16*T:16*T+16] for g in gp) for T in range(nt)]
    stats = dict(per=per, gaps=len(S.gaps), slots=sum(g.load() for g in S.gaps),
                 est_cycles=sum(max(16, 8 + 4*g.load()) for g in S.gaps),
                 under=sum(max(0, 2 - g.load()) for g in S.gaps), over=sum(max(0, g.load() - 2) for g in S.gaps))
    return c, stats

def resolve(code):
    n = len(code)
    isds = [x.kind == "ds" for x in code]
    isvm = [x.kind in ("dma", "vload", "vstore") for x in code]
    lgw = [k for k, x in enumerate(code) if x.kind == "wait" and x.lg is not None]
    vmw = [k for k, x in enumerate(code) if x.kind == "wait" and x.vm is not None]
    def touched(x): return x.rd + x.wr + x.cread
    lastload = {}
    writer_at = [None]*n
    for k, x in enumerate(code):
        dep = set()
        for rg in touched(x):
            if rg in lastload: dep.add(lastload[rg])
        writer_at[k] = dep
        for rg in x.wr: lastload.pop(rg, None)
        if x.kind in ("ds", "vload"):
            for rg in x.wr: lastload[rg] = k
    for lst, flag, attr, kind in ((lgw, isds, "lg", "ds"), (vmw, isvm, "vm", "vload")):
        for a, w in enumerate(lst):
            x = code[w]
            if getattr(x, attr) != "auto": continue
            end = lst[a + 1] if a + 1 < len(lst) else n
            young = -1
            for k in range(w + 1, end):
                for p in writer_at[k]:
                    if code[p].kind == kind and p < w: young = max(young, p)
            if attr == "vm" and x.need:
                for k in range(w):
                    if code[k].kind == "dma" and code[k].tag in x.need: young = max(young, k)
            if young < 0: setattr(x, attr, None)
            else:
                cnt = sum(flag[young + 1:w])
                setattr(x, attr, min(cnt, 15 if attr == "lg" else 63))
    for x in code:
        if x.kind == "wait":
            parts = []
            if x.vm is not None: parts.append(f"vmcnt({x.vm})")
            if x.lg is not None: parts.append(f"lgkmcnt({x.lg})")
            x.text = "s_waitcnt " + " ".join(parts) if parts else None
    return [x for x in code if x.text is not None]

def check(code):
    errs = []
    pos = 0
    P = []
    for x in code:
        P.append(pos); pos += 0 if x.kind == "label" else x.nops
    def dist(a, b): return P[b] - P[a] - code[a].nops
    lastw = {}; lastc = {}; laststore = {}
    dsq = []; vmq = []; done = set()
    smem_pending = set()
    dma_by_tag = defaultdict(list); read_by_tag = defaultdict(list)
    done_at = {}; barriers = []
    def slot_of(tag):
        if tag[0] == "P": return [("Q", 0), ("Q", 1), tag, ("V", 3), tag, ("K", 2), tag, ("K", 3)][tag[1]]
        return (tag[0], tag[1] & 3) if tag[0] in "KV" else ("Q", tag[1] % NQS)
    shared = lambda tag: tag[0] in "KV" or tag == ("P", 3)
    slot_last = {}
    VAL = ("valu", "trans", "pk", "perm")
    for k, x in enumerate(code):
        if x.kind == "wait":
            if x.lg is not None:
                while len(dsq) > x.lg: p = dsq.pop(0); done.add(p); done_at[p] = k
                if x.lg == 0: smem_pending.clear()
            if x.vm is not None:
                while len(vmq) > x.vm: p = vmq.pop(0); done.add(p); done_at[p] = k
            continue
        if x.kind == "barrier": barriers.append(k); continue
        def E(msg, p): errs.append(f"[{k}] {x.text}  <- [{p}] {code[p].text}: {msg}")
        for rg in x.rd + x.cread + x.wr:
            p = lastw.get(rg)
            if p is None: continue
            w = code[p]; d = dist(p, k)
            isread = rg in x.rd or rg in x.cread
            if w.kind in ("ds", "vload"):
                if p not in done: E("load not waited", p)
            elif w.kind in ("mfma", "smfmac"):
                need = 8 if w.kind == "mfma" else 12
                if x.kind in ("mfma", "smfmac"):
                    if rg in x.rd:
                        if d < need: E("mfma D->A/B", p)
                    elif rg in x.cread:
                        if not (x.cread == w.wr and x.kind == w.kind) and d < need - 2: E("mfma D->C overlap", p)
                    else:
                        if d < need - 2 and x.wr != w.wr: E("mfma D->D", p)
                elif d < need: E("mfma D->valu/mem", p)
            elif w.kind in VAL:
                if rg[0] in "va":
                    if x.kind in ("mfma", "smfmac") and isread and d < 2: E("valu->mfma", p)
                    if x.kind == "perm" and isread and d < 2: E("valu->permlane", p)
                    if w.kind == "trans" and x.kind in VAL and x.kind != "trans" and isread and d < 1: E("trans->valu", p)
                    if "readfirstlane" in x.text and d < 1: E("valu->readfirstlane", p)
                if rg[0] == "s":
                    if x.kind in ("dma", "vload", "vstore") and d < 5: E("valu sgpr->vmem", p)
                    if x.kind in VAL and isread and d < 2: E("valu sgpr->valu", p)
            elif w.kind == "salu":
                if rg[0] == "m" and x.kind == "dma" and d < 1: E("m0->dma", p)
        for rg in x.wr:
            p = lastc.get(rg)
            if p is not None and x.kind in VAL and dist(p, k) < (3 if code[p].kind == "mfma" else 7): E("mfma C read -> valu write", p)
            p = laststore.get(rg)
            if p is not None and dist(p, k) < 2: E("store data WAR", p)
        if x.kind == "ds" and x.tag:
            ds = dma_by_tag[x.tag]
            if len(ds) != (2 if x.tag[0] in "QP" else 4): errs.append(f"[{k}] {x.text}: tile {x.tag} has {len(ds)} dma")
            for p in ds:
                if p not in done: E("dma not waited", p)
                elif x.tag[0] in "KV" and not any(done_at[p] < b < k for b in barriers): E("no barrier after dma wait", p)
            if slot_last.get(slot_of(x.tag)) != x.tag: errs.append(f"[{k}] {x.text}: slot holds {slot_last.get(slot_of(x.tag))} not {x.tag}")
            read_by_tag[x.tag].append(k)
        if x.kind == "dma":
            old = slot_last.get(slot_of(x.tag))
            if old is not None and old != x.tag:
                rs = read_by_tag[old]
                exp = {"K": 16, "V": 32, "Q": 2, "P": 2}[old[0]]
                if len(rs) != exp: errs.append(f"[{k}] {x.text}: overwrites {old} after {len(rs)} reads")
                for p in rs:
                    if p not in done: E("slot WAR: read not waited", p)
                    elif shared(old) and not any(done_at[p] < b < k for b in barriers): E("slot WAR: no barrier", p)
            slot_last[slot_of(x.tag)] = x.tag
            dma_by_tag[x.tag].append(k)
        if x.kind == "ds": dsq.append(k)
        if x.kind in ("dma", "vload", "vstore"):
            vmq.append(k)
            if len(vmq) > 63: errs.append(f"[{k}] more than 63 vmem in flight")
        for rg in x.wr: lastw[rg] = k
        for rg in x.cread: lastc[rg] = k
        if x.kind == "vstore":
            for rg in x.rd[:4]: laststore[rg] = k
    return errs

def slow_path():
    L = []
    A = L.append
    Q, K, SS, P, M, T, LA, VF = 128, 144, 176, 184, 188, 189, 192, 64
    VK, VL, VS, MC = 200, 201, 202, 203
    A("s_or_b64 s[54:55], s[46:47], s[48:49]")
    A("s_or_b64 s[54:55], s[54:55], s[50:51]")
    A("s_cmp_eq_u64 s[54:55], 0")
    A("s_cbranch_scc1 L_end")
    A("s_waitcnt vmcnt(0) lgkmcnt(0)")
    A(f"s_lshl_b32 s3, s{S_W}, 12")
    A(f"v_subrev_u32 v{VK}, s3, v{V_OOFF}")
    A(f"v_mbcnt_lo_u32_b32 v{T}, -1, 0")
    A(f"v_mbcnt_hi_u32_b32 v{T}, -1, v{T}")
    A(f"v_lshlrev_b32 v{VL}, 4, v{T}")
    A(f"v_lshrrev_b32 v{M}, 2, v{T}")
    A(f"v_lshlrev_b32 v{M}, 8, v{M}")
    A(f"v_and_b32 v{T}, 3, v{T}")
    A(f"v_lshl_add_u32 v{M}, v{T}, 4, v{M}")
    A(f"v_add_u32 v{VS}, s{S_MQ}, v{M}")
    A("s_mov_b32 s56, 0")
    A("L_s_item:")
    A("s_lshr_b32 s57, s56, 2")
    A("s_lshl_b32 s58, s57, 1")
    A("s_mov_b32 m0, s58")
    A("s_nop 1")
    A(f"s_movrels_b64 s[54:55], s[{S_FLAG}:{S_FLAG+1}]")
    A("s_cmp_eq_u64 s[54:55], 0")
    A("s_cbranch_scc1 L_s_next")
    A("s_mov_b32 m0, s56")
    A("s_nop 1")
    A(f"s_movrels_b32 s59, s{S_QO}")
    A("s_mov_b32 m0, s57")
    A("s_nop 1")
    A(f"s_movrels_b32 s60, s{S_KV}")
    for t in range(4): A(f"buffer_load_dwordx4 v[{Q+4*t}:{Q+4*t+3}], v{V_OOFF}, s[{S_Q}:{S_Q+3}], s59 offen offset:{64*t}")
    A(f"v_mov_b32 v{M}, 0xff800000")
    A("s_mov_b32 s61, s60")
    A("s_mov_b32 s63, 32")
    A("L_s_max:")
    for t in range(4): A(f"buffer_load_dwordx4 v[{K+4*t}:{K+4*t+3}], v{VK}, s[{S_K}:{S_K+3}], s61 offen offset:{64*t}")
    A("s_waitcnt vmcnt(0)")
    for t in range(4): A(f"v_mfma_f32_16x16x32_bf16 v[{SS}:{SS+3}], v[{K+4*t}:{K+4*t+3}], v[{Q+4*t}:{Q+4*t+3}], " + ("0" if t == 0 else f"v[{SS}:{SS+3}]"))
    A("s_nop 9")
    A(f"v_max3_f32 v{M}, v{M}, v{SS}, v{SS+1}")
    A(f"v_max3_f32 v{M}, v{M}, v{SS+2}, v{SS+3}")
    A("s_add_u32 s61, s61, 4096")
    A("s_sub_u32 s63, s63, 1")
    A("s_cmp_lg_u32 s63, 0")
    A("s_cbranch_scc1 L_s_max")
    for sw in ("32", "16"):
        A(f"v_mov_b32 v{T}, v{M}")
        A("s_nop 2")
        A(f"v_permlane{sw}_swap_b32 v{M}, v{T}")
        A("s_nop 1")
        A(f"v_max_f32 v{M}, v{M}, v{T}")
    A(f"v_mul_f32 v{MC}, s{S_C}, v{M}")
    for j in range(32): A(f"v_mov_b32 v{j}, 0")
    for j in range(4): A(f"v_mov_b32 v{LA+j}, 0")
    A("s_mov_b32 s61, s60")
    A("s_mov_b32 s63, 16")
    A("L_s_pv:")
    A(f"s_mov_b32 m0, s{S_MQ}")
    for h in range(2):
        A(f"s_add_u32 s3, s61, {4096*h}")
        for t in range(4): A(f"buffer_load_dwordx4 v[{K+16*h+4*t}:{K+16*h+4*t+3}], v{VK}, s[{S_K}:{S_K+3}], s3 offen offset:{64*t}")
        for t in range(4): A(f"buffer_load_dwordx4 v{VL}, s[{S_V}:{S_V+3}], s3 offen offset:{1024*t} lds")
        A("s_waitcnt vmcnt(0)")
        for db in range(8): A(f"ds_read_b64_tr_b16 v[{VF+4*db+2*h}:{VF+4*db+2*h+1}], v{VS} offset:{64*(db >> 1) + 8*(db & 1)}")
        A("s_waitcnt lgkmcnt(0)")
    for h in range(2):
        for t in range(4): A(f"v_mfma_f32_16x16x32_bf16 v[{SS+4*h}:{SS+4*h+3}], v[{K+16*h+4*t}:{K+16*h+4*t+3}], v[{Q+4*t}:{Q+4*t+3}], " + ("0" if t == 0 else f"v[{SS+4*h}:{SS+4*h+3}]"))
    A("s_nop 9")
    for j in range(8): A(f"v_fma_f32 v{SS+j}, v{SS+j}, s{S_C}, -v{MC}")
    for j in range(8): A(f"v_exp_f32 v{SS+j}, v{SS+j}")
    A("s_nop 1")
    for j in range(4): A(f"v_cvt_pk_bf16_f32 v{P+j}, v{SS+2*j}, v{SS+2*j+1}")
    A("s_nop 2")
    A(f"v_mfma_f32_16x16x32_bf16 v[{LA}:{LA+3}], a[{A_ONE}:{A_ONE+3}], v[{P}:{P+3}], v[{LA}:{LA+3}]")
    for db in range(8):
        o = 4*db
        A(f"v_mfma_f32_16x16x32_bf16 v[{o}:{o+3}], v[{VF+4*db}:{VF+4*db+3}], v[{P}:{P+3}], v[{o}:{o+3}]")
    A("s_nop 3")
    A("s_add_u32 s61, s61, 8192")
    A("s_sub_u32 s63, s63, 1")
    A("s_cmp_lg_u32 s63, 0")
    A("s_cbranch_scc1 L_s_pv")
    A("s_nop 9")
    A(f"v_rcp_f32 v{T}, v{LA}")
    A("s_nop 1")
    for j in range(32): A(f"v_mul_f32 v{j}, v{T}, v{j}")
    for u in range(4):
        for j in range(4): A(f"v_cvt_pk_bf16_f32 v{8*u+j}, v{8*u+2*j}, v{8*u+2*j+1}")
        A(f"buffer_store_dwordx4 v[{8*u}:{8*u+3}], v{V_OOFF}, s[{S_O}:{S_O+3}], s59 offen offset:{64*u}")
    A("s_waitcnt vmcnt(0)")
    A("L_s_next:")
    A("s_add_u32 s56, s56, 1")
    A(f"s_cmp_lt_u32 s56, {4*opt.nblocks}")
    A("s_cbranch_scc1 L_s_item")
    return L

def stamp_out():
    if not opt.stamps: return []
    if opt.probe >= 0:
        n = stamp_n[0]
        ins = 's_memtime' if opt.scyc else 's_memrealtime'
        if opt.pavg:
            spin = lambda n: [f"L_spin{n}:", "s_sleep 2", "s_memrealtime s[54:55]", "s_waitcnt lgkmcnt(0)", "s_sub_u32 s54, s54, s96",
                              "s_cmp_lt_u32 s54, s3", f"s_cbranch_scc1 L_spin{n}"]
            return (["s_waitcnt vmcnt(0)", f"{ins} s[{S_STAMP+2*n}:{S_STAMP+2*n+1}]", "s_load_dwordx2 s[56:57], s[0:1], 32", "s_waitcnt lgkmcnt(0)",
                    "s_mov_b32 s58, 256", "s_mov_b32 s59, 0x20000",
                    f"s_sub_u32 s3, s{S_STAMP+2*opt.probe}, s{S_STAMP+2*opt.probe0}", "v_mov_b32 v2, s3", "v_mov_b32 v1, 0",
                    "s_mov_b64 exec, 1", "buffer_atomic_add v2, v1, s[56:59], 0 offen", "s_waitcnt vmcnt(0)", "s_mov_b64 exec, -1", "s_mov_b32 s3, 10000"] + spin(0) +
                    [f"s_add_u32 s3, s2, s{S_W}", "s_cmp_lg_u32 s3, 0", "s_cbranch_scc1 L_nospin",
                     "buffer_load_dword v2, v1, s[56:59], 0 offen sc0 sc1", "s_waitcnt vmcnt(0)", "v_readfirstlane_b32 s3, v2", "s_nop 3",
                     f"s_lshr_b32 s3, s3, {11 if opt.scyc else 8}", "s_add_u32 s3, s3, 10000"] + spin(1) + ["L_nospin:"])
        return ["s_waitcnt vmcnt(0)", f"{ins} s[{S_STAMP+2*n}:{S_STAMP+2*n+1}]", "s_waitcnt lgkmcnt(0)",
                f"s_sub_u32 s3, s{S_STAMP+2*opt.probe}, s{S_STAMP+2*opt.probe0}", "s_lshr_b32 s3, s3, 1" if opt.scyc else "s_lshl_b32 s3, s3, 2", "s_add_u32 s3, s3, 10000",
                "L_spin:", "s_sleep 2", "s_memrealtime s[56:57]", "s_waitcnt lgkmcnt(0)", f"s_sub_u32 s56, s56, s96",
                "s_cmp_lt_u32 s56, s3", "s_cbranch_scc1 L_spin"]
    L = ["s_waitcnt vmcnt(0)"] + [x.text for x in stamp()] + ["s_load_dwordx2 s[56:57], s[0:1], 40", "s_waitcnt lgkmcnt(0)"]
    n = stamp_n[0]
    L += [stamp_save(k).text for k in range(max(0, n - 12), n)]
    L += ["s_mov_b32 s58, 0x1000000", "s_mov_b32 s59, 0x20000", "s_lshl_b32 s3, s2, 2", f"s_add_u32 s3, s3, s{S_W}", "s_lshl_b32 s3, s3, 10",
          "v_mbcnt_lo_u32_b32 v1, -1, 0", "v_mbcnt_hi_u32_b32 v1, -1, v1", "v_lshl_add_u32 v1, v1, 2, s3", f"v_mov_b32 v2, {n}",
          "buffer_store_dword v2, v1, s[56:59], 0 offen offset:768"]
    for k in range(3): L.append(f"buffer_store_dword v{253+k}, v1, s[56:59], 0 offen offset:{256*k}")
    L += ["s_getpc_b64 s[60:61]", "L_pc2:", "s_load_dwordx2 s[56:57], s[0:1], 32", "s_waitcnt lgkmcnt(0)", "s_mov_b32 s58, 256",
          f"s_sub_u32 s60, s60, L_pc2 - {NAME}", "s_subb_u32 s61, s61, 0", "v_mov_b32 v2, s60", "v_mov_b32 v3, s61", "v_mov_b32 v1, 0",
          "buffer_store_dwordx2 v[2:3], v1, s[56:59], 0 offen"]
    L += ["s_waitcnt vmcnt(0)"]
    return L

HEADER = """; Attention forward, B8 H32 Sq736 Sk512 D128, bf16 in/out.
; q(8,32,736,128) k,v(8,32,512,128) out(8,32,736,128); kernarg: q,k,v,out,debug,ws pointers.
; 256 persistent workgroups x 4 waves (one wave per SIMD, 512 registers); each does three (head, 256-row) blocks.
; S^T = K Q^T and O^T = V^T P^T with 16x16x32 bf16 MFMA; K/V tiles (64 keys) stream through a 4-slot LDS ring by LDS-DMA.
; Softmax shift: per row, the maximum over the first 16 keys stands in for the row maximum (softmax is shift invariant);
; a run-time check on every row sum (must stay below 2^30, NaN fails too) sends the block to a fallback that
; recomputes it with the true row maximum.
; @launch grid=(256,1,1) block=(256,1,1) lds=%d
""" % LDS_BYTES

def sizes(code):
    import subprocess, re, tempfile, os
    texts = sorted({x.text for x in code if x.kind not in ("label", "branch") and "L_" not in x.text and "NSTUBS" not in x.text})
    d = tempfile.mkdtemp()
    open(d + "/a.s", "w").write('.amdgcn_target "amdgcn-amd-amdhsa--gfx950"\n.text\n' + "\n".join(texts) + "\ns_endpgm\n")
    subprocess.run(["clang", "-x", "assembler", "-target", "amdgcn-amd-amdhsa", "-mcpu=gfx950", "-c", d + "/a.s", "-o", d + "/a.o"], check=True)
    o = subprocess.run(["llvm-objdump", "-d", "--mcpu=gfx950", d + "/a.o"], capture_output=True, text=True).stdout
    ad = [int(m.group(1), 16) for m in re.finditer(r"// ([0-9A-F]{12}):", o)]
    assert len(ad) == len(texts) + 1
    d = {t: ad[i+1] - ad[i] for i, t in enumerate(texts)}
    d.update({x.text: 16 for x in code if "buffer_wbl2" in x.text})
    return d

def add_stubs(code):
    opt.nstub_rounds = opt.stub_n0 + opt.stub_n1
    sz = sizes(code)
    k0 = next(i for i, x in enumerate(code) if x.text == "L_main:")
    out = code[:k0+1] + [I('L_stub0:', 'label'), salu(f's_cmp_eq_u32 s{S_WARM}, 1'), I('s_cbranch_scc1 L_ret0', 'branch')]; pos = 8; n = 1; nxt = 4096
    body = code[k0+1:]
    for i, x in enumerate(body):
        if x.kind != "label" and pos >= nxt:
            if out[-1].kind in ("mfma", "smfmac") or pos + sz.get(x.text, 4) + 8 > nxt + 64 - 8:
                if n < 4*opt.nstub_rounds:
                    out += [I(f"L_stub{n}:", "label"), salu(f"s_cmp_eq_u32 s{S_WARM}, 1"), I(f"s_cbranch_scc1 L_ret{n}", "branch")]
                    pos += 8
                n += 1; nxt += 4096
        out.append(x); pos += (40 if x.text.startswith("STUB_CALLS") else 0) if x.kind == "label" else sz.get(x.text, 4)
    for x in out: x.text = x.text.replace("NSTUBS", str(n - 1))
    res = []; used = set()
    for x in out:
        if x.text.startswith("STUB_CALLS"):
            rd = int(x.text[10:])
            if rd >= opt.nstub_rounds: continue
            calls = [salu(f"s_mov_b32 s{S_WARM}, 1")]
            for w in range(4):
                k = 4*rd + w
                if k >= n: continue
                calls += [salu(f"s_cmp_eq_u32 s{S_W}, {w}"), I(f"s_cbranch_scc1 L_stub{k}", "branch")]; used.add(k)
            calls += [I(f"L_ret{rd}:", "label"), salu(f"s_mov_b32 s{S_WARM}, 0")]
            res += calls
        else: res.append(x)
    out = []
    for x in res:
        if x.text.startswith("s_cbranch_scc1 L_ret"):
            k = int(x.text.split("L_ret")[1])
            x.text = f"s_cbranch_scc1 L_ret{k // 4}" if k in used else "s_nop 0"
        out.append(x)
    return out

def generate():
    stamp_n[0] = 0
    main, stats = None, None
    s = setup(); p = prologue(); main, stats = body()
    code = resolve(s + p + main)
    if opt.stubs: code = add_stubs(code)
    errs = check(code)
    if opt.abl:
        k0 = len(s) + len(p) + 60
        def keep(k, x):
            if k < k0: return True
            a = opt.abl
            if 'd' in a and x.kind == "dma" and x.tag[0] in "KV": return False
            if 'q' in a and x.kind == "dma" and x.tag[0] == "Q": return False
            if 'r' in a and x.kind == "ds": return False
            if 'o' in a and x.kind == "vstore": return False
            if 's' in a and x.kind == "smfmac": return False
            if 'e' in a and x.kind == "trans": return False
            if 'c' in a and x.text.startswith("v_cvt_pk"): return False
            if 'p' in a and (x.kind == "pk" or x.text.startswith(("v_lshlrev_b32", "v_and_b32", "v_accvgpr_write"))): return False
            if 'b' in a and x.kind == "barrier": return False
            return True
        code = [x for k, x in enumerate(code) if keep(k, x)]
    lines = [x.text if x.kind == "label" else "  " + x.text for x in code]
    lines += [x if x.endswith(":") else "  " + x for x in stamp_out() + ([] if opt.abl else slow_path())]
    nbytes_guess = "(((L_end - L_pc) >> 10) << 10) - 1024"
    txt = HEADER + f""".amdgcn_target "amdgcn-amd-amdhsa--gfx950"
.text
.globl {NAME}
.p2align 8
.type {NAME},@function
{NAME}:
""" + "\n".join(lines).replace("CODE_LAST_KIB", nbytes_guess) + f"""
L_end:
  s_endpgm
.if L_end - L_main < 65536
  .fill (65536 - (L_end - L_main)) / 4, 4, 0xbf810000
.endif
.section .rodata,"a"
.p2align 6
.amdhsa_kernel {NAME}
  .amdhsa_next_free_vgpr 512
  .amdhsa_next_free_sgpr 102
  .amdhsa_accum_offset 256
  .amdhsa_group_segment_fixed_size 0
  .amdhsa_kernarg_size 48
  .amdhsa_user_sgpr_count 2
  .amdhsa_user_sgpr_kernarg_segment_ptr 1
  .amdhsa_system_sgpr_workgroup_id_x 1
  .amdhsa_float_denorm_mode_32 3
.end_amdhsa_kernel
"""
    return txt, errs, stats

if __name__ == "__main__":
    out = sys.argv[1]
    for a in sys.argv[2:]:
        k, v = a.split("="); t = type(getattr(opt, k)); setattr(opt, k, v if t is str else t(int(v)))
    txt, errs, stats = generate()
    for e in errs[:40]: print("HAZARD", e)
    print(len(errs), "hazards;", stats, len(txt), "chars")
    open(out, "w").write(txt)
    sys.exit(1 if errs else 0)
```

```python
import sys, heapq
from collections import defaultdict
import gen
from gen import *

opt.tail_k = 2
opt.bar_every = 1
opt.vm_sp = 8
opt.st_gap = 32
opt.vm_lat = 120
opt.ld_lat = 9
opt.pk_pre = True
opt.bar_pos = 88
opt.pre_start = 16
opt.dbg_sched = 0
opt.st_gap0 = 99
opt.st_gap2 = 40
opt.wb = 0
opt.vm_burst = 1
opt.q_ahead = 400
opt.tail_st_gap = 14

MEMK = ("ds", "dma", "vstore", "vload")
VMK = ("dma", "vstore", "vload")
SCK = ("salu", "wait", "barrier")
COST2 = {"valu": 1, "trans": 2, "pk": 1, "perm": 1, "ds": 1, "dma": 1, "vstore": 3, "vload": 1}
BIG = 10**9

class Node:
    __slots__ = ("i", "m", "pred", "succ", "est", "dl", "pin", "gap", "pos", "left", "burst")
    def __init__(s, i, m=None):
        s.i, s.m, s.pred, s.succ, s.est, s.dl, s.pin, s.gap, s.pos, s.left, s.burst = i, m, {}, [], 0, BIG, None, None, None, 0, None

class Prog:
    def __init__(s):
        s.M = []; s.F = []; s.node = {}
        s.lw = {}; s.lr = defaultdict(list)
    def edge(s, p, x, dist=0, lat=0):
        if p is x: return
        d, l = x.pred.get(p, (0, 0))
        if p not in x.pred: p.succ.append(x)
        x.pred[p] = (max(d, dist), max(l, lat))
    def add(s, ins, est=0, dl=BIG, pin=None):
        ism = ins.kind in ("mfma", "smfmac")
        x = Node(ins, len(s.M) if ism else None)
        x.est, x.dl, x.pin = est, dl, pin
        if pin is not None: x.est = x.dl = pin
        for rg in ins.rd + ins.cread:
            p = s.lw.get(rg)
            if p: s.dep(p, x, rg, "raw")
        for rg in ins.wr:
            p = s.lw.get(rg)
            if p: s.dep(p, x, rg, "waw")
            for p in s.lr[rg]: s.dep(p, x, rg, "war")
        for rg in ins.wr: s.lw[rg] = x; s.lr[rg] = []
        for rg in ins.rd + ins.cread: s.lr[rg].append(x)
        (s.M if ism else s.F).append(x); s.node[id(ins)] = x
        return x
    def dep(s, p, x, rg, kind):
        d = edge_dist(p.i, x.i, rg, kind)
        lat = 0
        if p.i.kind == "ds" and kind != "war": lat = opt.ld_lat
        elif p.m is None and x.m is not None: lat = 2 if d else 1
        elif p.m is None and (d or (x.i.kind in MEMK + SCK and p.i.kind in VALK)): lat = 1
        s.edge(p, x, d, lat)

def phases():
    nt = NT(); A4 = (0, 1, 2, 3); A, B = (0, 1), (2, 3)
    k = opt.tail_k
    ph = [((T + 1, A4), (T, A4)) for T in range(nt - 1 - k)]
    if k == 0: return ph + [(None, (nt - 1, A4))]
    seq = [(T, A) for T in range(nt - k, nt)] + [(T, B) for T in range(nt - k, nt)]
    prev = (nt - k - 1, A4)
    for x in seq: ph.append((x, prev)); prev = x
    return ph + [(None, prev)]

def body2():
    nt = NT(); nb = opt.nblocks
    P = Prog()
    ph = phases()
    kcount = [0]; vcount = [0]
    reads = defaultdict(list)
    phase_start = []; group_start = []
    un = [0]
    done_db = defaultdict(set)
    items = []
    lnodes = {}
    tailitems = []
    pre_at = {8*r + 0: r for r in range(nb - 1)}
    pre_nodes = {}
    first_kset = True; first_vsets = 0

    def kset(T, kb):
        buf = kcount[0] & 1; kcount[0] += 1
        for t in range(4):
            if T == 1 and (kb == 0 or (kb == 1 and t == 0)): continue
            ins = k_read(T, kb, t, dest=A_K + 16*buf + 4*t)
            reads[("K", T)].append(P.add(ins))
        return A_K + 16*buf
    def vset(T, db):
        buf = vcount[0] & 3; vcount[0] += 1
        u, p = db >> 1, db & 1
        for ks in range(2):
            for hf in range(2):
                if T == 0 and 4*db + 2*ks + hf < 10: continue
                ins = v_read(T, db, ks, hf, dest=A_V + 8*buf + 4*ks + 2*hf)
                reads[("V", T)].append(P.add(ins))
        return A_V + 8*buf

    for pi, (qk, pv) in enumerate(ph):
        phase_start.append(len(P.M))
        if pv and pv[0] in pre_at and pv[1][0] == 0 and pv[0] not in pre_nodes:
            r = pre_at[pv[0]]; lst = []
            for k in range(16):
                kap = 16*(r + 1) + k
                if not kap & 1: w = P.add(wait(vm="auto", need=[("Q", kap >> 1)]))
                rd = P.add(q_read(kap)); P.edge(w, rd)
                ops = [P.add(o) for o in prescale_ops(V_RAW + 4*(kap & 1), q_reg(r + 1, k >> 2, k & 3), opt.pk_pre)]
                if opt.pk_pre:
                    for o in ops[8:12]: o.burst = ops[8:12]
                lst.append((kap, w, rd, ops))
            pre_nodes[pv[0]] = lst
        units = [(qk[0], kb, qb) for kb in range(4) for qb in qk[1]] if qk else []
        pairs = [(pv[0], db, pv[1][j:j+2]) for db in range(8) for j in range(0, len(pv[1]), 2)] if pv else []
        ns = max(len(units), len(pairs))
        smf = {}
        if pv:
            early = pv[0] % 8 == 7
            for n, qb in enumerate(pv[1]):
                smf.setdefault((1 + n // 2) if early else (ns // 8) * (1 + n * (8 // len(pv[1])) // 2 + (0 if len(pv[1]) == 4 else 1)), []).append(qb)
        iu = ip = 0; kb_cur = db_cur = None
        for s_ in range(ns):
            group_start.append(len(P.M))
            if iu < len(units) and iu * ns <= s_ * len(units):
                T1, kb, qb = units[iu]; iu += 1
                if kb != kb_cur: kreg = kset(T1, kb); kb_cur = kb
                special = T1 % 8 == 0 and kb == 0
                d = p_reg(T1, qb, 1) if special else V_S + 4*(un[0] & 1)
                un[0] += 1
                for t in range(4):
                    cc = None if t else ("0" if special else V_NEGM + 4*qb)
                    P.add(mfma("v", d, "a", kreg + 4*t, "a", q_reg(T1 // 8, qb, t), cc))
                if special:
                    for o in max_ops(d, qb):
                        if not isinstance(o, str): P.add(o)
                e, cv = soft_ops(d, p_reg(T1, qb, kb >> 1) + 2*(kb & 1))
                for o in e + cv: P.add(o)
            if ip < len(pairs) and ip * ns <= s_ * len(pairs):
                T0, db, qs = pairs[ip]; ip += 1
                if db != db_cur: vreg = vset(T0, db); db_cur = db
                for qb in qs:
                    for ks in range(2):
                        last = P.add(mfma("v", o_reg(db, qb), "a", vreg + 4*ks, "v", p_reg(T0, qb, ks), "0" if (T0 % 8 == 0 and ks == 0) else None))
                    if T0 % 8 == 7 and db & 1: items.append((T0 // 8, db >> 1, qb, last))
            for qb in smf.get(s_, []):
                P.add(smfmac(qb, p_reg(pv[0], qb, 0)))
                if pv[0] % 8 == 7:
                    r = pv[0] // 8
                    lnodes[(r, qb)] = [P.add(o) for o in l_ops(r, qb, r < nb - 1)]
            while items:
                r, u, qb, last = items.pop(0)
                tailitems.append((r, u, qb, last, None))
                tailitems[-1] = (r, u, qb, last, add_item(P, r, u, qb, last))
    n = len(P.M)
    gs = group_start
    full = lambda T: phase_start[T]
    bars = []
    ps = phase_start + [n]
    bpos = [ps[i] + (ps[i+1] - ps[i]) * opt.bar_pos // 132 for i in range(len(ph))]
    firstuse = {tg: min(y.m for x in lst for y in x.succ if y.m is not None) for tg, lst in reads.items() if lst}
    unpub = [("K", x) for x in range(2, nt)] + [("V", x) for x in range(1, nt)]
    enabled = {("K", x) for x in range(5)} | {("V", x) for x in range(4)}
    enable = {}; freeK = 0; freeV = -1
    blist = list(range(len(ph))) if opt.bar_every == 1 else [0] + list(range(1, nt - 4, 2)) + list(range(nt - 4, len(ph)))
    for bi, pi in enumerate(blist):
        if not unpub: break
        g = bpos[pi]
        nxt = bpos[blist[bi + 1]] if bi + 1 < len(blist) else n
        if all(tg in enabled for tg in unpub) and pi >= nt - 6: pub = list(unpub)
        else: pub = [tg for tg in unpub if firstuse[tg] - opt.ld_lat - 30 < nxt]
        assert all(tg in enabled for tg in pub), (pi, pub)
        unpub = [tg for tg in unpub if tg not in pub]
        free = []
        if pi <= nt - 2 - opt.tail_k:
            free = [("K", x) for x in range(freeK + 1, pi + 2)] + [("V", x) for x in range(freeV + 1, pi + 1)]
            freeK, freeV = pi + 1, pi
        free = [tg for tg in free if tg[1] + 4 < nt]
        w = P.add(wait(vm="auto", lg="bar", need=pub), pin=g - 1)
        b = P.add(barrier(), pin=g); P.edge(w, b, 0, 1)
        w.burst = [x for tg in free for x in reads[tg]]
        for tg in free:
            for x in reads[tg]: x.dl = min(x.dl, g - 1 - 7)
            enable[(tg[0], tg[1] + 4)] = b; enabled.add((tg[0], tg[1] + 4))
        for tg in pub:
            for x in reads[tg]: P.edge(b, x)
        bars.append((g, w, pub))
    assert not unpub
    pubgap = {tg: g for g, w, pub in bars for tg in pub}
    pubw = {tg: w for g, w, pub in bars for tg in pub}
    qplan = {}
    for T0, lst in pre_nodes.items():
        lo = gs[16*T0 + opt.pre_start + (10 if T0 == 0 else 0)]; hi = gs[16*(T0 + 6) + 8]
        for k, (kap, w, rd, ops) in enumerate(lst):
            a = lo + (hi - lo) * k // 16; b = lo + (hi - lo) * (k + 1) // 16
            qplan[kap] = a
            if not kap & 1: w.est = a - 8; w.dl = a - 1
            rd.est = a; rd.dl = a + 4
            for j, o in enumerate(ops): o.dl = min(o.dl, a + 4 + opt.ld_lat + (b - a) * (j + 1) // len(ops))
    jobs = []
    for kind, first in (("K", opt.first_k), ("V", opt.first_v)):
        for T in range(first, nt):
            b = enable.get((kind, T))
            est = b.pin if b else 0
            for t in range(4): jobs.append([est, pubgap[(kind, T)] - opt.vm_lat - 4*(3 - t) - (32 if pubgap.get((kind, T + 1)) == pubgap[(kind, T)] else 0), kind, T, t])
    for pc in range(8, 8*nb):
        est = qplan[2*(pc - NQS) + 1] + 4 + opt.ld_lat + 10 if pc - NQS >= 8 else 110
        est = max(est, qplan[2*pc] - opt.q_ahead)
        for hh in range(2): jobs.append([est, qplan[2*pc] - 8 - opt.vm_lat - 4*(1 - hh), "Q", pc, hh])
    order = []; t = 0
    jobs.sort()
    pend = list(jobs)
    while pend:
        av = [j for j in pend if j[0] <= t]
        if not av: t = min(j[0] for j in pend); continue
        j = min(av, key=lambda j: (j[1], j[2], j[3], j[4])); pend.remove(j); order.append(j); t += (opt.vm_sp + 1 if j[1] > t else 2)
    late = [P.add(o, dl=100) for o in gen.late_setup]
    for a, b in zip(late, late[1:]): P.edge(a, b, 0, 1)
    qfirst = {kap: ops[0] for lst in pre_nodes.values() for kap, w, rd, ops in lst}
    qwait = {kap: w for lst in pre_nodes.values() for kap, w, rd, ops in lst}
    for est, dl, kind, T, t in order:
        if kind == "Q":
            m, d = q_dma(T, t)
            mn = P.add(m); dn = P.add(d, est=est, dl=max(dl, est + 16 + 4*t))
            if 2*(T - NQS) + 1 in qfirst: P.edge(qfirst[2*(T - NQS) + 1], dn, 0, 1)
            P.edge(late[-1], dn); P.edge(dn, qwait[2*T], 0, 1)
        else:
            if t == 0:
                so = P.add(k_soff(T) if kind == "K" else v_soff(T))
                if T >= 8: P.edge(late[-1], so)
            m, d = (k_dma if kind == "K" else v_dma)(T, t)
            mn = P.add(m); dn = P.add(d, est=est, dl=max(dl, est + 16 + 4*t))
            b = enable.get((kind, T))
            if b: P.edge(b, dn)
            P.edge(dn, pubw[(kind, T)], 0, 1)
    if opt.jit_every:
        for k in range(opt.jit_first, 8):
            g = gs[int((k - opt.jit_first) * opt.jit_every * 1.6) + opt.jit_g0]
            ld, ad = jit_ops()
            P.add(ld, est=g, dl=g + 60); P.add(ad, est=g, dl=g + 100)
    plan_stores(P, tailitems, phase_start, gs)
    return schedule(P, phase_start, gs)

def add_item(P, r, u, qb, last):
    mul, cv, st = epi_ops(r, u, qb)
    mn = [P.add(o) for o in mul]
    if opt.pk_epi:
        for o in mn: o.burst = mn
    cn = [P.add(o) for o in cv]
    last_block = r == opt.nblocks - 1
    if last_block and opt.full_line:
        if not u & 1:
            _pp[("half", qb)] = (mn, cn); return None
        o1, s1, o2, s2 = line_ops(r, u >> 1, qb)
        x1 = [P.add(o) for o in o1]; sn1 = P.add(s1); x2 = [P.add(o) for o in o2]; sn2 = P.add(s2)
        sn1.burst = (_pp[("half", qb)], (mn, cn), x1, x2, sn2)
        return sn1
    park = None if last_block else park_plan(r).get((u, qb))
    if isinstance(park, tuple): park = A_Q[r & 1] + 4*park[1]
    if park is None: sn = P.add(st)
    else:
        b = V_O + 32*u + 8*qb
        for j in range(4): P.add(valu(f"v_accvgpr_write_b32 {ar(park+j)}, {vr(b+j)}", R("v", b+j), R("a", park+j)))
        sn = P.add(vstore(park, V_OOFF, S_O, S_QO + 4*r + qb, 64*u, "a"))
    sn.burst = (mn, cn)
    return sn

_pp = {}
def park_plan(r):
    if ("plan", r) not in _pp:
        sp = (opt.st_gap2 if r == opt.nblocks - 2 else opt.st_gap) / 8.25
        items = [(u, qb) for u in range(4) for qb in range(4)]
        avail = {it: max(4*it[0] + 3 + (it[1] >> 1), 5) + 1.5 for it in items}
        dead = {it: 16 + 4*it[0] + (it[1] >> 1) - 0.5 for it in items}
        left = list(items); t = 6.5; slots = {}
        while True:
            cand = [it for it in left if avail[it] <= t < dead[it]]
            if cand:
                it = min(cand, key=lambda x: dead[x]); left.remove(it); slots[it] = t
            elif not any(t < dead[it] for it in left): break
            t += min(sp, opt.st_gap0 / 8.25)
        for it in left: slots[it] = t; t += sp
        nq = max(0, len(left) - 10)
        _pp[("plan", r)] = {it: (("q", 16 - nq + n) if n < nq else A_PARK + 4*(n - nq)) for n, it in enumerate(left)}
        _pp[("slot", r)] = slots
    return _pp[("plan", r)]

def plan_stores(P, tailitems, phase_start, gs):
    nb = opt.nblocks
    for r, u, qb, last, sn in tailitems:
        if r < nb - 1:
            park_plan(r)
            t = _pp[("slot", r)][(u, qb)]
            g = gs[16*(8*r + 7) + int(t)] + int(8*(t - int(t)))
            sn.est = g; sn.dl = min(sn.dl, g + (12 if opt.vm_burst == 1 else 40))
    if opt.wb:
        g = max(sn.dl for r, u, qb, last, sn in tailitems if r == nb - 2) + opt.wb
        P.add(I(f"s_cmp_eq_u32 s{S_WB}, 0\n  s_cbranch_scc0 L_nowb\n  buffer_wbl2 sc1\nL_nowb:", "salu", nops=2), pin=g)
        print("write-back at gap", g, "phases", phase_start[19:])
    n = len(P.M); tv = ts = 0
    for r, u, qb, last, sn in sorted([x for x in tailitems if x[0] == nb - 1 and x[4]], key=lambda x: x[3].m):
        if opt.full_line:
            h0, h1, x1, x2, sn2 = sn.burst
            tv = max(last.m + 8, tv + 8)
            for (mn, cn), t0 in ((h0, tv - 4), (h1, tv)):
                if t0 + 3 < n:
                    for o in mn: o.dl = t0
                    for j, o in enumerate(cn): o.dl = t0 + 1 + j // 2
            for xs, st, t0 in ((x1, sn, tv + 4), (x2, sn2, tv + 6)):
                if t0 + 2 < n:
                    for o in xs: o.dl = t0
                ts = max(t0 + 2, ts + opt.tail_st_gap)
                if ts < n: st.dl = ts
            continue
        mn, cn = sn.burst
        tv = max(last.m + 8, tv + 4); ts = max(tv + 5, ts + opt.tail_st_gap)
        if tv + 3 < n:
            for o in mn: o.dl = tv
            for j, o in enumerate(cn): o.dl = tv + 1 + j // 2
        if ts < n: sn.dl = ts

def schedule(P, phase_start, gs):
    M, F = P.M, P.F; n = len(M)
    indeg = {}
    for x in F: indeg[x] = sum(1 for y in x.succ if y.m is None)
    stack = [x for x in F if indeg[x] == 0]; seen = 0
    while stack:
        x = stack.pop(); seen += 1
        for y in x.succ:
            d, l = y.pred[x]
            lim = (y.m - max(l, 1)) if y.m is not None else (y.dl - l if y.dl < BIG else BIG)
            if x.pin is None: x.dl = min(x.dl, lim)
        for p in x.pred:
            if p.m is None:
                indeg[p] -= 1
                if indeg[p] == 0: stack.append(p)
    assert seen == len(F), "cycle"
    for k, x in enumerate(F): x.left = len(x.pred); x.pos = None
    seq = {x: k for k, x in enumerate(F)}
    pool = [x for x in F if x.left == 0]
    gaps = []; pos = [0]; out_nops = 0
    lastvm = -99; lastst = -99; late = []; bst = [-99, 0]
    def placed(x, g):
        x.gap = g; x.pos = pos[0]; pos[0] += x.i.nops
        for y in x.succ:
            if y.m is None:
                y.left -= 1
                if y.left == 0: pool.append(y)
    def short(x, at):
        return max([d - (at - p.pos - p.i.nops) for p, (d, l) in x.pred.items()] + [0])
    def latok(x, g):
        for p, (d, l) in x.pred.items():
            if p.m is None and p.gap + (l if p.i.kind != "ds" or x.i.kind in VALK else 0) > g: return False
        return True
    for g in range(n + 1):
        final = g == n
        cur = []
        if not final:
            m = M[g]
            for p in m.pred:
                assert p.pos is not None, ("unplaced predecessor", g, m.i, p.i, p.dl, p.est)
            s_ = short(m, pos[0])
            if s_: cur.append(nop(s_)); pos[0] += s_; out_nops += s_
            placed(m, g); cur.append(m.i)
        gp = dict(pre=cur, shadow=[], mem=[], valu=[]); gaps.append(gp)
        load = 0
        def emit(x, where):
            nonlocal load, lastvm, lastst, out_nops
            pool.remove(x)
            s_ = short(x, pos[0])
            if s_: gp[where].append(nop(s_)); pos[0] += s_; load += s_; out_nops += s_
            if x.dl < g: late.append((g, x.dl, x.i.text))
            placed(x, g); gp[where].append(x.i)
            if x.i.kind in VMK:
                if g - lastvm <= 4 and bst[1] < opt.vm_burst: bst[1] += 1
                else: bst[0] = g; bst[1] = 1
                lastvm = g
            if x.i.kind == "vstore": lastst = g
            load += COST2.get(x.i.kind, 0)
        key = lambda x: (x.dl, seq[x])
        if final:
            while pool:
                c = [x for x in pool if short(x, pos[0]) == 0] or pool
                emit(min(c, key=lambda x: seq[x]), "valu")
            break
        sc = sorted([x for x in pool if x.i.kind in SCK and x.est <= g and (latok(x, g) or x.dl <= g)], key=key)
        m0s = [x for x in sc if "m0" in x.i.text]
        if sc and sc[0].dl > g + 3 and m0s: emit(m0s[0], "shadow")
        elif sc and (sc[0].dl <= g + 40 or g % 2): emit(sc[0], "shadow")
        elif not gp["shadow"]: pos[0] += 0
        while True:
            sc = [x for x in pool if x.i.kind in SCK and x.dl <= g and x.est <= g]
            if not sc: break
            emit(min(sc, key=key), "shadow"); load += 1
        def vm_ok(x):
            if x.i.kind not in VMK or x.dl <= g: return True
            stg = opt.tail_st_gap if g >= phase_start[-1 - 2*opt.tail_k] else min(opt.st_gap, opt.st_gap2, opt.st_gap0) - 4
            if x.i.kind == "vstore" and g - lastst < stg: return False
            if opt.vm_burst > 1:
                if g - lastvm < 2: return False
                return (g - lastvm <= 4 and bst[1] < opt.vm_burst) or g - bst[0] >= bst[1] * opt.vm_sp
            return g - lastvm >= (opt.vm_sp if x.i.kind != "vstore" else 3)
        def cands(kinds):
            return sorted([x for x in pool if x.i.kind in kinds and x.est <= g and latok(x, g) and short(x, pos[0]) == 0 and vm_ok(x)], key=key)
        mem = cands(MEMK); val = cands(("valu", "trans", "perm"))
        pkc = cands(("pk",))
        burst = None
        if pkc:
            b = pkc[0]
            if all(y in pool or y.pos is not None for y in b.burst) and b.dl - g <= 10:
                avail = sum(COST2[x.i.kind] for x in val)
                if avail >= 4 or b.dl <= g: burst = [y for y in b.burst if y.pos is None]
        cap = 4 if burst else 2
        nvm = 0
        for x in mem:
            forced = x.dl <= g
            c = COST2[x.i.kind]
            if x.i.kind in VMK and nvm and not forced: continue
            if not forced:
                if load + min(c, 2) > cap: continue
                inburst = opt.vm_burst > 1 and x.i.kind in VMK and g - lastvm <= 4 and val and val[0].dl > g
                if val and val[0].i.kind == "trans" and load == 0 and key(val[0]) < key(x) and not inburst: continue
                if load == 0 and cap == 2 and c == 1:
                    other = [y for y in mem + val if y is not x and COST2[y.i.kind] == 1 and not (y.i.kind in VMK and x.i.kind in VMK)]
                    if not other and any(y.i.kind == "trans" for y in val) and x.dl > g + 2 and not inburst: continue
            if short(x, pos[0]) and not forced: continue
            emit(x, "mem"); nvm += x.i.kind in VMK
        while True:
            f = [x for x in pool if x.i.kind in MEMK and x.dl <= g and x.est <= g]
            if not f or gp["valu"]: break
            emit(min(f, key=key), "mem")
        while True:
            val = cands(("valu", "trans", "perm"))
            f = sorted([x for x in pool if x.i.kind in VALK and x.dl <= g and x.est <= g and x.i.kind != "pk"], key=key)
            if f: emit(f[0], "valu"); continue
            fit = [x for x in val if load + COST2[x.i.kind] <= cap]
            if not fit: break
            x = fit[0]
            if cap - load == 2 and COST2[x.i.kind] == 1:
                ones = [y for y in fit if COST2[y.i.kind] == 1]
                tr = [y for y in fit if y.i.kind == "trans"]
                follow = any(y.left == 1 and y.m is None and y.i.kind in ("valu",) and y.pred[x][0] == 0 for y in x.succ)
                if len(ones) < 2 and tr and not follow and x.dl > g + 1: x = tr[0]
            emit(x, "valu")
        if burst:
            for y in burst: emit(y, "valu")
        while True:
            f = [x for x in pool if x.dl <= g and x.est <= g]
            if not f: break
            emit(min(f, key=key), "valu")
        gp["load"] = load
    assert not pool and all(x.pos is not None for x in F)
    dsn = 0; ds_gap = []; prod = {}
    need = [-1]*(n + 2)
    for g, gp in enumerate(gaps):
        for part in ("pre", "shadow", "mem", "valu"):
            for ins in gp[part]:
                for rg in ins.rd + ins.cread + ins.wr:
                    if rg in prod:
                        gi = g - 1 if part == "pre" else g
                        need[gi] = max(need[gi], prod[rg])
                for rg in ins.wr: prod.pop(rg, None)
                if ins.kind == "ds":
                    for rg in ins.wr: prod[rg] = dsn
                    ins.lg = dsn; ds_gap.append(g); dsn += 1
    before = [0]*(n + 2)
    for g in range(n + 1): before[g + 1] = before[g] + sum(1 for part in ("mem", "valu") for i in gaps[g][part] if i.kind == "ds")
    cov = -1; extra = 0
    for g in range(n + 1):
        for ins in gaps[g]["shadow"]:
            if ins.kind == "wait" and ins.lg == "bar":
                x = P.node[id(ins)]
                tgt = max([y.i.lg for y in x.burst] + [-1])
                assert tgt < before[g]
                if tgt > cov: ins.lg = min(15, before[g] - 1 - tgt); cov = before[g] - 1 - ins.lg
                else: ins.lg = None
        if need[g] > cov:
            h = g
            while h > ds_gap[need[g]] + 2 and h > g - 4 and gaps[h]["shadow"]: h -= 1
            if gaps[h]["shadow"] or h <= ds_gap[need[g]]:
                h = g
                assert ds_gap[need[g]] < g, ("read and use in one gap", g)
                wv = [i for i in gaps[g]["shadow"] if i.kind == "wait" and i.lg is None]
            else: wv = []
            tgt = max(need[g], before[max(0, h - 6)] - 1)
            cnt = min(15, before[h] - 1 - tgt)
            if wv: wv[0].lg = cnt
            else:
                if gaps[h]["shadow"]: extra += 1; gaps[h]["load"] = gaps[h].get("load", 0) + 1
                gaps[h]["shadow"].append(wait(lg=cnt))
            cov = before[h] - 1 - cnt
    for g in range(n + 1):
        for part in ("mem", "valu"):
            for ins in gaps[g][part]:
                if ins.kind == "ds": ins.lg = None
    c = []
    sper = [int(x) for x in opt.sper.split('_')] if opt.sper else [0, 1, 7, 8, 9, 15, 16, 17] + list(range(20, len(phase_start)))
    marks = {phase_start[T] for T in sper if T < len(phase_start)}
    if opt.sgrp: marks = {gs[int(x)] for x in opt.sgrp.split('_')}
    for g, gp in enumerate(gaps):
        if g in marks or g == n: c += stamp()
        lst = gp["pre"] + gp["shadow"] + gp["mem"] + gp["valu"]
        if opt.sgrp and min(marks) <= g <= max(marks):
            for ins in lst:
                if ins.kind in VMK or ins.kind == "barrier" or (ins.kind == "wait" and ins.vm is not None): c += stamp() + [ins] + stamp()
                else: c.append(ins)
        else: c += lst
    c += stamp()
    cyc = [max(16, 8 + 4*gp.get("load", 0)) for gp in gaps[:n]]
    ps = phase_start + [n]
    stats = dict(nbar=sum(1 for x in F if x.i.kind == 'barrier'), per=[sum(cyc[a:b]) for a, b in zip(ps, ps[1:])], gaps=n, est_cycles=sum(cyc), tail_instr=len(gaps[n]["valu"]),
                 under=sum(max(0, 2 - gp.get("load", 0)) for gp in gaps[:n]), nops=out_nops, extra_waits=extra, late=len(late))
    if opt.dbg_sched:
        for l in late[:40]: print("late", l)
    return c, stats

opt.first_k = 3
opt.first_v = 2
gen.body = body2

if __name__ == "__main__":
    out = sys.argv[1]
    for a in sys.argv[2:]:
        k, v = a.split("="); t = type(getattr(opt, k)); setattr(opt, k, v if t is str else t(int(v)))
    txt, errs, stats = gen.generate()
    for e in errs[:40]: print("HAZARD", e)
    print(len(errs), "hazards;", stats, len(txt), "chars")
    open(out, "w").write(txt)
    sys.exit(1 if errs else 0)
```

```python
import sys, struct, math, json
from collections import defaultdict

NAME = "standalone__gqa_softmax__near_ridge_kernel"

class Opt:
    stamps = False
    force_slow = False
    code_prefetch = False
    pk_epi = True
    pk_pre = False
    nblocks = 3
    kv_pol = ''
    q_pol = ''
    o_pol = ''
    olast_pol = ''
    olastb_pol = ''
    o1_pol = ''
    full_line = 1
    late_issue = 1
    st_sp = 25
    st_g0 = 6
    scyc = 0
    sper = ''
    sgrp = ''
    line_prefetch = 1
    head_prefetch = 1
    stub_n0 = 1
    stub_n1 = 2
    stub_late = 1
    stub_early = 0
    nstub_rounds = 4
    jit_every = 29
    jit_first = 2
    jit_g0 = 23
    stubs = 1
    abl = ''
    lin_dma = 0
    probe0 = 0
    pavg = 0
    probe = -1
opt = Opt()

def f2u(x): return struct.unpack("<I", struct.pack("<f", x))[0]
CSCALE = f2u(math.log2(math.e) / math.sqrt(128.0))
THR = f2u(2.0 ** 30)

VE = 0
KB = 65552
VPAR = 32768 + 8
QB = 131088
QW = 7168
NQS = 3
LDS_BYTES = 163840

V_O = 0
V_P = 128
V_S = 192
V_NEGM = 200
V_RAW = 216
V_T = 224
V_JIT = 252
A_DUMMY = 255
V_RCP = 232
V_MT = 224
V_LT = 226
V_KADDR = 240
V_VADDR = 242
V_QADDR = 249
V_KOFF = 245
V_VOFF = 246
V_OOFF = 247
V_IDX = 248
V_OOFF2 = 251
V_TMP = 64
A_Q = [0, 64]
A_K = 128
A_V = 160
A_L = 192
A_ONE = 208
A_PARK = 212
S_K, S_V, S_Q, S_O = 4, 8, 12, 16
S_KV = 20
S_W = 23
S_QO = 24
S_MK, S_MV, S_MQ = 36, 37, 38
S_SK, S_SV = 39, 40
S_LMASK = 58
VCC = ("s", 106)
S_MQ1 = 62
S_C = 42
S_THR = 44
S_FLAG = 46
S_CMP = 52
S_T = 54
S_WB = 98
S_WARM = 99
S_PC = 100
S_STAMP = 64

def vr(b, n=1): return f"v{b}" if n == 1 else f"v[{b}:{b+n-1}]"
def ar(b, n=1): return f"a{b}" if n == 1 else f"a[{b}:{b+n-1}]"
def sr(b, n=1): return f"s{b}" if n == 1 else f"s[{b}:{b+n-1}]"
def R(c, b, n=1): return [(c, b + i) for i in range(n)]

class I:
    __slots__ = ("text", "kind", "rd", "wr", "tag", "cread", "nops", "need", "vm", "lg", "after")
    def __init__(s, text, kind, rd=(), wr=(), tag=None, cread=(), nops=1):
        s.text, s.kind, s.rd, s.wr, s.tag, s.cread, s.nops = text, kind, list(rd), list(wr), tag, list(cread), nops
        s.need = None; s.vm = None; s.lg = None; s.after = []
    def __repr__(s): return s.text

def mfma(dc, d, ac, a, bc, b, c=None):
    f = {"v": vr, "a": ar}
    if c is None: ct, cr = f[dc](d, 4), R(dc, d, 4)
    elif c == "0": ct, cr = "0", []
    else: ct, cr = f[dc](c, 4), R(dc, c, 4)
    return I(f"v_mfma_f32_16x16x32_bf16 {f[dc](d,4)}, {f[ac](a,4)}, {f[bc](b,4)}, {ct}", "mfma",
             rd=R(ac, a, 4) + R(bc, b, 4), wr=R(dc, d, 4), cread=cr)
def smfmac(qb, pb):
    return I(f"v_smfmac_f32_16x16x64_bf16 {ar(A_L+4*qb,4)}, {ar(A_ONE,4)}, {vr(pb,8)}, {vr(V_IDX)}", "smfmac",
             rd=R("a", A_ONE, 4) + R("v", pb, 8) + R("v", V_IDX), wr=R("a", A_L + 4*qb, 4), cread=R("a", A_L + 4*qb, 4))
def valu(text, rd, wr, kind="valu"): return I(text, kind, rd, wr)
def vexp(r): return I(f"v_exp_f32 {vr(r)}, {vr(r)}", "trans", R("v", r), R("v", r))
def vcvt(d, a, b): return I(f"v_cvt_pk_bf16_f32 {vr(d)}, {vr(a)}, {vr(b)}", "valu", R("v", a) + R("v", b), R("v", d))
def salu(text, rd=(), wr=()): return I(text, "salu", rd, wr)
def nop(n): return I(f"s_nop {n-1}", "nop", nops=n)
def wait(vm=None, lg=None, need=None):
    i = I("s_waitcnt", "wait"); i.vm, i.lg, i.need = vm, lg, need; return i
def barrier(): return I("s_barrier", "barrier")
def dsr(dc, d, addr, off, tag):
    f = {"v": vr, "a": ar}[dc]
    return I(f"ds_read_b128 {f(d,4)}, {vr(addr)} offset:{off}", "ds", R("v", addr), R(dc, d, 4), tag)
def dst(d, addr, off, tag):
    return I(f"ds_read_b64_tr_b16 {ar(d,2)}, {vr(addr)} offset:{off}", "ds", R("v", addr), R("a", d, 2), tag)
def setm0(sbase, imm):

    return I(f"s_add_u32 m0, {sr(sbase)}, {imm}", "salu", R("s", sbase), [("m", 0)])
def pol(p): return ''.join(' ' + x for x in p.split('_') if x)
def dma(voff, srd, soff, imm, tag):
    o = f" offset:{imm}" if imm else ""
    o += pol(opt.q_pol if srd == S_Q else opt.kv_pol)
    return I(f"buffer_load_dwordx4 {vr(voff)}, {sr(srd,4)}, {sr(soff)} offen{o} lds", "dma",
             R("v", voff) + R("s", srd, 4) + R("s", soff) + [("m", 0)], [], tag)
def vload(d, voff, srd, soff, imm):
    o = f" offset:{imm}" if imm else ""
    o += pol(opt.q_pol)
    return I(f"buffer_load_dwordx4 {vr(d,4)}, {vr(voff)}, {sr(srd,4)}, {sr(soff)} offen{o}", "vload",
             R("v", voff) + R("s", srd, 4) + R("s", soff), R("v", d, 4))
def vstore(d, voff, srd, soff, imm, dc="v", last=False):
    o = f" offset:{imm}" if imm else ""
    if 'L' in opt.abl and last: voff = V_KOFF; imm = kq_imm(imm // 64); o = f" offset:{imm}" if imm else ""
    o += pol((opt.olast_pol if (soff - S_QO) % 4 < 2 else opt.olastb_pol) if last else (opt.o1_pol if (soff - S_QO) // 4 == opt.nblocks - 2 and opt.o1_pol else opt.o_pol))
    return I(f"buffer_store_dwordx4 {(vr if dc == 'v' else ar)(d,4)}, {vr(voff)}, {sr(srd,4)}, {sr(soff)} offen{o}", "vstore",
             R(dc, d, 4) + R("v", voff) + R("s", srd, 4) + R("s", soff), [])

def o_reg(db, qb): return V_O + 32*(db >> 1) + 8*qb + 4*(db & 1)
def p_reg(T, qb, ks): return V_P + 32*(T & 1) + 8*qb + 4*ks
def q_reg(r, qb, t): return A_Q[r & 1] + 16*qb + 4*t
def k_reg(kb, t): return A_K + 16*(kb & 1) + 4*t
def v_reg(db, ks): return A_V + 8*(db & 3) + 4*ks
def k_read(T, kb, t, dest=None):
    return dsr("a", k_reg(kb, t) if dest is None else dest, V_KADDR + (t & 1), (T & 3)*16384 + kb*4096 + (t >> 1)*2048, ("K", T))
def v_read(T, db, ks, hf, dest=None):
    u, p = db >> 1, db & 1
    return dst(v_reg(db, ks) + 2*hf if dest is None else dest, V_VADDR + (u & 1), (T & 3)*8192 + (2*ks + hf)*2048 + (u >> 1)*1024 + 8*p, ("V", T))
def kq_imm(j): return (j & 1)*2048 + (j >> 1)*128
def k_dma(T, j):
    return setm0(S_MK, (T & 3)*16384 + j*1024 - kq_imm(j)), dma(V_KOFF, S_K, S_SK, kq_imm(j), ("K", T))
def v_dma(T, j):
    par, up = j & 1, j >> 1; imm = par*1024 + up*128
    return setm0(S_MV, par*VPAR + (T & 3)*8192 + up*1024 - imm), dma(V_VOFF, S_V, S_SV, imm, ("V", T))
def k_soff(T): return salu(f"s_add_u32 {sr(S_SK)}, {sr(S_KV + T//8)}, {(T % 8)*16384}", R("s", S_KV + T//8), R("s", S_SK))
def v_soff(T): return salu(f"s_add_u32 {sr(S_SV)}, {sr(S_KV + T//8)}, {(T % 8)*16384}", R("s", S_KV + T//8), R("s", S_SV))
def q_dma(pc, hh):
    r, qb, tp = pc // 8, (pc >> 1) & 3, pc & 1
    j = 2*tp + hh
    return setm0(S_MQ, (pc % NQS)*2048 + hh*1024 - kq_imm(j)), dma(V_KOFF, S_Q, S_QO + 4*r + qb, kq_imm(j), ("Q", pc))
def qp_dma(qb, j):
    base, off = [(S_MQ, 0), (S_MQ1, 0), (S_MK, 32768), (S_MK, 49152)][qb]
    return setm0(base, off + 1024*j - kq_imm(j)), dma(V_KOFF, S_Q, S_QO + qb, kq_imm(j), ("P", 2*qb + (j >> 1)))
def qp_read(qb, t):
    addr, off = [(V_QADDR, 0), (V_RCP, 0), (V_RCP + 2, 32768), (V_RCP + 2, 49152)][qb]
    return dsr("v", V_O + 16*qb + 4*t, addr + (t & 1), off + 2048*(t >> 1), ("P", 2*qb + (t >> 1)))
def q_read(kap):
    return dsr("v", V_RAW + 4*(kap & 1), V_QADDR + (kap & 1), ((kap >> 1) % NQS)*2048, ("Q", kap >> 1))

def prescale_ops(src, dst_a, pk, tbase=V_T):
    ops = []
    if pk:
        for j in range(4):
            ops.append(valu(f"v_lshlrev_b32 {vr(tbase+2*j)}, 16, {vr(src+j)}", R("v", src+j), R("v", tbase+2*j)))
            ops.append(valu(f"v_and_b32 {vr(tbase+2*j+1)}, 0xffff0000, {vr(src+j)}", R("v", src+j), R("v", tbase+2*j+1)))
        for j in range(4):
            ops.append(valu(f"v_pk_mul_f32 {vr(tbase+2*j,2)}, {vr(tbase+2*j,2)}, {sr(S_C,2)}", R("v", tbase+2*j, 2) + R("s", S_C, 2), R("v", tbase+2*j, 2), "pk"))
        for j in range(4):
            ops.append(vcvt(src+j, tbase+2*j, tbase+2*j+1))
        for j in range(4):
            ops.append(valu(f"v_accvgpr_write_b32 {ar(dst_a+j)}, {vr(src+j)}", R("v", src+j), R("a", dst_a+j)))
    else:
        for j in range(4):
            t0 = tbase + 2*(j & 1)
            ops.append(valu(f"v_lshlrev_b32 {vr(t0)}, 16, {vr(src+j)}", R("v", src+j), R("v", t0)))
            ops.append(valu(f"v_and_b32 {vr(t0+1)}, 0xffff0000, {vr(src+j)}", R("v", src+j), R("v", t0+1)))
            ops.append(valu(f"v_mul_f32 {vr(t0)}, {sr(S_C)}, {vr(t0)}", R("v", t0) + R("s", S_C), R("v", t0)))
            ops.append(valu(f"v_mul_f32 {vr(t0+1)}, {sr(S_C)}, {vr(t0+1)}", R("v", t0+1) + R("s", S_C), R("v", t0+1)))
            ops.append(vcvt(src+j, t0, t0+1))
            ops.append(valu(f"v_accvgpr_write_b32 {ar(dst_a+j)}, {vr(src+j)}", R("v", src+j), R("a", dst_a+j)))
    return ops

def max_ops(x, qb, mt=V_MT):
    m, t, n = mt, mt + 1, V_NEGM + 4*qb
    ops = [valu(f"v_max3_f32 {vr(m)}, {vr(x)}, {vr(x+1)}, {vr(x+2)}", R("v", x, 3), R("v", m)),
           valu(f"v_max_f32 {vr(m)}, {vr(m)}, {vr(x+3)}", R("v", m) + R("v", x+3), R("v", m)),
           valu(f"v_mov_b32 {vr(t)}, {vr(m)}", R("v", m), R("v", t)),
           "gap2",
           valu(f"v_permlane32_swap_b32 {vr(m)}, {vr(t)}", R("v", m, 2), R("v", m, 2), "perm"),
           valu(f"v_max_f32 {vr(m)}, {vr(m)}, {vr(t)}", R("v", m, 2), R("v", m)),
           valu(f"v_mov_b32 {vr(t)}, {vr(m)}", R("v", m), R("v", t)),
           "gap2",
           valu(f"v_permlane16_swap_b32 {vr(m)}, {vr(t)}", R("v", m, 2), R("v", m, 2), "perm")]
    for j in range(4):
        ops.append(valu(f"v_min_f32_e64 {vr(n+j)}, -{vr(m)}, -{vr(t)}", R("v", m, 2), R("v", n+j)))
    for j in range(4):
        ops.append(valu(f"v_add_f32 {vr(x+j)}, {vr(n)}, {vr(x+j)}", R("v", n) + R("v", x+j), R("v", x+j)))
    return ops

def soft_ops(x, pd):
    return [vexp(x), vexp(x+1), vexp(x+2), vexp(x+3)], [vcvt(pd, x, x+1), vcvt(pd+1, x+2, x+3)]

def l_ops(r, qb, more):
    a = A_L + 4*qb
    ops = [valu(f"v_accvgpr_read_b32 {vr(V_LT)}, {ar(a)}", R("a", a), R("v", V_LT)),
           valu(f"v_accvgpr_read_b32 {vr(V_LT+1)}, {ar(a+1)}", R("a", a+1), R("v", V_LT+1)),
           valu(f"v_add_f32 {vr(V_LT)}, {vr(V_LT)}, {vr(V_LT+1)}", R("v", V_LT, 2), R("v", V_LT)),
           I(f"v_rcp_f32 {vr(V_RCP+2*qb)}, {vr(V_LT)}", "trans", R("v", V_LT), R("v", V_RCP+2*qb))]
    cm = S_CMP + 2*(qb - 1)
    dst = S_FLAG + 2*r if qb == 0 else cm
    ops.append(valu(f"v_cmp_nlt_f32_e64 {sr(dst,2)}, {vr(V_LT)}, {sr(S_THR)}", R("v", V_LT) + R("s", S_THR), R("s", dst, 2)))
    if opt.pk_epi:
        ops.append(valu(f"v_mov_b32 {vr(V_RCP+2*qb+1)}, {vr(V_RCP+2*qb)}", R("v", V_RCP+2*qb), R("v", V_RCP+2*qb+1)))
    if more:
        ops.append(valu(f"v_accvgpr_write_b32 {ar(a)}, 0", [], R("a", a)))
        ops.append(valu(f"v_accvgpr_write_b32 {ar(a+1)}, 0", [], R("a", a+1)))
    if qb:
        ops.append(salu(f"s_or_b64 {sr(S_FLAG+2*r,2)}, {sr(S_FLAG+2*r,2)}, {sr(cm,2)}", R("s", S_FLAG+2*r, 2) + R("s", cm, 2), R("s", S_FLAG+2*r, 2)))
    return ops

def epi_ops(r, u, qb, park=None):
    b = V_O + 32*u + 8*qb
    rc = V_RCP + 2*qb
    mul = []
    if opt.pk_epi:
        for j in range(0, 8, 2):
            mul.append(valu(f"v_pk_mul_f32 {vr(b+j,2)}, {vr(b+j,2)}, {vr(rc,2)}", R("v", b+j, 2) + R("v", rc, 2), R("v", b+j, 2), "pk"))
    else:
        for j in range(8):
            mul.append(valu(f"v_mul_f32 {vr(b+j)}, {vr(rc)}, {vr(b+j)}", R("v", b+j) + R("v", rc), R("v", b+j)))
    cv = [vcvt(b+j, b+2*j, b+2*j+1) for j in range(4)]
    if park is None:
        st = vstore(b, V_OOFF, S_O, S_QO + 4*r + qb, 64*u, last=(r == opt.nblocks - 1))
    else:
        cv += [valu(f"v_accvgpr_write_b32 {ar(park+j)}, {vr(b+j)}", R("v", b+j), R("a", park+j)) for j in range(4)]
        st = vstore(park, V_OOFF, S_O, S_QO + 4*r + qb, 64*u, "a")
    return mul, cv, st

def line_ops(r, v, qb, park=(None, None)):
    a, b = V_O + 64*v + 8*qb, V_O + 64*v + 32 + 8*qb
    dpp = " row_ror:8 row_mask:0xf bank_mask:0xf"
    ops = [salu(f"s_mov_b64 vcc, {sr(S_LMASK,2)}", [], [VCC])]
    ops += [valu(f"v_cndmask_b32_dpp {vr(a+4+j)}, {vr(b+j)}, {vr(a+j)}, vcc{dpp}", R("v", a+j) + R("v", b+j) + [VCC], R("v", a+4+j), "perm") for j in range(4)]
    last = r == opt.nblocks - 1
    pk = lambda p, x: [valu(f"v_accvgpr_write_b32 {ar(p+j)}, {vr(x+j)}", R("v", x+j), R("a", p+j)) for j in range(4)]
    if park[0] is None: s1 = vstore(a+4, V_OOFF2, S_O, S_QO + 4*r + qb, 128*v, last=last)
    else: ops += pk(park[0], a+4); s1 = vstore(park[0], V_OOFF2, S_O, S_QO + 4*r + qb, 128*v, "a")
    ops2 = [salu(f"s_not_b64 vcc, {sr(S_LMASK,2)}", [], [VCC])]
    ops2 += [valu(f"v_cndmask_b32_dpp {vr(b+4+j)}, {vr(a+j)}, {vr(b+j)}, vcc{dpp}", R("v", a+j) + R("v", b+j) + [VCC], R("v", b+4+j), "perm") for j in range(4)]
    if park[1] is None: s2 = vstore(b+4, V_OOFF2, S_O, S_QO + 4*r + qb, 2048 + 128*v, last=last)
    else: ops2 += pk(park[1], b+4); s2 = vstore(park[1], V_OOFF2, S_O, S_QO + 4*r + qb, 2048 + 128*v, "a")
    return ops, s1, ops2, s2

stamp_n = [0]
def stamp(pro=False):
    if not opt.stamps: return []
    if pro and (opt.sper or opt.sgrp): return []
    n = stamp_n[0]; stamp_n[0] += 1
    ins = 's_memtime' if opt.scyc else 's_memrealtime'
    if opt.probe >= 0:
        assert S_STAMP + 2*n + 3 <= 95
        return [I(f"{ins} {sr(S_STAMP+2*n,2)}", "smem", [], R("s", S_STAMP+2*n, 2))]
    out = [I(f"{ins} {sr(S_STAMP+2*(n%16),2)}", "smem", [], [])]
    if n >= 12: out.append(stamp_save(n - 12))
    return out
def stamp_save(n):
    assert n < 192
    return I(f"v_writelane_b32 v{253 + n//64}, s{S_STAMP+2*(n%16)}, {n%64}", "salu")

def jit_ops():
    return [I(f"global_load_dword a{A_DUMMY}, v{V_JIT}, s[{S_PC}:{S_PC+1}]", "vload", R("v", V_JIT) + R("s", S_PC, 2), []),
            valu(f"v_add_u32 v{V_JIT}, 0x2000, v{V_JIT}", R("v", V_JIT), R("v", V_JIT))]
late_setup = []
def setup():
    c = []
    T = V_TMP
    A = lambda t: c.append(salu(t))
    def V(t, rd, wr): c.append(valu(t, rd, wr))
    c.append(salu("s_cmpk_ge_u32 s2, 0x100"))
    c.append(I("s_cbranch_scc1 L_end", "branch"))
    c.append(I("s_load_dwordx4 s[56:59], s[0:1], 0", "smem", [], R("s", 56, 4)))
    c.append(I("s_load_dwordx4 s[60:63], s[0:1], 16", "smem", [], R("s", 60, 4)))
    c += stamp()
    if opt.probe >= 0: c.append(I("s_memrealtime s[96:97]", "smem"))
    A(f"s_mov_b32 s{S_WARM}, 0")
    if opt.stubs:
        c.append(I(f"s_getpc_b64 s[{S_PC}:{S_PC+1}]", "salu", [], R("s", S_PC, 2)))
        c.append(I("L_pc:", "label"))
        if opt.head_prefetch:
            V(f"v_and_b32 v{V_LT}, 15, v0", R("v", 0), R("v", V_LT))
            V(f"v_lshrrev_b32 v{V_LT+1}, 6, v0", R("v", 0), R("v", V_LT+1))
            V(f"v_lshl_add_u32 v{V_LT}, v{V_LT+1}, 4, v{V_LT}", R("v", V_LT, 2), R("v", V_LT))
            V(f"v_lshlrev_b32 v{V_LT}, 7, v{V_LT}", R("v", V_LT), R("v", V_LT))
            c.append(I(f"global_load_dword a{A_DUMMY}, v{V_LT}, s[{S_PC}:{S_PC+1}] offset:256", "vload", R("v", V_LT), []))
        A(f"s_add_u32 s{S_PC}, s{S_PC}, L_main - L_pc")
        A(f"s_addc_u32 s{S_PC+1}, s{S_PC+1}, 0")
        if opt.line_prefetch:
            V(f"v_bfe_u32 v{V_LT}, v0, 2, 2", R("v", 0), R("v", V_LT))
            V(f"v_lshrrev_b32 v{V_LT+1}, 6, v0", R("v", 0), R("v", V_LT+1))
            V(f"v_lshl_add_u32 v{V_LT}, v{V_LT}, 2, v{V_LT+1}", R("v", V_LT, 2), R("v", V_LT))
            V(f"v_lshlrev_b32 v{V_LT}, 5, v{V_LT}", R("v", V_LT), R("v", V_LT))
            V(f"v_and_b32 v{V_LT+1}, 3, v0", R("v", 0), R("v", V_LT+1))
            V(f"v_add_u32 v{V_LT}, v{V_LT}, v{V_LT+1}", R("v", V_LT, 2), R("v", V_LT))
            V(f"v_lshlrev_b32 v{V_LT}, 7, v{V_LT}", R("v", V_LT), R("v", V_LT))
            c.append(I(f"global_load_dword a{A_DUMMY}, v{V_LT}, s[{S_PC}:{S_PC+1}]", "vload", R("v", V_LT), []))
    V(f"v_lshrrev_b32 v{T}, 6, v0", R("v", 0), R("v", T))
    V(f"v_and_b32 v{T+1}, 63, v0", R("v", 0), R("v", T+1))
    V(f"v_readfirstlane_b32 s{S_W}, v{T}", R("v", T), R("s", S_W))
    if opt.stubs and opt.stub_early: c.append(nop(4)); c.append(I("STUB_CALLS0", "label"))
    A(f"s_and_b32 s54, s2, 7")
    A(f"s_lshl_b32 s54, s54, 5")
    A(f"s_lshr_b32 s55, s2, 3")
    def blk(r):
        A(f"s_add_u32 s3, s55, {32*r}")
        A(f"s_mul_i32 s45, s3, 43691")
        A(f"s_lshr_b32 s45, s45, 17")
        A(f"s_mul_i32 s41, s45, 3")
        A(f"s_sub_u32 s3, s3, s41")
        A(f"s_add_u32 s45, s45, s54")
        A(f"s_lshl_b32 s{S_KV+r}, s45, 17")
        A(f"s_mul_i32 s45, s45, 188416")
        A(f"s_lshl_b32 s41, s3, 16")
        A(f"s_add_u32 s45, s45, s41")
        A(f"s_mul_i32 s41, s{S_W}, 12288")
        A(f"s_add_u32 s{S_QO+4*r}, s45, s41")
        A(f"s_add_u32 s{S_QO+4*r+1}, s{S_QO+4*r}, 4096")
        A(f"s_lshl_b32 s3, s3, 2")
        A(f"s_add_u32 s3, s3, s{S_W}")
        A(f"s_add_u32 s3, s3, 5")
        A(f"s_lshr_b32 s3, s3, 4")
        A(f"s_mul_i32 s41, s3, 0x70000000")
        A(f"s_add_u32 s41, s41, s{S_QO+4*r}")
        A(f"s_add_u32 s{S_QO+4*r+2}, s41, 8192")
        A(f"s_add_u32 s{S_QO+4*r+3}, s41, 12288")
    L = T + 1
    V(f"v_lshrrev_b32 v{T+6}, 3, v{L}", R("v", L), R("v", T+6))
    V(f"v_and_b32 v{T+4}, 6, v{T+6}", R("v", T+6), R("v", T+4))
    V(f"v_and_b32 v{T+5}, 7, v{L}", R("v", L), R("v", T+5))
    V(f"v_xor_b32 v{T+4}, v{T+4}, v{T+5}", R("v", T+4, 2), R("v", T+4))
    V(f"v_lshlrev_b32 v{T+2}, 8, v{T+6}", R("v", T+6), R("v", T+2))
    V(f"v_lshl_add_u32 v{T+2}, v{T+4}, 4, v{T+2}", R("v", T+4) + R("v", T+2), R("v", T+2))
    V(f"v_lshl_add_u32 v{V_KOFF}, v{T}, 12, v{T+2}", R("v", T) + R("v", T+2), R("v", V_KOFF))
    V(f"v_lshrrev_b32 v{T+3}, 4, v{L}", R("v", L), R("v", T+3))
    V(f"v_and_b32 v{T+4}, 15, v{L}", R("v", L), R("v", T+4))
    V(f"v_lshlrev_b32 v{T+2}, 8, v{T+4}", R("v", T+4), R("v", T+2))
    V(f"v_lshl_add_u32 v{T+2}, v{T+3}, 4, v{T+2}", R("v", T+3) + R("v", T+2), R("v", T+2))
    V(f"v_lshl_add_u32 v{V_OOFF}, v{T}, 12, v{T+2}", R("v", T) + R("v", T+2), R("v", V_OOFF))
    blk(0)
    A(f"s_lshl_b32 s{S_MK}, s{S_W}, 12")
    A(f"s_add_u32 s{S_MK}, s{S_MK}, {KB}")
    c.append(wait(lg=0))
    for srd, p, n in ((S_K, 58, 33554432), (S_Q, 56, 48234496), (S_V, 60, 33554432), (S_O, 62, 48234496)):
        A(f"s_mov_b32 s{srd}, s{p}")
        A(f"s_mov_b32 s{srd+1}, s{p+1}")
        A(f"s_mov_b32 s{srd+2}, {n}")
        A(f"s_mov_b32 s{srd+3}, 0x20000")
    c += stamp(True)
    A(f"s_mul_i32 s3, s{S_W}, {QW}")
    A(f"s_add_u32 s{S_MQ}, s3, {QB}")
    for t in range(4):
        m, d = qp_dma(0, t); c += [m, nop(1), d]
    c.append(k_soff(0))
    for t in range(4):
        m, d = k_dma(0, t); c += [m, nop(1), d]
    c += stamp(True)
    if opt.stubs and not opt.stub_late:
        for rd in range(1 if opt.stub_early else 0, 5): c.append(I(f"STUB_CALLS{rd}", "label"))
    c += stamp(True)
    A(f"s_lshr_b32 s3, s{S_W}, 1")
    A(f"s_mul_i32 s3, s3, {VPAR + 8 - 8192}")
    A(f"s_add_u32 s3, s3, s{S_MK}")
    A(f"s_add_u32 s{S_MQ1}, s3, {VE + 24576 - KB}")
    for t in range(4):
        m, d = qp_dma(1, t); c += [m, nop(1), d]
    c += stamp(True)
    V(f"v_and_b32 v{T+2}, 2, v{T+6}", R("v", T+6), R("v", T+2))
    V(f"v_lshlrev_b32 v{T+2}, 1, v{T+2}", R("v", T+2), R("v", T+2))
    V(f"v_xor_b32 v{T+2}, v{T+2}, v{T+5}", R("v", T+2) + R("v", T+5), R("v", T+2))
    V(f"v_and_b32 v{T+5}, 4, v{T+6}", R("v", T+6), R("v", T+5))
    V(f"v_add_u32 v{T+5}, v{T+5}, v{T+6}", R("v", T+5, 2), R("v", T+5))
    V(f"v_lshlrev_b32 v{T+5}, 8, v{T+5}", R("v", T+5), R("v", T+5))
    V(f"v_lshl_add_u32 v{T+2}, v{T+2}, 4, v{T+5}", R("v", T+2) + R("v", T+5), R("v", T+2))
    V(f"v_lshl_add_u32 v{V_VOFF}, v{T}, 12, v{T+2}", R("v", T) + R("v", T+2), R("v", V_VOFF))
    assert VE == 0
    A(f"s_lshl_b32 s{S_MV}, s{S_W}, 11")
    V(f"v_and_b32 v{T+2}, 6, v{T+4}", R("v", T+4), R("v", T+2))
    V(f"v_xor_b32 v{T+2}, v{T+2}, v{T+3}", R("v", T+2) + R("v", T+3), R("v", T+2))
    V(f"v_lshlrev_b32 v{T+2}, 4, v{T+2}", R("v", T+2), R("v", T+2))
    V(f"v_lshl_add_u32 v{V_KADDR}, v{T+4}, 7, v{T+2}", R("v", T+4) + R("v", T+2), R("v", V_KADDR))
    V(f"v_xor_b32 v{V_KADDR+1}, 64, v{V_KADDR}", R("v", V_KADDR), R("v", V_KADDR+1))
    for b in range(2):
        V(f"v_add_u32 v{V_QADDR+b}, s{S_MQ}, v{V_KADDR+b}", R("v", V_KADDR+b) + R("s", S_MQ), R("v", V_QADDR+b))
        V(f"v_add_u32 v{V_RCP+b}, s{S_MQ1}, v{V_KADDR+b}", R("v", V_KADDR+b) + R("s", S_MQ1), R("v", V_RCP+b))
        V(f"v_add_u32 v{V_RCP+2+b}, s{S_MK}, v{V_KADDR+b}", R("v", V_KADDR+b) + R("s", S_MK), R("v", V_RCP+2+b))
        V(f"v_add_u32 v{V_KADDR+b}, {KB}, v{V_KADDR+b}", R("v", V_KADDR+b), R("v", V_KADDR+b))
    V(f"v_and_b32 v{T+2}, 1, v{T+3}", R("v", T+3), R("v", T+2))
    V(f"v_mul_u32_u24 v{T+2}, {VPAR}, v{T+2}", R("v", T+2), R("v", T+2))
    V(f"v_lshrrev_b32 v{T+6}, 1, v{T+3}", R("v", T+3), R("v", T+6))
    V(f"v_lshl_add_u32 v{T+2}, v{T+6}, 9, v{T+2}", R("v", T+6) + R("v", T+2), R("v", T+2))
    V(f"v_bfe_u32 v{T+6}, v{L}, 2, 2", R("v", L), R("v", T+6))
    V(f"v_lshl_add_u32 v{T+2}, v{T+6}, 7, v{T+2}", R("v", T+6) + R("v", T+2), R("v", T+2))
    V(f"v_and_b32 v{T+5}, 3, v{L}", R("v", L), R("v", T+5))
    V(f"v_lshl_add_u32 v{T+2}, v{T+5}, 4, v{T+2}", R("v", T+5) + R("v", T+2), R("v", T+2))
    V(f"v_and_b32 v{T+6}, 2, v{T+6}", R("v", T+6), R("v", T+6))
    V(f"v_lshlrev_b32 v{T+6}, 5, v{T+6}", R("v", T+6), R("v", T+6))
    V(f"v_add_u32 v{V_VADDR}, v{T+2}, v{T+6}", R("v", T+2) + R("v", T+6), R("v", V_VADDR))
    V(f"v_xor_b32 v{T+6}, 64, v{T+6}", R("v", T+6), R("v", T+6))
    V(f"v_add_u32 v{V_VADDR+1}, v{T+2}, v{T+6}", R("v", T+2) + R("v", T+6), R("v", V_VADDR+1))
    V(f"v_and_b32 v{T+2}, 1, v{L}", R("v", L), R("v", T+2))
    V(f"v_mul_u32_u24 v{T+2}, 0xaaaa, v{T+2}", R("v", T+2), R("v", T+2))
    V(f"v_add_u32 v{T+2}, 0x4444, v{T+2}", R("v", T+2), R("v", T+2))
    V(f"v_lshl_add_u32 v{V_IDX}, v{T+2}, 16, v{T+2}", R("v", T+2), R("v", V_IDX))
    V(f"v_mov_b32 v{T+2}, 0x3f803f80", [], R("v", T+2))
    for j in range(4): V(f"v_accvgpr_write_b32 a{A_ONE+j}, v{T+2}", R("v", T+2), R("a", A_ONE+j))
    for j in range(16): V(f"v_accvgpr_write_b32 a{A_L+j}, 0", [], R("a", A_L+j))
    if opt.jit_every:
        A(f"s_lshl_b32 s3, s55, 2")
        A(f"s_add_u32 s3, s3, s{S_W}")
        A(f"s_and_b32 s3, s3, 63")
        A(f"s_lshl_b32 s3, s3, 7")
        V(f"v_mov_b32 v{V_JIT}, s3", [], R("v", V_JIT))
        for k in range(opt.jit_first): c += jit_ops()
    if opt.full_line:
        V(f"v_and_b32 v{T+2}, 8, v{L}", R("v", L), R("v", T+2))
        V(f"v_mul_u32_u24 v{T+2}, 248, v{T+2}", R("v", T+2), R("v", T+2))
        V(f"v_sub_u32 v{V_OOFF2}, v{V_OOFF}, v{T+2}", R("v", V_OOFF) + R("v", T+2), R("v", V_OOFF2))
        A(f"s_mov_b32 s{S_LMASK}, 0x00ff00ff")
        A(f"s_mov_b32 s{S_LMASK+1}, 0x00ff00ff")
    A(f"s_add_u32 s{S_WB}, s55, s{S_W}")
    A(f"s_mov_b32 s{S_C}, {CSCALE:#x}")
    A(f"s_mov_b32 s{S_C+1}, {CSCALE:#x}")
    A(f"s_mov_b32 s{S_THR}, {0 if opt.force_slow else THR:#x}")
    for j in range(6): A(f"s_mov_b32 s{S_FLAG+j}, 0")
    c += stamp(True)
    if opt.stubs:
        for rd in range(opt.stub_n0): c.append(I(f"STUB_CALLS{rd}", "label"))
    for t in range(4):
        m, d = qp_dma(2, t); c += [m, nop(1), d]
    c += stamp(True)
    late_setup.clear()
    n0 = len(c); blk(1); blk(2); late_setup.extend(c[n0:]); del c[n0:]
    if opt.stubs:
        c.append(I("s_branch L_main", "branch"))
        c.append(I(".p2align 12", "label"))
        c.append(I("L_main:", "label"))
    return c

def flat(ops):
    out = []
    for o in ops:
        out.append(nop(2) if o == "gap2" else o)
    return out

def issue_tile(kind, Tt):
    c = [v_soff(Tt) if kind == "V" else k_soff(Tt)]
    for t in range(4): c += list((v_dma if kind == "V" else k_dma)(Tt, t))
    return c

def weave(ops, pairs, every, start=0):
    out = []; pairs = list(pairs)
    for k, o in enumerate(ops):
        if pairs and k >= start and (k - start) % every == 0:
            p = pairs.pop(0); out += p[:-1] + [o, p[-1]]
        else: out.append(o)
    assert not pairs
    return out

def prologue():
    c = []
    KT = A_Q[1]
    X = lambda qb, kb: V_O + 64 + 16*qb + 4*kb
    def chain(qb, kb):
        return [mfma("v", X(qb, kb), "a", KT + 16*kb + 4*t, "a", q_reg(0, qb, t), (("0" if kb == 0 else V_NEGM + 4*qb) if t == 0 else None)) for t in range(4)]
    def soft(qb, kb):
        e, cv = soft_ops(X(qb, kb), p_reg(0, qb, kb >> 1) + 2*(kb & 1)); return e + cv
    def B(qb): return [o for t in range(4) for o in prescale_ops(V_O + 16*qb + 4*t, q_reg(0, qb, t), True)]
    def D(qb): return [o for o in max_ops(X(qb, 0), qb, V_S) if not isinstance(o, str)]
    def dep(lst, op):
        for x in lst: x.after.append(op)
        return lst
    def paced(tile, anchors):
        so, rest = tile[0], tile[1:]
        for k in range(4): dep(rest[2*k:2*k+2], anchors[k])
        return tile
    ch = lambda qb: [x for kb in (1, 2, 3) for x in chain(qb, kb)]
    b0, b1, b2, b3 = B(0), B(1), B(2), B(3)
    c += stamp(True) + [wait(vm="auto", need=[("P", 0)])] + stamp(True) + [qp_read(0, t) for t in (0, 1)]
    c += [wait(vm="auto", need=[("P", 1)])] + [qp_read(0, t) for t in (2, 3)] + [wait(lg="auto")]
    b0w = weave(b0, [list(qp_dma(3, t)) for t in range(4)], 16, 10)
    c += b0w[:44] + [wait(lg="auto")] + b0w[44:]
    c += stamp(True)
    if opt.stubs:
        for rd in range(opt.stub_n1): c.append(I(f"STUB_CALLS{opt.stub_n0 + rd}", "label"))
    c += stamp(True)
    c += [wait(vm="auto", need=[("K", 0)]), barrier()]
    c += stamp(True)
    c += [k_read(0, kb, t, dest=KT + 16*kb + 4*t) for kb in range(4) for t in range(4)]
    c += listsched(issue_tile("K", 1)[:5])[0]
    c.append(wait(lg="auto"))
    s0 = soft(0, 0) + soft(0, 1) + soft(0, 2) + soft(0, 3)
    s1 = soft(1, 0) + soft(1, 1) + soft(1, 2) + soft(1, 3)
    s2 = soft(2, 0) + soft(2, 1) + soft(2, 2) + soft(2, 3)
    def fetch(qb, anchor, anchor2, first):
        w = wait(lg="auto"); dep(first, w)
        return dep([wait(vm="auto", need=[("P", 2*qb), ("P", 2*qb + 1)])], anchor) + [qp_read(qb, t) for t in range(4)] + dep([w], anchor2)
    c3 = ch(3); c0 = ch(0)
    k1 = issue_tile("K", 1)[5:]
    wk = wait(lg=0); d0 = D(0); c00 = chain(0, 0)
    seq = c00 + dep([wk], c00[3]) + d0 + dep(c0[:1], wk) + c0[1:] + dep(k1[:2], c0[0]) + dep(k1[2:], c0[4])
    seq += s0[:12] + fetch(1, c0[8], s0[11], b1[:8]) + b1
    seq += chain(1, 0) + s0[12:] + fetch(2, b1[70], s0[16], b2[:8]) + D(1) + ch(1)
    seq += b2 + paced(issue_tile("V", 0), [b2[0], b2[20], b2[40], b2[60]])
    seq += chain(2, 0) + s1 + fetch(3, b2[70], s1[8], b3[:8]) + D(2) + ch(2)
    seq += b3
    if getattr(opt, "first_k", 2) == 3: seq += paced(issue_tile("K", 2), [b3[0], b3[12], b3[24], b3[36]])
    if getattr(opt, "first_v", 1) == 2: seq += paced(issue_tile("V", 1), [b3[48], b3[60], b3[70], b3[79]])
    seq += chain(3, 0) + s2 + D(3) + c3
    seq += dep([wait(vm="auto", lg=0, need=[("K", 1), ("V", 0)]), barrier()], c3[0])
    seq += [v_read(0, n >> 2, (n >> 1) & 1, n & 1) for n in range(4)] + [k_read(1, 0, t) for t in range(4)]
    seq += [v_read(0, n >> 2, (n >> 1) & 1, n & 1) for n in range(4, 10)] + [k_read(1, 1, 0)]
    seq += soft(3, 0) + soft(3, 1) + soft(3, 2) + soft(3, 3)
    p2, t2 = listsched(order_fix(seq), [x for x in c[-30:] if x.kind != "label"])
    if opt.stamps:
        out = []
        for x in p2:
            if x.kind == "wait" and x.vm is not None: out += stamp(True) + [x] + stamp(True)
            else: out.append(x)
        p2 = out
    c += p2
    c.append(wait(lg="auto"))
    return c

def order_fix(seq):
    seen = set()
    for x in seq:
        assert all(id(a) in seen for a in x.after), x
        seen.add(id(x))
    return seq

VALK = ("valu", "trans", "pk", "perm")
def edge_dist(w, x, rg, kind):
    if kind == "raw":
        if w.kind in ("mfma", "smfmac"):
            need = 8 if w.kind == "mfma" else 12
            if x.kind in ("mfma", "smfmac") and rg in x.cread and rg not in x.rd:
                return 0 if (x.cread == w.wr and x.kind == w.kind) else need - 2
            return need
        if w.kind in VALK:
            if rg[0] == "s": return 5 if x.kind in ("dma", "vload", "vstore") else (2 if x.kind in VALK else 0)
            if x.kind in ("mfma", "smfmac", "perm"): return 2
            if w.kind == "trans" and x.kind in VALK and x.kind != "trans": return 1
        if w.kind == "salu" and rg[0] == "m" and x.kind == "dma": return 1
        return 0
    if kind == "waw":
        if w.kind in ("mfma", "smfmac"):
            need = 8 if w.kind == "mfma" else 12
            if x.kind in ("mfma", "smfmac"): return 0 if x.wr == w.wr else need - 2
            return need
        return 0
    if rg in w.cread and x.kind in VALK: return 3 if w.kind == "mfma" else 7
    if w.kind == "vstore" and rg in w.rd[:4]: return 2
    return 0

def listsched(ops, pre=()):
    allops = list(pre) + list(ops); n0 = len(pre); n = len(allops)
    deps = [dict() for _ in range(n)]
    lw = {}; lr = defaultdict(list); lastmem = None
    for k, x in enumerate(allops):
        def add(p, d): deps[k][p] = max(deps[k].get(p, 0), d)
        for rg in x.rd + x.cread:
            if rg in lw: add(lw[rg], edge_dist(allops[lw[rg]], x, rg, "raw"))
        for rg in x.wr:
            if rg in lw: add(lw[rg], edge_dist(allops[lw[rg]], x, rg, "waw"))
            for p in lr[rg]:
                if p != k: add(p, edge_dist(allops[p], x, rg, "war"))
        if x.kind in ("dma", "vload", "vstore", "ds", "wait", "barrier", "smem"):
            if lastmem is not None: add(lastmem, 0)
            lastmem = k
        for a in x.after: add(next(i for i, y in enumerate(allops) if y is a), 0)
        for rg in x.wr: lw[rg] = k; lr[rg] = []
        for rg in x.rd + x.cread: lr[rg].append(k)
    pos = {}; cur = 0
    for k in range(n0): pos[k] = cur; cur += allops[k].nops
    out = []; left = list(range(n0, n)); t = 0; tm = -100; prev = None
    cost = {"mfma": 8, "smfmac": 8, "trans": 8, "vstore": 12}
    while left:
        ready = [k for k in left if all(p in pos and cur - pos[p] - allops[p].nops >= d for p, d in deps[k].items())]
        pick = None
        if ready:
            mf = [k for k in ready if allops[k].kind in ("mfma", "smfmac")]
            ot = [k for k in ready if k not in mf]
            aftermf = prev is not None and prev.kind in ("mfma", "smfmac", "salu", "wait", "ds", "dma", "vstore", "barrier")
            mem = [k for k in ot if allops[k].kind in ("ds", "dma", "vstore", "vload")]
            sc = [k for k in ot if allops[k].kind in ("salu", "wait", "barrier", "smem")]
            va = [k for k in ot if k not in mem and k not in sc]
            vnp = [k for k in va if allops[k].kind != "pk" or t - tm >= 24]
            if mf and (t - tm >= 16 or not (vnp or mem or sc)): pick = mf[0]
            elif sc: pick = sc[0]
            elif mem and (aftermf or allops[mem[0]].after or not mf and not any(allops[k].kind in ("mfma", "smfmac") for k in left) or not vnp): pick = mem[0]
            elif vnp: pick = vnp[0]
            elif va: pick = va[0]
            else: pick = ready[0]
        if pick is None:
            x = nop(1); out.append(x); cur += 1; t += 4; prev = x; continue
        x = allops[pick]
        if x.kind in ("mfma", "smfmac"): t = max(t, tm + 16); tm = t
        if x.kind == "pk": t = max(t, tm + 24)
        pos[pick] = cur; cur += x.nops; t += cost.get(x.kind, 4)
        out.append(x); left.remove(pick); prev = x
    return out, t

COST = {"valu": 1, "trans": 2, "pk": 1, "perm": 1, "ds": 1, "dma": 1, "vstore": 3, "vload": 1}
class Gap:
    def __init__(s, m): s.m, s.shadow, s.mem, s.valu = m, None, [], []
    def load(s): return sum(COST[o.kind] for o in s.mem + s.valu)
    def emit(s):
        return [s.m] + ([s.shadow] if s.shadow else []) + s.mem + s.valu

NT = lambda: 8 * opt.nblocks

class Sched:
    def __init__(s):
        s.groups = []
        s.cur = defaultdict(int)
        s.gaps = []
        s.gstart = []
    def add_group(s, gaps):
        s.gstart.append(len(s.gaps)); s.groups.append(gaps); s.gaps += gaps
    def rng(s, G): return s.gstart[G], s.gstart[G] + len(s.groups[G])
    def put_valu(s, stream, G, op, mingap=0, fat=False):
        a, b = s.rng(G); lo = max(a + mingap, s.cur[stream])
        while lo >= b:
            G += 1; a, b = s.rng(G)
        pick = None
        if not fat:
            for g in range(lo, b):
                if s.gaps[g].load() + COST[op.kind] <= 2: pick = g; break
            if pick is None:
                pick = min(range(lo, b), key=lambda g: (s.gaps[g].load(), g))
        else: pick = lo
        s.gaps[pick].valu.append(op); s.cur[stream] = pick
        return pick
    def put_mem(s, stream, G, op, allowed, pre=None):
        a, b = s.rng(G)
        for gi, si in allowed:
            g = a + gi
            if g >= b or g <= s.cur[stream]: continue
            if any(o.kind in ("dma", "vstore") for o in s.gaps[g].mem): continue
            if pre is not None:
                sg = a + si
                if s.gaps[sg].shadow is not None: continue
                s.gaps[sg].shadow = pre
            s.gaps[g].mem.append(op); s.cur[stream] = g
            return g
        raise AssertionError(("no mem slot", stream, G, op))
    def put_shadow(s, G, op, lo=0, hi=None, stream=None):
        a, b = s.rng(G)
        start = a + lo
        if stream is not None: start = max(start, s.cur[stream] + 1)
        end = b if hi is None else a + hi
        g = start
        while True:
            if g >= end and hi is not None: raise AssertionError(("no shadow", G, op))
            if s.gaps[g].shadow is None and not (g + 1 in s.gstart_set or g + 1 == len(s.gaps)):
                s.gaps[g].shadow = op
                if stream is not None: s.cur[stream] = g
                return g
            g += 1

def fatten(S, G):
    g4, g5 = S.groups[G][4], S.groups[G][5]
    if [o.kind for o in g4.valu] == ["trans"] and [o.kind for o in g5.valu] == ["trans"] and not g4.mem and not g5.mem:
        g4.valu.append(g5.valu.pop()); return True
    return False

def spread(n, lo, hi):
    return [lo + (k * (hi - lo + 1)) // n for k in range(n)]

def body():
    nt = NT(); nb = opt.nblocks
    S = Sched()
    for T in range(nt):
        r, j = T // 8, T % 8
        hasqk = T + 1 < nt
        smf = {1: [0, 1], 2: [2, 3]} if j == 7 else {2: [0], 4: [1], 6: [2], 8: [3]}
        for i in range(16):
            gaps = []
            if hasqk:
                T1 = T + 1; r1 = T1 // 8; kb, qb = i >> 2, i & 3
                special = (T1 % 8 == 0 and kb == 0)
                d = p_reg(T1, qb, 1) if special else V_S + 4*(i & 1)
                for t in range(4):
                    cc = None if t else ("0" if special else V_NEGM + 4*qb)
                    gaps.append(Gap(mfma("v", d, "a", k_reg(kb, t), "a", q_reg(r1, qb, t), cc)))
            db = i >> 1
            for qb in (2*(i & 1), 2*(i & 1) + 1):
                for ks in range(2):
                    gaps.append(Gap(mfma("v", o_reg(db, qb), "a", v_reg(db, ks), "v", p_reg(T, qb, ks), "0" if (j == 0 and ks == 0) else None)))
            for qb in smf.get(i, []):
                gaps.append(Gap(smfmac(qb, p_reg(T, qb, 0))))
            S.add_group(gaps)
    S.gstart_set = set(S.gstart)
    for T in range(nt):
        hasqk = T + 1 < nt
        for i in range(16):
            G = 16*T + i; gp = S.groups[G]
            for n in (2*G + 10, 2*G + 11):
                Tv = n // 32
                if Tv < nt:
                    rem = n % 32
                    gp[0].mem.append(v_read(Tv, rem >> 2, (rem >> 1) & 1, rem & 1))
            kk = ((i + 1) >> 2) + 1; tt = (i + 1) & 3
            Tk = T + 1 if kk < 4 else T + 2
            if Tk < nt: gp[1].mem.append(k_read(Tk, kk & 3, tt))
            if i == 0: Tu, iu = T, 15
            else: Tu, iu = T + 1, i - 1
            if Tu < nt and not (T == 0 and i == 0) and not (Tu % 8 == 0 and iu < 4):
                kb, qb = iu >> 2, iu & 3
                e, cv = soft_ops(V_S + 4*(iu & 1), p_reg(Tu, qb, kb >> 1) + 2*(kb & 1))
                if hasqk:
                    for k in range(4): gp[2 + k].valu.append(e[k])
                    gp[6].valu.append(cv[0]); gp[7].valu.append(cv[1])
                else:
                    gp[0].valu += e[:1]; gp[1].valu += e[1:3]; gp[2].valu += e[3:] + cv[:1]; gp[3].valu += cv[1:]
            need = None; lg = "auto"; vm = None
            if i == 10:
                need = [x for x in (("K", T + 2), ("V", T + 1)) if x[1] < nt]
                vm = "auto" if need else None; lg = 0
            gp[-1].shadow = wait(vm=vm, lg=lg, need=need)
            if i == 11: gp[0].shadow = barrier()
    DM = [(1, 1), (6, 5)]
    for T in range(1, nt):
        lst = []
        if T + 5 < nt: lst += [k_dma(T + 5, t) for t in range(4)]; S.put_shadow(16*T + 10, k_soff(T + 5), 2, 6)
        if T + 4 < nt: lst += [v_dma(T + 4, u) for u in range(4)]; S.put_shadow(16*T + 10, v_soff(T + 4), 2, 6)
        for k, (m, d) in enumerate(lst):
            S.put_mem("kv", 16*T + 11 + k // 2, d, [DM[k & 1]], pre=m)
    extra = [("V", 1, 0), ("K", 2, 2), ("V", 2, 5), ("K", 3, 7), ("K", 4, 11), ("V", 3, 13), ("K", 5, 18), ("V", 4, 20)]
    for kind, Tt, G in extra:
        so = k_soff(Tt) if kind == "K" else v_soff(Tt)
        if G == 0: S.groups[0][0].shadow = so
        else: S.put_shadow(G - 1, so, 2, 5)
        for t in range(4):
            m, d = (k_dma if kind == "K" else v_dma)(Tt, t)
            S.put_mem("kv0", G + t // 2, d, [DM[t & 1]], pre=m)
    for o in late_setup: S.put_shadow(0, o, 0, stream="late")
    assert S.cur["late"] < S.gstart[15]
    if nb > 1:
        for k, G in enumerate((15, 15, 16, 16, 17, 17, 22)):
            m, d = q_dma(16 + k); S.put_mem("qd", G, d, DM, pre=m)
    if opt.jit_every:
        for k in range(opt.jit_first, 8):
            G = int((k - opt.jit_first) * opt.jit_every * 1.6) + opt.jit_g0
            while G % 16 in (10, 11, 12, 13, 14, 15, 0, 1): G += 1
            ld, ad = jit_ops()
            g = S.put_mem("jit", G, ld, [(6, None), (1, None), (7, None)])
            S.cur["jit"] = g; S.put_valu("jit", G, ad)
    for r in range(nb - 1):
        T = 8*r + 7
        for qb in range(4):
            G = 16*T + 1 + qb
            x = p_reg(T + 1, qb, 1)
            e, cv = soft_ops(x, p_reg(T + 1, qb, 0))
            ops = max_ops(x, qb) + e + ["gap1"] + cv
            a, b = S.rng(G)
            pos = [1, 1, 2, 2, None, 3, 3, 3, None, 4, 4, 4, 5, 5, 5, 5, 5, 6, 6, 6, 6, 7, None, 7, 7]
            pos = [1, 1, 2, None, 3, 3, 3, None, 4, 4, 4, 4, 4, 5, 5, 5, 5, 5, 6, 6, 6, None, 7, 7]
            assert len(pos) == len(ops), (len(pos), len(ops))
            for p_, o in zip(pos, ops):
                if isinstance(o, str): continue
                gp = S.groups[G][p_]
                if o.kind == "perm" and gp.shadow is None: gp.shadow = nop(1)
                gp.valu.append(o)
    tail = []; stores = []
    for r in range(nb):
        T = 8*r + 7; last = (r == nb - 1)
        for qb in range(4):
            G = 16*T + 3 + qb//2
            for o in l_ops(r, qb, not last):
                if o.kind == "salu": S.put_shadow(G + 2, o, stream="lor")
                else: S.put_valu("l", G, o)
        items = [(u, qb) for u in range(4) for qb in range(4)]
        avail = {it: 16*T + max(4*it[0] + 3 + (it[1] >> 1), 5 + (it[1] >> 1)) for it in items}
        plan = []
        if last:
            for u, qb in items: plan.append(((u, qb), 16*T + 4*u + 5 + qb, 16*T + 4*u + 6 + qb, None))
        else:
            dead = {it: 16*T + 16 + 4*it[0] + (it[1] >> 1) for it in items}
            slots = [16*T + opt.st_g0 + (opt.st_sp * n) // 10 for n in range(16)]
            left = list(items); direct = []
            for sl in slots:
                cand = [it for it in left if avail[it] + 1 <= sl and sl < dead[it]]
                if not cand: continue
                it = min(cand, key=lambda x: dead[x]); left.remove(it); direct.append((it, sl))
            used = [sl for _, sl in direct]
            rest = [sl for sl in slots if sl not in used]
            assert all(sl > max(used) for sl in rest), (slots, used)
            for it, sl in direct: plan.append((it, sl - 1, sl, None))
            busy = defaultdict(int)
            for it, sl in direct: busy[sl - 1] += 1
            for n, (it, sl) in enumerate(zip(left, rest)):
                g = min(range(avail[it], dead[it]), key=lambda x: (busy[x], -x)); busy[g] += 1
                plan.append((it, g, sl, A_PARK + 4*n))
            assert len(left) <= 10
        for (u, qb), G, Gs, park in sorted(plan, key=lambda x: x[1]):
            mul, cv, st = epi_ops(r, u, qb, park)
            if G >= 16*nt:
                tail.append((mul, cv, st)); continue
            ng = len(S.groups[G])
            if opt.pk_epi and ng >= 8 and fatten(S, G):
                S.groups[G][4].valu += mul
                S.cur["epi"] = S.gstart[G] + 5
                for o in cv: S.put_valu("epi", G, o)
                assert park is not None or S.cur["epi"] < S.gstart[G + 1]
                assert last or S.cur["epi"] < S.gstart[dead[(u, qb)]] + 4
            elif opt.pk_epi:
                S.groups[G][ng - 2].valu += mul
                S.groups[G][ng - 1].valu += cv
            else:
                S.cur["epi"] = 0
                for o in mul + cv: S.put_valu("epi", G, o)
            if Gs >= 16*nt: tail.append(([], [], st)); continue
            stores.append((Gs, st))
    for Gs, st in sorted(stores, key=lambda x: x[0]):
        nn = len(S.groups[Gs])
        S.put_mem("epist", Gs, st, [(7, None), (6, None), (1, None), (2, None)] if nn >= 8 else [(1, None), (2, None), (3, None)])
    for r in range(nb - 1):
        rd = spread(16, 16*(8*r + 1) + (10 if r == 0 else 0), 16*(8*r + 6) + 8)
        for k in range(16):
            kap = 16*(r + 1) + k; G = rd[k]
            S.put_shadow(G - 1, wait(vm="auto", need=[("Q", kap)]), 2, 7)
            S.groups[G][1].mem.append(q_read(kap))
            nxt = rd[k + 1] if k < 15 else G + 6
            ops = prescale_ops(V_RAW + 4*(kap & 1), q_reg(r + 1, k >> 2, k & 3), opt.pk_pre)
            last_g = min(nxt, G + 6)
            if opt.pk_pre:
                gf = G + 1 + (last_g - G) * 8 // 16
                for o, g in zip(ops[:8], spread(8, G + 1, max(G + 1, gf - 1))): S.put_valu("pre", g, o)
                while S.cur["pre"] >= S.gstart[gf] + 4 or not fatten(S, gf): gf += 1
                S.groups[gf][4].valu += ops[8:12]; S.cur["pre"] = S.gstart[gf] + 5
                for o, g in zip(ops[12:], [gf, gf] + spread(6, gf, max(gf, last_g))): S.put_valu("pre", g, o)
            else:
                for o, g in zip(ops, spread(len(ops), G + 1, last_g)): S.put_valu("pre", g, o)
            k2 = kap + NQS
            if k2 < 16*nb:
                g = G + 2
                while True:
                    if g % 16 in (15, 0, 1):
                        try:
                            m, d = q_dma(k2)
                            S.put_mem("qd", g, d, DM, pre=m); break
                        except AssertionError: pass
                    g += 1
    c = []
    for G, gp in enumerate(S.groups):
        if opt.sgrp:
            gs = [int(x) for x in opt.sgrp.split('_')]
            if G in gs: c += stamp()
            for g in gp:
                e = g.emit()
                if G in gs and g.shadow is not None and g.shadow.kind == "wait" and g.shadow.vm is not None:
                    e = e[:1] + stamp() + e[1:2] + stamp() + e[2:]
                c += e
            continue
        if G % 16 == 0 and ((G // 16) in [int(x) for x in opt.sper.split('_')] if opt.sper else (G // 16) % 8 in (0, 1, 7)): c += stamp()
        for g in gp: c += g.emit()
    c += stamp()
    c.append(nop(8))
    for mul, cv, st in tail: c += mul + cv + [st]
    c += stamp()
    per = [sum(max(16, 8 + 4*g.load()) for gp in S.groups[16*T:16*T+16] for g in gp) for T in range(nt)]
    stats = dict(per=per, gaps=len(S.gaps), slots=sum(g.load() for g in S.gaps),
                 est_cycles=sum(max(16, 8 + 4*g.load()) for g in S.gaps),
                 under=sum(max(0, 2 - g.load()) for g in S.gaps), over=sum(max(0, g.load() - 2) for g in S.gaps))
    return c, stats

def resolve(code):
    n = len(code)
    isds = [x.kind == "ds" for x in code]
    isvm = [x.kind in ("dma", "vload", "vstore") for x in code]
    lgw = [k for k, x in enumerate(code) if x.kind == "wait" and x.lg is not None]
    vmw = [k for k, x in enumerate(code) if x.kind == "wait" and x.vm is not None]
    def touched(x): return x.rd + x.wr + x.cread
    lastload = {}
    writer_at = [None]*n
    for k, x in enumerate(code):
        dep = set()
        for rg in touched(x):
            if rg in lastload: dep.add(lastload[rg])
        writer_at[k] = dep
        for rg in x.wr: lastload.pop(rg, None)
        if x.kind in ("ds", "vload"):
            for rg in x.wr: lastload[rg] = k
    for lst, flag, attr, kind in ((lgw, isds, "lg", "ds"), (vmw, isvm, "vm", "vload")):
        for a, w in enumerate(lst):
            x = code[w]
            if getattr(x, attr) != "auto": continue
            end = lst[a + 1] if a + 1 < len(lst) else n
            young = -1
            for k in range(w + 1, end):
                for p in writer_at[k]:
                    if code[p].kind == kind and p < w: young = max(young, p)
            if attr == "vm" and x.need:
                for k in range(w):
                    if code[k].kind == "dma" and code[k].tag in x.need: young = max(young, k)
            if young < 0: setattr(x, attr, None)
            else:
                cnt = sum(flag[young + 1:w])
                setattr(x, attr, min(cnt, 15 if attr == "lg" else 63))
    for x in code:
        if x.kind == "wait":
            parts = []
            if x.vm is not None: parts.append(f"vmcnt({x.vm})")
            if x.lg is not None: parts.append(f"lgkmcnt({x.lg})")
            x.text = "s_waitcnt " + " ".join(parts) if parts else None
    return [x for x in code if x.text is not None]

def check(code):
    errs = []
    pos = 0
    P = []
    for x in code:
        P.append(pos); pos += 0 if x.kind == "label" else x.nops
    def dist(a, b): return P[b] - P[a] - code[a].nops
    lastw = {}; lastc = {}; laststore = {}
    dsq = []; vmq = []; done = set()
    smem_pending = set()
    dma_by_tag = defaultdict(list); read_by_tag = defaultdict(list)
    done_at = {}; barriers = []
    def slot_of(tag):
        if tag[0] == "P": return [("Q", 0), ("Q", 1), tag, ("V", 3), tag, ("K", 2), tag, ("K", 3)][tag[1]]
        return (tag[0], tag[1] & 3) if tag[0] in "KV" else ("Q", tag[1] % NQS)
    shared = lambda tag: tag[0] in "KV" or tag == ("P", 3)
    slot_last = {}
    VAL = ("valu", "trans", "pk", "perm")
    for k, x in enumerate(code):
        if x.kind == "wait":
            if x.lg is not None:
                while len(dsq) > x.lg: p = dsq.pop(0); done.add(p); done_at[p] = k
                if x.lg == 0: smem_pending.clear()
            if x.vm is not None:
                while len(vmq) > x.vm: p = vmq.pop(0); done.add(p); done_at[p] = k
            continue
        if x.kind == "barrier": barriers.append(k); continue
        def E(msg, p): errs.append(f"[{k}] {x.text}  <- [{p}] {code[p].text}: {msg}")
        for rg in x.rd + x.cread + x.wr:
            p = lastw.get(rg)
            if p is None: continue
            w = code[p]; d = dist(p, k)
            isread = rg in x.rd or rg in x.cread
            if w.kind in ("ds", "vload"):
                if p not in done: E("load not waited", p)
            elif w.kind in ("mfma", "smfmac"):
                need = 8 if w.kind == "mfma" else 12
                if x.kind in ("mfma", "smfmac"):
                    if rg in x.rd:
                        if d < need: E("mfma D->A/B", p)
                    elif rg in x.cread:
                        if not (x.cread == w.wr and x.kind == w.kind) and d < need - 2: E("mfma D->C overlap", p)
                    else:
                        if d < need - 2 and x.wr != w.wr: E("mfma D->D", p)
                elif d < need: E("mfma D->valu/mem", p)
            elif w.kind in VAL:
                if rg[0] in "va":
                    if x.kind in ("mfma", "smfmac") and isread and d < 2: E("valu->mfma", p)
                    if x.kind == "perm" and isread and d < 2: E("valu->permlane", p)
                    if w.kind == "trans" and x.kind in VAL and x.kind != "trans" and isread and d < 1: E("trans->valu", p)
                    if "readfirstlane" in x.text and d < 1: E("valu->readfirstlane", p)
                if rg[0] == "s":
                    if x.kind in ("dma", "vload", "vstore") and d < 5: E("valu sgpr->vmem", p)
                    if x.kind in VAL and isread and d < 2: E("valu sgpr->valu", p)
            elif w.kind == "salu":
                if rg[0] == "m" and x.kind == "dma" and d < 1: E("m0->dma", p)
        for rg in x.wr:
            p = lastc.get(rg)
            if p is not None and x.kind in VAL and dist(p, k) < (3 if code[p].kind == "mfma" else 7): E("mfma C read -> valu write", p)
            p = laststore.get(rg)
            if p is not None and dist(p, k) < 2: E("store data WAR", p)
        if x.kind == "ds" and x.tag:
            ds = dma_by_tag[x.tag]
            if len(ds) != (2 if x.tag[0] in "QP" else 4): errs.append(f"[{k}] {x.text}: tile {x.tag} has {len(ds)} dma")
            for p in ds:
                if p not in done: E("dma not waited", p)
                elif x.tag[0] in "KV" and not any(done_at[p] < b < k for b in barriers): E("no barrier after dma wait", p)
            if slot_last.get(slot_of(x.tag)) != x.tag: errs.append(f"[{k}] {x.text}: slot holds {slot_last.get(slot_of(x.tag))} not {x.tag}")
            read_by_tag[x.tag].append(k)
        if x.kind == "dma":
            old = slot_last.get(slot_of(x.tag))
            if old is not None and old != x.tag:
                rs = read_by_tag[old]
                exp = {"K": 16, "V": 32, "Q": 2, "P": 2}[old[0]]
                if len(rs) != exp: errs.append(f"[{k}] {x.text}: overwrites {old} after {len(rs)} reads")
                for p in rs:
                    if p not in done: E("slot WAR: read not waited", p)
                    elif shared(old) and not any(done_at[p] < b < k for b in barriers): E("slot WAR: no barrier", p)
            slot_last[slot_of(x.tag)] = x.tag
            dma_by_tag[x.tag].append(k)
        if x.kind == "ds": dsq.append(k)
        if x.kind in ("dma", "vload", "vstore"):
            vmq.append(k)
            if len(vmq) > 63: errs.append(f"[{k}] more than 63 vmem in flight")
        for rg in x.wr: lastw[rg] = k
        for rg in x.cread: lastc[rg] = k
        if x.kind == "vstore":
            for rg in x.rd[:4]: laststore[rg] = k
    return errs

def slow_path():
    L = []
    A = L.append
    Q, K, SS, P, M, T, LA, VF = 128, 144, 176, 184, 188, 189, 192, 64
    VK, VL, VS, MC = 200, 201, 202, 203
    A("s_or_b64 s[54:55], s[46:47], s[48:49]")
    A("s_or_b64 s[54:55], s[54:55], s[50:51]")
    A("s_cmp_eq_u64 s[54:55], 0")
    A("s_cbranch_scc1 L_end")
    A("s_waitcnt vmcnt(0) lgkmcnt(0)")
    A(f"s_lshl_b32 s3, s{S_W}, 12")
    A(f"v_subrev_u32 v{VK}, s3, v{V_OOFF}")
    A(f"v_mbcnt_lo_u32_b32 v{T}, -1, 0")
    A(f"v_mbcnt_hi_u32_b32 v{T}, -1, v{T}")
    A(f"v_lshlrev_b32 v{VL}, 4, v{T}")
    A(f"v_lshrrev_b32 v{M}, 2, v{T}")
    A(f"v_lshlrev_b32 v{M}, 8, v{M}")
    A(f"v_and_b32 v{T}, 3, v{T}")
    A(f"v_lshl_add_u32 v{M}, v{T}, 4, v{M}")
    A(f"v_add_u32 v{VS}, s{S_MQ}, v{M}")
    A("s_mov_b32 s56, 0")
    A("L_s_item:")
    A("s_lshr_b32 s57, s56, 2")
    A("s_lshl_b32 s58, s57, 1")
    A("s_mov_b32 m0, s58")
    A("s_nop 1")
    A(f"s_movrels_b64 s[54:55], s[{S_FLAG}:{S_FLAG+1}]")
    A("s_cmp_eq_u64 s[54:55], 0")
    A("s_cbranch_scc1 L_s_next")
    A("s_mov_b32 m0, s56")
    A("s_nop 1")
    A(f"s_movrels_b32 s59, s{S_QO}")
    A("s_mov_b32 m0, s57")
    A("s_nop 1")
    A(f"s_movrels_b32 s60, s{S_KV}")
    for t in range(4): A(f"buffer_load_dwordx4 v[{Q+4*t}:{Q+4*t+3}], v{V_OOFF}, s[{S_Q}:{S_Q+3}], s59 offen offset:{64*t}")
    A(f"v_mov_b32 v{M}, 0xff800000")
    A("s_mov_b32 s61, s60")
    A("s_mov_b32 s63, 32")
    A("L_s_max:")
    for t in range(4): A(f"buffer_load_dwordx4 v[{K+4*t}:{K+4*t+3}], v{VK}, s[{S_K}:{S_K+3}], s61 offen offset:{64*t}")
    A("s_waitcnt vmcnt(0)")
    for t in range(4): A(f"v_mfma_f32_16x16x32_bf16 v[{SS}:{SS+3}], v[{K+4*t}:{K+4*t+3}], v[{Q+4*t}:{Q+4*t+3}], " + ("0" if t == 0 else f"v[{SS}:{SS+3}]"))
    A("s_nop 9")
    A(f"v_max3_f32 v{M}, v{M}, v{SS}, v{SS+1}")
    A(f"v_max3_f32 v{M}, v{M}, v{SS+2}, v{SS+3}")
    A("s_add_u32 s61, s61, 4096")
    A("s_sub_u32 s63, s63, 1")
    A("s_cmp_lg_u32 s63, 0")
    A("s_cbranch_scc1 L_s_max")
    for sw in ("32", "16"):
        A(f"v_mov_b32 v{T}, v{M}")
        A("s_nop 2")
        A(f"v_permlane{sw}_swap_b32 v{M}, v{T}")
        A("s_nop 1")
        A(f"v_max_f32 v{M}, v{M}, v{T}")
    A(f"v_mul_f32 v{MC}, s{S_C}, v{M}")
    for j in range(32): A(f"v_mov_b32 v{j}, 0")
    for j in range(4): A(f"v_mov_b32 v{LA+j}, 0")
    A("s_mov_b32 s61, s60")
    A("s_mov_b32 s63, 16")
    A("L_s_pv:")
    A(f"s_mov_b32 m0, s{S_MQ}")
    for h in range(2):
        A(f"s_add_u32 s3, s61, {4096*h}")
        for t in range(4): A(f"buffer_load_dwordx4 v[{K+16*h+4*t}:{K+16*h+4*t+3}], v{VK}, s[{S_K}:{S_K+3}], s3 offen offset:{64*t}")
        for t in range(4): A(f"buffer_load_dwordx4 v{VL}, s[{S_V}:{S_V+3}], s3 offen offset:{1024*t} lds")
        A("s_waitcnt vmcnt(0)")
        for db in range(8): A(f"ds_read_b64_tr_b16 v[{VF+4*db+2*h}:{VF+4*db+2*h+1}], v{VS} offset:{64*(db >> 1) + 8*(db & 1)}")
        A("s_waitcnt lgkmcnt(0)")
    for h in range(2):
        for t in range(4): A(f"v_mfma_f32_16x16x32_bf16 v[{SS+4*h}:{SS+4*h+3}], v[{K+16*h+4*t}:{K+16*h+4*t+3}], v[{Q+4*t}:{Q+4*t+3}], " + ("0" if t == 0 else f"v[{SS+4*h}:{SS+4*h+3}]"))
    A("s_nop 9")
    for j in range(8): A(f"v_fma_f32 v{SS+j}, v{SS+j}, s{S_C}, -v{MC}")
    for j in range(8): A(f"v_exp_f32 v{SS+j}, v{SS+j}")
    A("s_nop 1")
    for j in range(4): A(f"v_cvt_pk_bf16_f32 v{P+j}, v{SS+2*j}, v{SS+2*j+1}")
    A("s_nop 2")
    A(f"v_mfma_f32_16x16x32_bf16 v[{LA}:{LA+3}], a[{A_ONE}:{A_ONE+3}], v[{P}:{P+3}], v[{LA}:{LA+3}]")
    for db in range(8):
        o = 4*db
        A(f"v_mfma_f32_16x16x32_bf16 v[{o}:{o+3}], v[{VF+4*db}:{VF+4*db+3}], v[{P}:{P+3}], v[{o}:{o+3}]")
    A("s_nop 3")
    A("s_add_u32 s61, s61, 8192")
    A("s_sub_u32 s63, s63, 1")
    A("s_cmp_lg_u32 s63, 0")
    A("s_cbranch_scc1 L_s_pv")
    A("s_nop 9")
    A(f"v_rcp_f32 v{T}, v{LA}")
    A("s_nop 1")
    for j in range(32): A(f"v_mul_f32 v{j}, v{T}, v{j}")
    for u in range(4):
        for j in range(4): A(f"v_cvt_pk_bf16_f32 v{8*u+j}, v{8*u+2*j}, v{8*u+2*j+1}")
        A(f"buffer_store_dwordx4 v[{8*u}:{8*u+3}], v{V_OOFF}, s[{S_O}:{S_O+3}], s59 offen offset:{64*u}")
    A("s_waitcnt vmcnt(0)")
    A("L_s_next:")
    A("s_add_u32 s56, s56, 1")
    A(f"s_cmp_lt_u32 s56, {4*opt.nblocks}")
    A("s_cbranch_scc1 L_s_item")
    return L

def stamp_out():
    if not opt.stamps: return []
    if opt.probe >= 0:
        n = stamp_n[0]
        ins = 's_memtime' if opt.scyc else 's_memrealtime'
        if opt.pavg:
            spin = lambda n: [f"L_spin{n}:", "s_sleep 2", "s_memrealtime s[54:55]", "s_waitcnt lgkmcnt(0)", "s_sub_u32 s54, s54, s96",
                              "s_cmp_lt_u32 s54, s3", f"s_cbranch_scc1 L_spin{n}"]
            return (["s_waitcnt vmcnt(0)", f"{ins} s[{S_STAMP+2*n}:{S_STAMP+2*n+1}]", "s_load_dwordx2 s[56:57], s[0:1], 32", "s_waitcnt lgkmcnt(0)",
                    "s_mov_b32 s58, 256", "s_mov_b32 s59, 0x20000",
                    f"s_sub_u32 s3, s{S_STAMP+2*opt.probe}, s{S_STAMP+2*opt.probe0}", "v_mov_b32 v2, s3", "v_mov_b32 v1, 0",
                    "s_mov_b64 exec, 1", "buffer_atomic_add v2, v1, s[56:59], 0 offen", "s_waitcnt vmcnt(0)", "s_mov_b64 exec, -1", "s_mov_b32 s3, 10000"] + spin(0) +
                    [f"s_add_u32 s3, s2, s{S_W}", "s_cmp_lg_u32 s3, 0", "s_cbranch_scc1 L_nospin",
                     "buffer_load_dword v2, v1, s[56:59], 0 offen sc0 sc1", "s_waitcnt vmcnt(0)", "v_readfirstlane_b32 s3, v2", "s_nop 3",
                     f"s_lshr_b32 s3, s3, {11 if opt.scyc else 8}", "s_add_u32 s3, s3, 10000"] + spin(1) + ["L_nospin:"])
        return ["s_waitcnt vmcnt(0)", f"{ins} s[{S_STAMP+2*n}:{S_STAMP+2*n+1}]", "s_waitcnt lgkmcnt(0)",
                f"s_sub_u32 s3, s{S_STAMP+2*opt.probe}, s{S_STAMP+2*opt.probe0}", "s_lshr_b32 s3, s3, 1" if opt.scyc else "s_lshl_b32 s3, s3, 2", "s_add_u32 s3, s3, 10000",
                "L_spin:", "s_sleep 2", "s_memrealtime s[56:57]", "s_waitcnt lgkmcnt(0)", f"s_sub_u32 s56, s56, s96",
                "s_cmp_lt_u32 s56, s3", "s_cbranch_scc1 L_spin"]
    L = ["s_waitcnt vmcnt(0)"] + [x.text for x in stamp()] + ["s_load_dwordx2 s[56:57], s[0:1], 40", "s_waitcnt lgkmcnt(0)"]
    n = stamp_n[0]
    L += [stamp_save(k).text for k in range(max(0, n - 12), n)]
    L += ["s_mov_b32 s58, 0x1000000", "s_mov_b32 s59, 0x20000", "s_lshl_b32 s3, s2, 2", f"s_add_u32 s3, s3, s{S_W}", "s_lshl_b32 s3, s3, 10",
          "v_mbcnt_lo_u32_b32 v1, -1, 0", "v_mbcnt_hi_u32_b32 v1, -1, v1", "v_lshl_add_u32 v1, v1, 2, s3", f"v_mov_b32 v2, {n}",
          "buffer_store_dword v2, v1, s[56:59], 0 offen offset:768"]
    for k in range(3): L.append(f"buffer_store_dword v{253+k}, v1, s[56:59], 0 offen offset:{256*k}")
    L += ["s_getpc_b64 s[60:61]", "L_pc2:", "s_load_dwordx2 s[56:57], s[0:1], 32", "s_waitcnt lgkmcnt(0)", "s_mov_b32 s58, 256",
          f"s_sub_u32 s60, s60, L_pc2 - {NAME}", "s_subb_u32 s61, s61, 0", "v_mov_b32 v2, s60", "v_mov_b32 v3, s61", "v_mov_b32 v1, 0",
          "buffer_store_dwordx2 v[2:3], v1, s[56:59], 0 offen"]
    L += ["s_waitcnt vmcnt(0)"]
    return L

HEADER = """; Attention forward, B8 H32 Sq736 Sk512 D128, bf16 in/out.
; q(8,32,736,128) k,v(8,32,512,128) out(8,32,736,128); kernarg: q,k,v,out,debug,ws pointers.
; 256 persistent workgroups x 4 waves (one wave per SIMD, 512 registers); each does three (head, 256-row) blocks.
; S^T = K Q^T and O^T = V^T P^T with 16x16x32 bf16 MFMA; K/V tiles (64 keys) stream through a 4-slot LDS ring by LDS-DMA.
; Softmax shift: per row, the maximum over the first 16 keys stands in for the row maximum (softmax is shift invariant);
; a run-time check on every row sum (must stay below 2^30, NaN fails too) sends the block to a fallback that
; recomputes it with the true row maximum.
; @launch grid=(256,1,1) block=(256,1,1) lds=%d
""" % LDS_BYTES

def sizes(code):
    import subprocess, re, tempfile, os
    texts = sorted({x.text for x in code if x.kind not in ("label", "branch") and "L_" not in x.text and "NSTUBS" not in x.text})
    d = tempfile.mkdtemp()
    open(d + "/a.s", "w").write('.amdgcn_target "amdgcn-amd-amdhsa--gfx950"\n.text\n' + "\n".join(texts) + "\ns_endpgm\n")
    subprocess.run(["clang", "-x", "assembler", "-target", "amdgcn-amd-amdhsa", "-mcpu=gfx950", "-c", d + "/a.s", "-o", d + "/a.o"], check=True)
    o = subprocess.run(["llvm-objdump", "-d", "--mcpu=gfx950", d + "/a.o"], capture_output=True, text=True).stdout
    ad = [int(m.group(1), 16) for m in re.finditer(r"// ([0-9A-F]{12}):", o)]
    assert len(ad) == len(texts) + 1
    d = {t: ad[i+1] - ad[i] for i, t in enumerate(texts)}
    d.update({x.text: 16 for x in code if "buffer_wbl2" in x.text})
    return d

def add_stubs(code):
    opt.nstub_rounds = opt.stub_n0 + opt.stub_n1
    sz = sizes(code)
    k0 = next(i for i, x in enumerate(code) if x.text == "L_main:")
    out = code[:k0+1] + [I('L_stub0:', 'label'), salu(f's_cmp_eq_u32 s{S_WARM}, 1'), I('s_cbranch_scc1 L_ret0', 'branch')]; pos = 8; n = 1; nxt = 4096
    body = code[k0+1:]
    for i, x in enumerate(body):
        if x.kind != "label" and pos >= nxt:
            if out[-1].kind in ("mfma", "smfmac") or pos + sz.get(x.text, 4) + 8 > nxt + 64 - 8:
                if n < 4*opt.nstub_rounds:
                    out += [I(f"L_stub{n}:", "label"), salu(f"s_cmp_eq_u32 s{S_WARM}, 1"), I(f"s_cbranch_scc1 L_ret{n}", "branch")]
                    pos += 8
                n += 1; nxt += 4096
        out.append(x); pos += (40 if x.text.startswith("STUB_CALLS") else 0) if x.kind == "label" else sz.get(x.text, 4)
    for x in out: x.text = x.text.replace("NSTUBS", str(n - 1))
    res = []; used = set()
    for x in out:
        if x.text.startswith("STUB_CALLS"):
            rd = int(x.text[10:])
            if rd >= opt.nstub_rounds: continue
            calls = [salu(f"s_mov_b32 s{S_WARM}, 1")]
            for w in range(4):
                k = 4*rd + w
                if k >= n: continue
                calls += [salu(f"s_cmp_eq_u32 s{S_W}, {w}"), I(f"s_cbranch_scc1 L_stub{k}", "branch")]; used.add(k)
            calls += [I(f"L_ret{rd}:", "label"), salu(f"s_mov_b32 s{S_WARM}, 0")]
            res += calls
        else: res.append(x)
    out = []
    for x in res:
        if x.text.startswith("s_cbranch_scc1 L_ret"):
            k = int(x.text.split("L_ret")[1])
            x.text = f"s_cbranch_scc1 L_ret{k // 4}" if k in used else "s_nop 0"
        out.append(x)
    return out

def generate():
    stamp_n[0] = 0
    main, stats = None, None
    s = setup(); p = prologue(); main, stats = body()
    code = resolve(s + p + main)
    if opt.stubs: code = add_stubs(code)
    errs = check(code)
    if opt.abl:
        k0 = len(s) + len(p) + 60
        def keep(k, x):
            if k < k0: return True
            a = opt.abl
            if 'd' in a and x.kind == "dma" and x.tag[0] in "KV": return False
            if 'q' in a and x.kind == "dma" and x.tag[0] == "Q": return False
            if 'r' in a and x.kind == "ds": return False
            if 'o' in a and x.kind == "vstore": return False
            if 's' in a and x.kind == "smfmac": return False
            if 'e' in a and x.kind == "trans": return False
            if 'c' in a and x.text.startswith("v_cvt_pk"): return False
            if 'p' in a and (x.kind == "pk" or x.text.startswith(("v_lshlrev_b32", "v_and_b32", "v_accvgpr_write"))): return False
            if 'b' in a and x.kind == "barrier": return False
            return True
        code = [x for k, x in enumerate(code) if keep(k, x)]
    lines = [x.text if x.kind == "label" else "  " + x.text for x in code]
    lines += [x if x.endswith(":") else "  " + x for x in stamp_out() + ([] if opt.abl else slow_path())]
    nbytes_guess = "(((L_end - L_pc) >> 10) << 10) - 1024"
    txt = HEADER + f""".amdgcn_target "amdgcn-amd-amdhsa--gfx950"
.text
.globl {NAME}
.p2align 8
.type {NAME},@function
{NAME}:
""" + "\n".join(lines).replace("CODE_LAST_KIB", nbytes_guess) + f"""
L_end:
  s_endpgm
.if L_end - L_main < 65536
  .fill (65536 - (L_end - L_main)) / 4, 4, 0xbf810000
.endif
.section .rodata,"a"
.p2align 6
.amdhsa_kernel {NAME}
  .amdhsa_next_free_vgpr 512
  .amdhsa_next_free_sgpr 102
  .amdhsa_accum_offset 256
  .amdhsa_group_segment_fixed_size 0
  .amdhsa_kernarg_size 48
  .amdhsa_user_sgpr_count 2
  .amdhsa_user_sgpr_kernarg_segment_ptr 1
  .amdhsa_system_sgpr_workgroup_id_x 1
  .amdhsa_float_denorm_mode_32 3
.end_amdhsa_kernel
"""
    return txt, errs, stats

if __name__ == "__main__":
    out = sys.argv[1]
    for a in sys.argv[2:]:
        k, v = a.split("="); t = type(getattr(opt, k)); setattr(opt, k, v if t is str else t(int(v)))
    txt, errs, stats = generate()
    for e in errs[:40]: print("HAZARD", e)
    print(len(errs), "hazards;", stats, len(txt), "chars")
    open(out, "w").write(txt)
    sys.exit(1 if errs else 0)
```

```python
import sys, heapq
from collections import defaultdict
import gen
from gen import *

opt.tail_k = 2
opt.bar_every = 1
opt.vm_sp = 8
opt.st_gap = 32
opt.vm_lat = 120
opt.ld_lat = 9
opt.pk_pre = True
opt.bar_pos = 88
opt.pre_start = 16
opt.dbg_sched = 0
opt.full_from = 2
opt.st_gap0 = 99
opt.st_gap2 = 40
opt.wb = 0
opt.vm_burst = 1
opt.q_ahead = 400
opt.tail_st_gap = 14

MEMK = ("ds", "dma", "vstore", "vload")
VMK = ("dma", "vstore", "vload")
SCK = ("salu", "wait", "barrier")
COST2 = {"valu": 1, "trans": 2, "pk": 1, "perm": 1, "ds": 1, "dma": 1, "vstore": 3, "vload": 1}
BIG = 10**9

class Node:
    __slots__ = ("i", "m", "pred", "succ", "est", "dl", "pin", "gap", "pos", "left", "burst")
    def __init__(s, i, m=None):
        s.i, s.m, s.pred, s.succ, s.est, s.dl, s.pin, s.gap, s.pos, s.left, s.burst = i, m, {}, [], 0, BIG, None, None, None, 0, None

class Prog:
    def __init__(s):
        s.M = []; s.F = []; s.node = {}
        s.lw = {}; s.lr = defaultdict(list)
    def edge(s, p, x, dist=0, lat=0):
        if p is x: return
        d, l = x.pred.get(p, (0, 0))
        if p not in x.pred: p.succ.append(x)
        x.pred[p] = (max(d, dist), max(l, lat))
    def add(s, ins, est=0, dl=BIG, pin=None):
        ism = ins.kind in ("mfma", "smfmac")
        x = Node(ins, len(s.M) if ism else None)
        x.est, x.dl, x.pin = est, dl, pin
        if pin is not None: x.est = x.dl = pin
        for rg in ins.rd + ins.cread:
            p = s.lw.get(rg)
            if p: s.dep(p, x, rg, "raw")
        for rg in ins.wr:
            p = s.lw.get(rg)
            if p: s.dep(p, x, rg, "waw")
            for p in s.lr[rg]: s.dep(p, x, rg, "war")
        for rg in ins.wr: s.lw[rg] = x; s.lr[rg] = []
        for rg in ins.rd + ins.cread: s.lr[rg].append(x)
        (s.M if ism else s.F).append(x); s.node[id(ins)] = x
        return x
    def dep(s, p, x, rg, kind):
        d = edge_dist(p.i, x.i, rg, kind)
        lat = 0
        if p.i.kind == "ds" and kind != "war": lat = opt.ld_lat
        elif p.m is None and x.m is not None: lat = 2 if d else 1
        elif p.m is None and (d or (x.i.kind in MEMK + SCK and p.i.kind in VALK)): lat = 1
        s.edge(p, x, d, lat)

def phases():
    nt = NT(); A4 = (0, 1, 2, 3); A, B = (0, 1), (2, 3)
    k = opt.tail_k
    ph = [((T + 1, A4), (T, A4)) for T in range(nt - 1 - k)]
    if k == 0: return ph + [(None, (nt - 1, A4))]
    seq = [(T, A) for T in range(nt - k, nt)] + [(T, B) for T in range(nt - k, nt)]
    prev = (nt - k - 1, A4)
    for x in seq: ph.append((x, prev)); prev = x
    return ph + [(None, prev)]

def body2():
    nt = NT(); nb = opt.nblocks
    P = Prog()
    ph = phases()
    kcount = [0]; vcount = [0]
    reads = defaultdict(list)
    phase_start = []; group_start = []
    un = [0]
    done_db = defaultdict(set)
    items = []
    lnodes = {}
    tailitems = []
    pre_at = {8*r + 0: r for r in range(nb - 1)}
    pre_nodes = {}
    first_kset = True; first_vsets = 0

    def kset(T, kb):
        buf = kcount[0] & 1; kcount[0] += 1
        for t in range(4):
            if T == 1 and (kb == 0 or (kb == 1 and t == 0)): continue
            ins = k_read(T, kb, t, dest=A_K + 16*buf + 4*t)
            reads[("K", T)].append(P.add(ins))
        return A_K + 16*buf
    def vset(T, db):
        buf = vcount[0] & 3; vcount[0] += 1
        u, p = db >> 1, db & 1
        for ks in range(2):
            for hf in range(2):
                if T == 0 and 4*db + 2*ks + hf < 10: continue
                ins = v_read(T, db, ks, hf, dest=A_V + 8*buf + 4*ks + 2*hf)
                reads[("V", T)].append(P.add(ins))
        return A_V + 8*buf

    for pi, (qk, pv) in enumerate(ph):
        phase_start.append(len(P.M))
        if pv and pv[0] in pre_at and pv[1][0] == 0 and pv[0] not in pre_nodes:
            r = pre_at[pv[0]]; lst = []
            for k in range(16):
                kap = 16*(r + 1) + k
                if not kap & 1: w = P.add(wait(vm="auto", need=[("Q", kap >> 1)]))
                rd = P.add(q_read(kap)); P.edge(w, rd)
                ops = [P.add(o) for o in prescale_ops(V_RAW + 4*(kap & 1), q_reg(r + 1, k >> 2, k & 3), opt.pk_pre)]
                if opt.pk_pre:
                    for o in ops[8:12]: o.burst = ops[8:12]
                lst.append((kap, w, rd, ops))
            pre_nodes[pv[0]] = lst
        units = [(qk[0], kb, qb) for kb in range(4) for qb in qk[1]] if qk else []
        pairs = [(pv[0], db, pv[1][j:j+2]) for db in range(8) for j in range(0, len(pv[1]), 2)] if pv else []
        ns = max(len(units), len(pairs))
        smf = {}
        if pv:
            early = pv[0] % 8 == 7
            for n, qb in enumerate(pv[1]):
                smf.setdefault((1 + n // 2) if early else (ns // 8) * (1 + n * (8 // len(pv[1])) // 2 + (0 if len(pv[1]) == 4 else 1)), []).append(qb)
        iu = ip = 0; kb_cur = db_cur = None
        for s_ in range(ns):
            group_start.append(len(P.M))
            if iu < len(units) and iu * ns <= s_ * len(units):
                T1, kb, qb = units[iu]; iu += 1
                if kb != kb_cur: kreg = kset(T1, kb); kb_cur = kb
                special = T1 % 8 == 0 and kb == 0
                d = p_reg(T1, qb, 1) if special else V_S + 4*(un[0] & 1)
                un[0] += 1
                for t in range(4):
                    cc = None if t else ("0" if special else V_NEGM + 4*qb)
                    P.add(mfma("v", d, "a", kreg + 4*t, "a", q_reg(T1 // 8, qb, t), cc))
                if special:
                    for o in max_ops(d, qb):
                        if not isinstance(o, str): P.add(o)
                e, cv = soft_ops(d, p_reg(T1, qb, kb >> 1) + 2*(kb & 1))
                for o in e + cv: P.add(o)
            if ip < len(pairs) and ip * ns <= s_ * len(pairs):
                T0, db, qs = pairs[ip]; ip += 1
                if db != db_cur: vreg = vset(T0, db); db_cur = db
                for qb in qs:
                    for ks in range(2):
                        last = P.add(mfma("v", o_reg(db, qb), "a", vreg + 4*ks, "v", p_reg(T0, qb, ks), "0" if (T0 % 8 == 0 and ks == 0) else None))
                    if T0 % 8 == 7 and db & 1: items.append((T0 // 8, db >> 1, qb, last))
            for qb in smf.get(s_, []):
                P.add(smfmac(qb, p_reg(pv[0], qb, 0)))
                if pv[0] % 8 == 7:
                    r = pv[0] // 8
                    lnodes[(r, qb)] = [P.add(o) for o in l_ops(r, qb, r < nb - 1)]
            while items:
                r, u, qb, last = items.pop(0)
                tailitems.append((r, u, qb, last, None))
                tailitems[-1] = (r, u, qb, last, add_item(P, r, u, qb, last))
    n = len(P.M)
    gs = group_start
    full = lambda T: phase_start[T]
    bars = []
    ps = phase_start + [n]
    bpos = [ps[i] + (ps[i+1] - ps[i]) * opt.bar_pos // 132 for i in range(len(ph))]
    firstuse = {tg: min(y.m for x in lst for y in x.succ if y.m is not None) for tg, lst in reads.items() if lst}
    unpub = [("K", x) for x in range(2, nt)] + [("V", x) for x in range(1, nt)]
    enabled = {("K", x) for x in range(5)} | {("V", x) for x in range(4)}
    enable = {}; freeK = 0; freeV = -1
    blist = list(range(len(ph))) if opt.bar_every == 1 else [0] + list(range(1, nt - 4, 2)) + list(range(nt - 4, len(ph)))
    for bi, pi in enumerate(blist):
        if not unpub: break
        g = bpos[pi]
        nxt = bpos[blist[bi + 1]] if bi + 1 < len(blist) else n
        if all(tg in enabled for tg in unpub) and pi >= nt - 6: pub = list(unpub)
        else: pub = [tg for tg in unpub if firstuse[tg] - opt.ld_lat - 30 < nxt]
        assert all(tg in enabled for tg in pub), (pi, pub)
        unpub = [tg for tg in unpub if tg not in pub]
        free = []
        if pi <= nt - 2 - opt.tail_k:
            free = [("K", x) for x in range(freeK + 1, pi + 2)] + [("V", x) for x in range(freeV + 1, pi + 1)]
            freeK, freeV = pi + 1, pi
        free = [tg for tg in free if tg[1] + 4 < nt]
        w = P.add(wait(vm="auto", lg="bar", need=pub), pin=g - 1)
        b = P.add(barrier(), pin=g); P.edge(w, b, 0, 1)
        w.burst = [x for tg in free for x in reads[tg]]
        for tg in free:
            for x in reads[tg]: x.dl = min(x.dl, g - 1 - 7)
            enable[(tg[0], tg[1] + 4)] = b; enabled.add((tg[0], tg[1] + 4))
        for tg in pub:
            for x in reads[tg]: P.edge(b, x)
        bars.append((g, w, pub))
    assert not unpub
    pubgap = {tg: g for g, w, pub in bars for tg in pub}
    pubw = {tg: w for g, w, pub in bars for tg in pub}
    qplan = {}
    for T0, lst in pre_nodes.items():
        lo = gs[16*T0 + opt.pre_start + (10 if T0 == 0 else 0)]; hi = gs[16*(T0 + 6) + 8]
        for k, (kap, w, rd, ops) in enumerate(lst):
            a = lo + (hi - lo) * k // 16; b = lo + (hi - lo) * (k + 1) // 16
            qplan[kap] = a
            if not kap & 1: w.est = a - 8; w.dl = a - 1
            rd.est = a; rd.dl = a + 4
            for j, o in enumerate(ops): o.dl = min(o.dl, a + 4 + opt.ld_lat + (b - a) * (j + 1) // len(ops))
    jobs = []
    for kind, first in (("K", opt.first_k), ("V", opt.first_v)):
        for T in range(first, nt):
            b = enable.get((kind, T))
            est = b.pin if b else 0
            for t in range(4): jobs.append([est, pubgap[(kind, T)] - opt.vm_lat - 4*(3 - t) - (32 if pubgap.get((kind, T + 1)) == pubgap[(kind, T)] else 0), kind, T, t])
    for pc in range(8, 8*nb):
        est = qplan[2*(pc - NQS) + 1] + 4 + opt.ld_lat + 10 if pc - NQS >= 8 else 110
        est = max(est, qplan[2*pc] - opt.q_ahead)
        for hh in range(2): jobs.append([est, qplan[2*pc] - 8 - opt.vm_lat - 4*(1 - hh), "Q", pc, hh])
    order = []; t = 0
    jobs.sort()
    pend = list(jobs)
    while pend:
        av = [j for j in pend if j[0] <= t]
        if not av: t = min(j[0] for j in pend); continue
        j = min(av, key=lambda j: (j[1], j[2], j[3], j[4])); pend.remove(j); order.append(j); t += (opt.vm_sp + 1 if j[1] > t else 2)
    late = [P.add(o, dl=100) for o in gen.late_setup]
    for a, b in zip(late, late[1:]): P.edge(a, b, 0, 1)
    qfirst = {kap: ops[0] for lst in pre_nodes.values() for kap, w, rd, ops in lst}
    qwait = {kap: w for lst in pre_nodes.values() for kap, w, rd, ops in lst}
    for est, dl, kind, T, t in order:
        if kind == "Q":
            m, d = q_dma(T, t)
            mn = P.add(m); dn = P.add(d, est=est, dl=max(dl, est + 16 + 4*t))
            if 2*(T - NQS) + 1 in qfirst: P.edge(qfirst[2*(T - NQS) + 1], dn, 0, 1)
            P.edge(late[-1], dn); P.edge(dn, qwait[2*T], 0, 1)
        else:
            if t == 0:
                so = P.add(k_soff(T) if kind == "K" else v_soff(T))
                if T >= 8: P.edge(late[-1], so)
            m, d = (k_dma if kind == "K" else v_dma)(T, t)
            mn = P.add(m); dn = P.add(d, est=est, dl=max(dl, est + 16 + 4*t))
            b = enable.get((kind, T))
            if b: P.edge(b, dn)
            P.edge(dn, pubw[(kind, T)], 0, 1)
    if opt.jit_every:
        for k in range(opt.jit_first, 8):
            g = gs[int((k - opt.jit_first) * opt.jit_every * 1.6) + opt.jit_g0]
            ld, ad = jit_ops()
            P.add(ld, est=g, dl=g + 60); P.add(ad, est=g, dl=g + 100)
    plan_stores(P, tailitems, phase_start, gs)
    return schedule(P, phase_start, gs)

def add_item(P, r, u, qb, last):
    mul, cv, st = epi_ops(r, u, qb)
    mn = [P.add(o) for o in mul]
    if opt.pk_epi:
        for o in mn: o.burst = mn
    cn = [P.add(o) for o in cv]
    last_block = r == opt.nblocks - 1
    if r >= opt.full_from and opt.full_line:
        if not u & 1:
            _pp[("half", qb)] = (mn, cn); return None
        pk = [None, None]
        if not last_block:
            pk = [park_plan(r).get((u - 1 + h, qb)) for h in range(2)]
            pk = [A_Q[r & 1] + 4*p[1] if isinstance(p, tuple) else p for p in pk]
        o1, s1, o2, s2 = line_ops(r, u >> 1, qb, pk)
        x1 = [P.add(o) for o in o1]; sn1 = P.add(s1); x2 = [P.add(o) for o in o2]; sn2 = P.add(s2)
        sn1.burst = (_pp[("half", qb)], (mn, cn), x1, x2, sn2)
        return sn1
    park = None if last_block else park_plan(r).get((u, qb))
    if isinstance(park, tuple): park = A_Q[r & 1] + 4*park[1]
    if park is None: sn = P.add(st)
    else:
        b = V_O + 32*u + 8*qb
        for j in range(4): P.add(valu(f"v_accvgpr_write_b32 {ar(park+j)}, {vr(b+j)}", R("v", b+j), R("a", park+j)))
        sn = P.add(vstore(park, V_OOFF, S_O, S_QO + 4*r + qb, 64*u, "a"))
    sn.burst = (mn, cn)
    return sn

_pp = {}
def park_plan(r):
    if ("plan", r) not in _pp:
        sp = (opt.st_gap2 if r == opt.nblocks - 2 else opt.st_gap) / 8.25
        items = [(u, qb) for u in range(4) for qb in range(4)]
        avail = {it: max(4*it[0] + 3 + (it[1] >> 1), 5) + 1.5 for it in items}
        dead = {it: 16 + 4*it[0] + (it[1] >> 1) - 0.5 for it in items}
        if r >= opt.full_from and opt.full_line:
            avail = {it: 4*(it[0] | 1) + 3 + (it[1] >> 1) + 2.5 + (it[0] & 1) for it in items}
            dead = {it: 16 + 4*it[0] + 2 + (it[1] >> 1) - 0.5 for it in items}
        left = list(items); t = min(avail.values()); slots = {}
        while True:
            cand = [it for it in left if avail[it] <= t < dead[it]]
            if cand:
                it = min(cand, key=lambda x: dead[x]); left.remove(it); slots[it] = t
            elif not any(t < dead[it] for it in left): break
            t += min(sp, opt.st_gap0 / 8.25)
        for it in left: slots[it] = t; t += sp
        nq = max(0, len(left) - 10)
        _pp[("plan", r)] = {it: (("q", 16 - nq + n) if n < nq else A_PARK + 4*(n - nq)) for n, it in enumerate(left)}
        _pp[("slot", r)] = slots
    return _pp[("plan", r)]

def plan_stores(P, tailitems, phase_start, gs):
    nb = opt.nblocks
    for r, u, qb, last, sn in tailitems:
        if r < nb - 1 and sn:
            park_plan(r)
            for uu, x in ([(u - 1, sn), (u, sn.burst[4])] if r >= opt.full_from and opt.full_line else [(u, sn)]):
                t = _pp[("slot", r)][(uu, qb)]
                g = gs[16*(8*r + 7) + int(t)] + int(8*(t - int(t)))
                x.est = g; x.dl = min(x.dl, g + (12 if opt.vm_burst == 1 else 40))
    if opt.wb:
        g = max(sn.dl for r, u, qb, last, sn in tailitems if r == nb - 2) + opt.wb
        P.add(I(f"s_cmp_eq_u32 s{S_WB}, 0\n  s_cbranch_scc0 L_nowb\n  buffer_wbl2 sc1\nL_nowb:", "salu", nops=2), pin=g)
        print("write-back at gap", g, "phases", phase_start[19:])
    n = len(P.M); tv = ts = 0
    for r, u, qb, last, sn in sorted([x for x in tailitems if x[0] == nb - 1 and x[4]], key=lambda x: x[3].m):
        if opt.full_line:
            h0, h1, x1, x2, sn2 = sn.burst
            tv = max(last.m + 8, tv + 8)
            for (mn, cn), t0 in ((h0, tv - 4), (h1, tv)):
                if t0 + 3 < n:
                    for o in mn: o.dl = t0
                    for j, o in enumerate(cn): o.dl = t0 + 1 + j // 2
            for xs, st, t0 in ((x1, sn, tv + 4), (x2, sn2, tv + 6)):
                if t0 + 2 < n:
                    for o in xs: o.dl = t0
                ts = max(t0 + 2, ts + opt.tail_st_gap)
                if ts < n: st.dl = ts
            continue
        mn, cn = sn.burst
        tv = max(last.m + 8, tv + 4); ts = max(tv + 5, ts + opt.tail_st_gap)
        if tv + 3 < n:
            for o in mn: o.dl = tv
            for j, o in enumerate(cn): o.dl = tv + 1 + j // 2
        if ts < n: sn.dl = ts

def schedule(P, phase_start, gs):
    M, F = P.M, P.F; n = len(M)
    indeg = {}
    for x in F: indeg[x] = sum(1 for y in x.succ if y.m is None)
    stack = [x for x in F if indeg[x] == 0]; seen = 0
    while stack:
        x = stack.pop(); seen += 1
        for y in x.succ:
            d, l = y.pred[x]
            lim = (y.m - max(l, 1)) if y.m is not None else (y.dl - l if y.dl < BIG else BIG)
            if x.pin is None: x.dl = min(x.dl, lim)
        for p in x.pred:
            if p.m is None:
                indeg[p] -= 1
                if indeg[p] == 0: stack.append(p)
    assert seen == len(F), "cycle"
    for k, x in enumerate(F): x.left = len(x.pred); x.pos = None
    seq = {x: k for k, x in enumerate(F)}
    pool = [x for x in F if x.left == 0]
    gaps = []; pos = [0]; out_nops = 0
    lastvm = -99; lastst = -99; late = []; bst = [-99, 0]
    def placed(x, g):
        x.gap = g; x.pos = pos[0]; pos[0] += x.i.nops
        for y in x.succ:
            if y.m is None:
                y.left -= 1
                if y.left == 0: pool.append(y)
    def short(x, at):
        return max([d - (at - p.pos - p.i.nops) for p, (d, l) in x.pred.items()] + [0])
    def latok(x, g):
        for p, (d, l) in x.pred.items():
            if p.m is None and p.gap + (l if p.i.kind != "ds" or x.i.kind in VALK else 0) > g: return False
        return True
    for g in range(n + 1):
        final = g == n
        cur = []
        if not final:
            m = M[g]
            for p in m.pred:
                assert p.pos is not None, ("unplaced predecessor", g, m.i, p.i, p.dl, p.est)
            s_ = short(m, pos[0])
            if s_: cur.append(nop(s_)); pos[0] += s_; out_nops += s_
            placed(m, g); cur.append(m.i)
        gp = dict(pre=cur, shadow=[], mem=[], valu=[]); gaps.append(gp)
        load = 0
        def emit(x, where):
            nonlocal load, lastvm, lastst, out_nops
            pool.remove(x)
            s_ = short(x, pos[0])
            if s_: gp[where].append(nop(s_)); pos[0] += s_; load += s_; out_nops += s_
            if x.dl < g: late.append((g, x.dl, x.i.text))
            placed(x, g); gp[where].append(x.i)
            if x.i.kind in VMK:
                if g - lastvm <= 4 and bst[1] < opt.vm_burst: bst[1] += 1
                else: bst[0] = g; bst[1] = 1
                lastvm = g
            if x.i.kind == "vstore": lastst = g
            load += COST2.get(x.i.kind, 0)
        key = lambda x: (x.dl, seq[x])
        if final:
            while pool:
                c = [x for x in pool if short(x, pos[0]) == 0] or pool
                emit(min(c, key=lambda x: seq[x]), "valu")
            break
        sc = sorted([x for x in pool if x.i.kind in SCK and x.est <= g and (latok(x, g) or x.dl <= g)], key=key)
        m0s = [x for x in sc if "m0" in x.i.text]
        if sc and sc[0].dl > g + 3 and m0s: emit(m0s[0], "shadow")
        elif sc and (sc[0].dl <= g + 40 or g % 2): emit(sc[0], "shadow")
        elif not gp["shadow"]: pos[0] += 0
        while True:
            sc = [x for x in pool if x.i.kind in SCK and x.dl <= g and x.est <= g]
            if not sc: break
            emit(min(sc, key=key), "shadow"); load += 1
        def vm_ok(x):
            if x.i.kind not in VMK or x.dl <= g: return True
            stg = opt.tail_st_gap if g >= phase_start[-1 - 2*opt.tail_k] else min(opt.st_gap, opt.st_gap2, opt.st_gap0) - 4
            if x.i.kind == "vstore" and g - lastst < stg: return False
            if opt.vm_burst > 1:
                if g - lastvm < 2: return False
                return (g - lastvm <= 4 and bst[1] < opt.vm_burst) or g - bst[0] >= bst[1] * opt.vm_sp
            return g - lastvm >= (opt.vm_sp if x.i.kind != "vstore" else 3)
        def cands(kinds):
            return sorted([x for x in pool if x.i.kind in kinds and x.est <= g and latok(x, g) and short(x, pos[0]) == 0 and vm_ok(x)], key=key)
        mem = cands(MEMK); val = cands(("valu", "trans", "perm"))
        pkc = cands(("pk",))
        burst = None
        if pkc:
            b = pkc[0]
            if all(y in pool or y.pos is not None for y in b.burst) and b.dl - g <= 10:
                avail = sum(COST2[x.i.kind] for x in val)
                if avail >= 4 or b.dl <= g: burst = [y for y in b.burst if y.pos is None]
        cap = 4 if burst else 2
        nvm = 0
        for x in mem:
            forced = x.dl <= g
            c = COST2[x.i.kind]
            if x.i.kind in VMK and nvm and not forced: continue
            if not forced:
                if load + min(c, 2) > cap: continue
                inburst = opt.vm_burst > 1 and x.i.kind in VMK and g - lastvm <= 4 and val and val[0].dl > g
                if val and val[0].i.kind == "trans" and load == 0 and key(val[0]) < key(x) and not inburst: continue
                if load == 0 and cap == 2 and c == 1:
                    other = [y for y in mem + val if y is not x and COST2[y.i.kind] == 1 and not (y.i.kind in VMK and x.i.kind in VMK)]
                    if not other and any(y.i.kind == "trans" for y in val) and x.dl > g + 2 and not inburst: continue
            if short(x, pos[0]) and not forced: continue
            emit(x, "mem"); nvm += x.i.kind in VMK
        while True:
            f = [x for x in pool if x.i.kind in MEMK and x.dl <= g and x.est <= g]
            if not f or gp["valu"]: break
            emit(min(f, key=key), "mem")
        while True:
            val = cands(("valu", "trans", "perm"))
            f = sorted([x for x in pool if x.i.kind in VALK and x.dl <= g and x.est <= g and x.i.kind != "pk"], key=key)
            if f: emit(f[0], "valu"); continue
            fit = [x for x in val if load + COST2[x.i.kind] <= cap]
            if not fit: break
            x = fit[0]
            if cap - load == 2 and COST2[x.i.kind] == 1:
                ones = [y for y in fit if COST2[y.i.kind] == 1]
                tr = [y for y in fit if y.i.kind == "trans"]
                follow = any(y.left == 1 and y.m is None and y.i.kind in ("valu",) and y.pred[x][0] == 0 for y in x.succ)
                if len(ones) < 2 and tr and not follow and x.dl > g + 1: x = tr[0]
            emit(x, "valu")
        if burst:
            for y in burst: emit(y, "valu")
        while True:
            f = [x for x in pool if x.dl <= g and x.est <= g]
            if not f: break
            emit(min(f, key=key), "valu")
        gp["load"] = load
    assert not pool and all(x.pos is not None for x in F)
    dsn = 0; ds_gap = []; prod = {}
    need = [-1]*(n + 2)
    for g, gp in enumerate(gaps):
        for part in ("pre", "shadow", "mem", "valu"):
            for ins in gp[part]:
                for rg in ins.rd + ins.cread + ins.wr:
                    if rg in prod:
                        gi = g - 1 if part == "pre" else g
                        need[gi] = max(need[gi], prod[rg])
                for rg in ins.wr: prod.pop(rg, None)
                if ins.kind == "ds":
                    for rg in ins.wr: prod[rg] = dsn
                    ins.lg = dsn; ds_gap.append(g); dsn += 1
    before = [0]*(n + 2)
    for g in range(n + 1): before[g + 1] = before[g] + sum(1 for part in ("mem", "valu") for i in gaps[g][part] if i.kind == "ds")
    cov = -1; extra = 0
    for g in range(n + 1):
        for ins in gaps[g]["shadow"]:
            if ins.kind == "wait" and ins.lg == "bar":
                x = P.node[id(ins)]
                tgt = max([y.i.lg for y in x.burst] + [-1])
                assert tgt < before[g]
                if tgt > cov: ins.lg = min(15, before[g] - 1 - tgt); cov = before[g] - 1 - ins.lg
                else: ins.lg = None
        if need[g] > cov:
            h = g
            while h > ds_gap[need[g]] + 2 and h > g - 4 and gaps[h]["shadow"]: h -= 1
            if gaps[h]["shadow"] or h <= ds_gap[need[g]]:
                h = g
                assert ds_gap[need[g]] < g, ("read and use in one gap", g)
                wv = [i for i in gaps[g]["shadow"] if i.kind == "wait" and i.lg is None]
            else: wv = []
            tgt = max(need[g], before[max(0, h - 6)] - 1)
            cnt = min(15, before[h] - 1 - tgt)
            if wv: wv[0].lg = cnt
            else:
                if gaps[h]["shadow"]: extra += 1; gaps[h]["load"] = gaps[h].get("load", 0) + 1
                gaps[h]["shadow"].append(wait(lg=cnt))
            cov = before[h] - 1 - cnt
    for g in range(n + 1):
        for part in ("mem", "valu"):
            for ins in gaps[g][part]:
                if ins.kind == "ds": ins.lg = None
    c = []
    sper = [int(x) for x in opt.sper.split('_')] if opt.sper else [0, 1, 7, 8, 9, 15, 16, 17] + list(range(20, len(phase_start)))
    marks = {phase_start[T] for T in sper if T < len(phase_start)}
    if opt.sgrp: marks = {gs[int(x)] for x in opt.sgrp.split('_')}
    for g, gp in enumerate(gaps):
        if g in marks or g == n: c += stamp()
        lst = gp["pre"] + gp["shadow"] + gp["mem"] + gp["valu"]
        if opt.sgrp and min(marks) <= g <= max(marks):
            for ins in lst:
                if ins.kind in VMK or ins.kind == "barrier" or (ins.kind == "wait" and ins.vm is not None): c += stamp() + [ins] + stamp()
                else: c.append(ins)
        else: c += lst
    c += stamp()
    cyc = [max(16, 8 + 4*gp.get("load", 0)) for gp in gaps[:n]]
    ps = phase_start + [n]
    stats = dict(nbar=sum(1 for x in F if x.i.kind == 'barrier'), per=[sum(cyc[a:b]) for a, b in zip(ps, ps[1:])], gaps=n, est_cycles=sum(cyc), tail_instr=len(gaps[n]["valu"]),
                 under=sum(max(0, 2 - gp.get("load", 0)) for gp in gaps[:n]), nops=out_nops, extra_waits=extra, late=len(late))
    if opt.dbg_sched:
        for l in late[:40]: print("late", l)
    return c, stats

opt.first_k = 3
opt.first_v = 2
gen.body = body2

if __name__ == "__main__":
    out = sys.argv[1]
    for a in sys.argv[2:]:
        k, v = a.split("="); t = type(getattr(opt, k)); setattr(opt, k, v if t is str else t(int(v)))
    txt, errs, stats = gen.generate()
    for e in errs[:40]: print("HAZARD", e)
    print(len(errs), "hazards;", stats, len(txt), "chars")
    open(out, "w").write(txt)
    sys.exit(1 if errs else 0)
```

```python
import sys, struct, math, json
from collections import defaultdict

NAME = "standalone__gqa_softmax__near_ridge_kernel"

class Opt:
    stamps = False
    force_slow = False
    code_prefetch = False
    pk_epi = True
    pk_pre = False
    nblocks = 3
    kv_pol = ''
    q_pol = ''
    o_pol = ''
    olast_pol = ''
    olastb_pol = ''
    o1_pol = ''
    full_line = 1
    late_issue = 1
    st_sp = 25
    st_g0 = 6
    scyc = 0
    sper = ''
    sgrp = ''
    line_prefetch = 1
    head_prefetch = 1
    zero_pad = 1
    pro_order = 0
    k1_late = 0
    k_first = 0
    q2_late = 0
    jit_all = 1
    stub_n0 = 1
    stub_n1 = 2
    stub_late = 1
    stub_early = 0
    nstub_rounds = 4
    jit_every = 29
    jit_first = 2
    jit_g0 = 23
    stubs = 1
    abl = ''
    lin_dma = 0
    probe0 = 0
    pavg = 0
    probe = -1
opt = Opt()

def f2u(x): return struct.unpack("<I", struct.pack("<f", x))[0]
CSCALE = f2u(math.log2(math.e) / math.sqrt(128.0))
THR = f2u(2.0 ** 30)

VE = 0
KB = 65552
VPAR = 32768 + 8
QB = 131088
QW = 7168
NQS = 3
LDS_BYTES = 163840

V_O = 0
V_P = 128
V_S = 192
V_NEGM = 200
V_RAW = 216
V_T = 224
V_JIT = 252
A_DUMMY = 255
V_RCP = 232
V_MT = 224
V_LT = 226
V_KADDR = 240
V_VADDR = 242
V_QADDR = 249
V_KOFF = 245
V_VOFF = 246
V_OOFF = 247
V_IDX = 248
V_OOFF2 = 251
V_TMP = 64
A_Q = [0, 64]
A_K = 128
A_V = 160
A_L = 192
A_ONE = 208
A_PARK = 212
S_K, S_V, S_Q, S_O = 4, 8, 12, 16
S_KV = 20
S_W = 23
S_QO = 24
S_MK, S_MV, S_MQ = 36, 37, 38
S_SK, S_SV = 39, 40
S_LMASK = 58
VCC = ("s", 106)
S_MQ1 = 62
S_C = 42
S_THR = 44
S_FLAG = 46
S_CMP = 52
S_T = 54
S_BIAS = 60
S_ANDM = 41+0
S_WB = 98
S_WARM = 99
S_PC = 100
S_STAMP = 64

def vr(b, n=1): return f"v{b}" if n == 1 else f"v[{b}:{b+n-1}]"
def ar(b, n=1): return f"a{b}" if n == 1 else f"a[{b}:{b+n-1}]"
def sr(b, n=1): return f"s{b}" if n == 1 else f"s[{b}:{b+n-1}]"
def R(c, b, n=1): return [(c, b + i) for i in range(n)]

class I:
    __slots__ = ("text", "kind", "rd", "wr", "tag", "cread", "nops", "need", "vm", "lg", "after")
    def __init__(s, text, kind, rd=(), wr=(), tag=None, cread=(), nops=1):
        s.text, s.kind, s.rd, s.wr, s.tag, s.cread, s.nops = text, kind, list(rd), list(wr), tag, list(cread), nops
        s.need = None; s.vm = None; s.lg = None; s.after = []
    def __repr__(s): return s.text

def mfma(dc, d, ac, a, bc, b, c=None):
    f = {"v": vr, "a": ar}
    if c is None: ct, cr = f[dc](d, 4), R(dc, d, 4)
    elif c == "0": ct, cr = "0", []
    else: ct, cr = f[dc](c, 4), R(dc, c, 4)
    return I(f"v_mfma_f32_16x16x32_bf16 {f[dc](d,4)}, {f[ac](a,4)}, {f[bc](b,4)}, {ct}", "mfma",
             rd=R(ac, a, 4) + R(bc, b, 4), wr=R(dc, d, 4), cread=cr)
def smfmac(qb, pb):
    return I(f"v_smfmac_f32_16x16x64_bf16 {ar(A_L+4*qb,4)}, {ar(A_ONE,4)}, {vr(pb,8)}, {vr(V_IDX)}", "smfmac",
             rd=R("a", A_ONE, 4) + R("v", pb, 8) + R("v", V_IDX), wr=R("a", A_L + 4*qb, 4), cread=R("a", A_L + 4*qb, 4))
def valu(text, rd, wr, kind="valu"): return I(text, kind, rd, wr)
def vexp(r): return I(f"v_exp_f32 {vr(r)}, {vr(r)}", "trans", R("v", r), R("v", r))
def vcvt(d, a, b): return I(f"v_cvt_pk_bf16_f32 {vr(d)}, {vr(a)}, {vr(b)}", "valu", R("v", a) + R("v", b), R("v", d))
def salu(text, rd=(), wr=()): return I(text, "salu", rd, wr)
def nop(n): return I(f"s_nop {n-1}", "nop", nops=n)
def wait(vm=None, lg=None, need=None):
    i = I("s_waitcnt", "wait"); i.vm, i.lg, i.need = vm, lg, need; return i
def barrier(): return I("s_barrier", "barrier")
def dsr(dc, d, addr, off, tag):
    f = {"v": vr, "a": ar}[dc]
    return I(f"ds_read_b128 {f(d,4)}, {vr(addr)} offset:{off}", "ds", R("v", addr), R(dc, d, 4), tag)
def dst(d, addr, off, tag):
    return I(f"ds_read_b64_tr_b16 {ar(d,2)}, {vr(addr)} offset:{off}", "ds", R("v", addr), R("a", d, 2), tag)
def setm0(sbase, imm):

    return I(f"s_add_u32 m0, {sr(sbase)}, {imm}", "salu", R("s", sbase), [("m", 0)])
def pol(p): return ''.join(' ' + x for x in p.split('_') if x)
def dma(voff, srd, soff, imm, tag):
    o = f" offset:{imm}" if imm else ""
    o += pol(opt.q_pol if srd == S_Q else opt.kv_pol)
    return I(f"buffer_load_dwordx4 {vr(voff)}, {sr(srd,4)}, {sr(soff)} offen{o} lds", "dma",
             R("v", voff) + R("s", srd, 4) + R("s", soff) + [("m", 0)], [], tag)
def vload(d, voff, srd, soff, imm):
    o = f" offset:{imm}" if imm else ""
    o += pol(opt.q_pol)
    return I(f"buffer_load_dwordx4 {vr(d,4)}, {vr(voff)}, {sr(srd,4)}, {sr(soff)} offen{o}", "vload",
             R("v", voff) + R("s", srd, 4) + R("s", soff), R("v", d, 4))
def vstore(d, voff, srd, soff, imm, dc="v", last=False):
    o = f" offset:{imm}" if imm else ""
    if 'L' in opt.abl and last: voff = V_KOFF; imm = kq_imm(imm // 64); o = f" offset:{imm}" if imm else ""
    o += pol((opt.olast_pol if (soff - S_QO) % 4 < 2 else opt.olastb_pol) if last else (opt.o1_pol if (soff - S_QO) // 4 == opt.nblocks - 2 and opt.o1_pol else opt.o_pol))
    return I(f"buffer_store_dwordx4 {(vr if dc == 'v' else ar)(d,4)}, {vr(voff)}, {sr(srd,4)}, {sr(soff)} offen{o}", "vstore",
             R(dc, d, 4) + R("v", voff) + R("s", srd, 4) + R("s", soff), [])

def o_reg(db, qb): return V_O + 32*(db >> 1) + 8*qb + 4*(db & 1)
def p_reg(T, qb, ks): return V_P + 32*(T & 1) + 8*qb + 4*ks
def q_reg(r, qb, t): return A_Q[r & 1] + 16*qb + 4*t
def k_reg(kb, t): return A_K + 16*(kb & 1) + 4*t
def v_reg(db, ks): return A_V + 8*(db & 3) + 4*ks
def k_read(T, kb, t, dest=None):
    return dsr("a", k_reg(kb, t) if dest is None else dest, V_KADDR + (t & 1), (T & 3)*16384 + kb*4096 + (t >> 1)*2048, ("K", T))
def v_read(T, db, ks, hf, dest=None):
    u, p = db >> 1, db & 1
    return dst(v_reg(db, ks) + 2*hf if dest is None else dest, V_VADDR + (u & 1), (T & 3)*8192 + (2*ks + hf)*2048 + (u >> 1)*1024 + 8*p, ("V", T))
def kq_imm(j): return (j & 1)*2048 + (j >> 1)*128
def k_dma(T, j):
    return setm0(S_MK, (T & 3)*16384 + j*1024 - kq_imm(j)), dma(V_KOFF, S_K, S_SK, kq_imm(j), ("K", T))
def v_dma(T, j):
    par, up = j & 1, j >> 1; imm = par*1024 + up*128
    return setm0(S_MV, par*VPAR + (T & 3)*8192 + up*1024 - imm), dma(V_VOFF, S_V, S_SV, imm, ("V", T))
def k_soff(T): return salu(f"s_add_u32 {sr(S_SK)}, {sr(S_KV + T//8)}, {(T % 8)*16384}", R("s", S_KV + T//8), R("s", S_SK))
def v_soff(T): return salu(f"s_add_u32 {sr(S_SV)}, {sr(S_KV + T//8)}, {(T % 8)*16384}", R("s", S_KV + T//8), R("s", S_SV))
def q_dma(pc, hh):
    r, qb, tp = pc // 8, (pc >> 1) & 3, pc & 1
    j = 2*tp + hh
    return setm0(S_MQ, (pc % NQS)*2048 + hh*1024 - kq_imm(j)), dma(V_KOFF, S_Q, S_QO + 4*r + qb, kq_imm(j), ("Q", pc))
def qp_dma(qb, j):
    base, off = [(S_MQ, 0), (S_MQ1, 0), (S_MK, 32768), (S_MK, 49152)][qb]
    return setm0(base, off + 1024*j - kq_imm(j)), dma(V_KOFF, S_Q, S_QO + qb, kq_imm(j), ("P", 2*qb + (j >> 1)))
def qp_read(qb, t):
    addr, off = [(V_QADDR, 0), (V_RCP, 0), (V_RCP + 2, 32768), (V_RCP + 2, 49152)][qb]
    return dsr("v", V_O + 16*qb + 4*t, addr + (t & 1), off + 2048*(t >> 1), ("P", 2*qb + (t >> 1)))
def q_read(kap):
    return dsr("v", V_RAW + 4*(kap & 1), V_QADDR + (kap & 1), ((kap >> 1) % NQS)*2048, ("Q", kap >> 1))

def prescale_ops(src, dst_a, pk, tbase=V_T):
    ops = []
    if pk:
        for j in range(4):
            ops.append(valu(f"v_lshlrev_b32 {vr(tbase+2*j)}, 16, {vr(src+j)}", R("v", src+j), R("v", tbase+2*j)))
            ops.append(valu(f"v_and_b32 {vr(tbase+2*j+1)}, 0xffff0000, {vr(src+j)}", R("v", src+j), R("v", tbase+2*j+1)))
        for j in range(4):
            ops.append(valu(f"v_pk_mul_f32 {vr(tbase+2*j,2)}, {vr(tbase+2*j,2)}, {sr(S_C,2)}", R("v", tbase+2*j, 2) + R("s", S_C, 2), R("v", tbase+2*j, 2), "pk"))
        for j in range(4):
            ops.append(vcvt(src+j, tbase+2*j, tbase+2*j+1))
        for j in range(4):
            ops.append(valu(f"v_accvgpr_write_b32 {ar(dst_a+j)}, {vr(src+j)}", R("v", src+j), R("a", dst_a+j)))
    else:
        for j in range(4):
            t0 = tbase + 2*(j & 1)
            ops.append(valu(f"v_lshlrev_b32 {vr(t0)}, 16, {vr(src+j)}", R("v", src+j), R("v", t0)))
            ops.append(valu(f"v_and_b32 {vr(t0+1)}, 0xffff0000, {vr(src+j)}", R("v", src+j), R("v", t0+1)))
            ops.append(valu(f"v_mul_f32 {vr(t0)}, {sr(S_C)}, {vr(t0)}", R("v", t0) + R("s", S_C), R("v", t0)))
            ops.append(valu(f"v_mul_f32 {vr(t0+1)}, {sr(S_C)}, {vr(t0+1)}", R("v", t0+1) + R("s", S_C), R("v", t0+1)))
            ops.append(vcvt(src+j, t0, t0+1))
            ops.append(valu(f"v_accvgpr_write_b32 {ar(dst_a+j)}, {vr(src+j)}", R("v", src+j), R("a", dst_a+j)))
    return ops

BIAS_REG = [60, 61, 63]
def max_ops(x, qb, mt=V_MT, r=0):
    m, t, n = mt, mt + 1, V_NEGM + 4*qb
    ops = [valu(f"v_max3_f32 {vr(m)}, {vr(x)}, {vr(x+1)}, {vr(x+2)}", R("v", x, 3), R("v", m)),
           valu(f"v_max_f32 {vr(m)}, {vr(m)}, {vr(x+3)}", R("v", m) + R("v", x+3), R("v", m)),
           valu(f"v_mov_b32 {vr(t)}, {vr(m)}", R("v", m), R("v", t)),
           "gap2",
           valu(f"v_permlane32_swap_b32 {vr(m)}, {vr(t)}", R("v", m, 2), R("v", m, 2), "perm"),
           valu(f"v_max_f32 {vr(m)}, {vr(m)}, {vr(t)}", R("v", m, 2), R("v", m)),
           valu(f"v_mov_b32 {vr(t)}, {vr(m)}", R("v", m), R("v", t)),
           "gap2",
           valu(f"v_permlane16_swap_b32 {vr(m)}, {vr(t)}", R("v", m, 2), R("v", m, 2), "perm")]
    for j in range(4):
        if qb >= 2 and opt.zero_pad: ops.append(valu(f"v_min3_f32 {vr(n+j)}, -{vr(m)}, -{vr(t)}, s{BIAS_REG[r]}", R("v", m, 2), R("v", n+j)))
        else: ops.append(valu(f"v_min_f32_e64 {vr(n+j)}, -{vr(m)}, -{vr(t)}", R("v", m, 2), R("v", n+j)))
    for j in range(4):
        ops.append(valu(f"v_add_f32 {vr(x+j)}, {vr(n)}, {vr(x+j)}", R("v", n) + R("v", x+j), R("v", x+j)))
    return ops

def soft_ops(x, pd):
    return [vexp(x), vexp(x+1), vexp(x+2), vexp(x+3)], [vcvt(pd, x, x+1), vcvt(pd+1, x+2, x+3)]

def l_ops(r, qb, more):
    a = A_L + 4*qb
    ops = [valu(f"v_accvgpr_read_b32 {vr(V_LT)}, {ar(a)}", R("a", a), R("v", V_LT)),
           valu(f"v_accvgpr_read_b32 {vr(V_LT+1)}, {ar(a+1)}", R("a", a+1), R("v", V_LT+1)),
           valu(f"v_add_f32 {vr(V_LT)}, {vr(V_LT)}, {vr(V_LT+1)}", R("v", V_LT, 2), R("v", V_LT)),
           I(f"v_rcp_f32 {vr(V_RCP+2*qb)}, {vr(V_LT)}", "trans", R("v", V_LT), R("v", V_RCP+2*qb))]
    cm = S_CMP + 2*(qb - 1)
    dst = S_FLAG + 2*r if qb == 0 else cm
    ops.append(valu(f"v_cmp_nlt_f32_e64 {sr(dst,2)}, {vr(V_LT)}, {sr(S_THR)}", R("v", V_LT) + R("s", S_THR), R("s", dst, 2)))
    if opt.pk_epi:
        ops.append(valu(f"v_mov_b32 {vr(V_RCP+2*qb+1)}, {vr(V_RCP+2*qb)}", R("v", V_RCP+2*qb), R("v", V_RCP+2*qb+1)))
    if more:
        ops.append(valu(f"v_accvgpr_write_b32 {ar(a)}, 0", [], R("a", a)))
        ops.append(valu(f"v_accvgpr_write_b32 {ar(a+1)}, 0", [], R("a", a+1)))
    if qb:
        ops.append(salu(f"s_or_b64 {sr(S_FLAG+2*r,2)}, {sr(S_FLAG+2*r,2)}, {sr(cm,2)}", R("s", S_FLAG+2*r, 2) + R("s", cm, 2), R("s", S_FLAG+2*r, 2)))
    return ops

def epi_ops(r, u, qb, park=None):
    b = V_O + 32*u + 8*qb
    rc = V_RCP + 2*qb
    mul = []
    if opt.pk_epi:
        for j in range(0, 8, 2):
            mul.append(valu(f"v_pk_mul_f32 {vr(b+j,2)}, {vr(b+j,2)}, {vr(rc,2)}", R("v", b+j, 2) + R("v", rc, 2), R("v", b+j, 2), "pk"))
    else:
        for j in range(8):
            mul.append(valu(f"v_mul_f32 {vr(b+j)}, {vr(rc)}, {vr(b+j)}", R("v", b+j) + R("v", rc), R("v", b+j)))
    cv = [vcvt(b+j, b+2*j, b+2*j+1) for j in range(4)]
    if park is None:
        st = vstore(b, V_OOFF, S_O, S_QO + 4*r + qb, 64*u, last=(r == opt.nblocks - 1))
    else:
        cv += [valu(f"v_accvgpr_write_b32 {ar(park+j)}, {vr(b+j)}", R("v", b+j), R("a", park+j)) for j in range(4)]
        st = vstore(park, V_OOFF, S_O, S_QO + 4*r + qb, 64*u, "a")
    return mul, cv, st

def line_ops(r, v, qb, park=(None, None)):
    a, b = V_O + 64*v + 8*qb, V_O + 64*v + 32 + 8*qb
    dpp = " row_ror:8 row_mask:0xf bank_mask:0xf"
    ops = [salu(f"s_mov_b64 vcc, {sr(S_LMASK,2)}", [], [VCC])]
    ops += [valu(f"v_cndmask_b32_dpp {vr(a+4+j)}, {vr(b+j)}, {vr(a+j)}, vcc{dpp}", R("v", a+j) + R("v", b+j) + [VCC], R("v", a+4+j), "perm") for j in range(4)]
    last = r == opt.nblocks - 1
    pk = lambda p, x: [valu(f"v_accvgpr_write_b32 {ar(p+j)}, {vr(x+j)}", R("v", x+j), R("a", p+j)) for j in range(4)]
    if park[0] is None: s1 = vstore(a+4, V_OOFF2, S_O, S_QO + 4*r + qb, 128*v, last=last)
    else: ops += pk(park[0], a+4); s1 = vstore(park[0], V_OOFF2, S_O, S_QO + 4*r + qb, 128*v, "a")
    ops2 = [salu(f"s_not_b64 vcc, {sr(S_LMASK,2)}", [], [VCC])]
    ops2 += [valu(f"v_cndmask_b32_dpp {vr(b+4+j)}, {vr(a+j)}, {vr(b+j)}, vcc{dpp}", R("v", a+j) + R("v", b+j) + [VCC], R("v", b+4+j), "perm") for j in range(4)]
    if park[1] is None: s2 = vstore(b+4, V_OOFF2, S_O, S_QO + 4*r + qb, 2048 + 128*v, last=last)
    else: ops2 += pk(park[1], b+4); s2 = vstore(park[1], V_OOFF2, S_O, S_QO + 4*r + qb, 2048 + 128*v, "a")
    return ops, s1, ops2, s2

stamp_n = [0]
def stamp(pro=False):
    if not opt.stamps: return []
    if pro and (opt.sper or opt.sgrp): return []
    n = stamp_n[0]; stamp_n[0] += 1
    ins = 's_memtime' if opt.scyc else 's_memrealtime'
    if opt.probe >= 0:
        assert S_STAMP + 2*n + 3 <= 95
        return [I(f"{ins} {sr(S_STAMP+2*n,2)}", "smem", [], R("s", S_STAMP+2*n, 2))]
    out = [I(f"{ins} {sr(S_STAMP+2*(n%16),2)}", "smem", [], [])]
    if n >= 12: out.append(stamp_save(n - 12))
    return out
def stamp_save(n):
    assert n < 192
    return I(f"v_writelane_b32 v{253 + n//64}, s{S_STAMP+2*(n%16)}, {n%64}", "salu")

def jit_ops():
    return [I(f"global_load_dword a{A_DUMMY}, v{V_JIT}, s[{S_PC}:{S_PC+1}]", "vload", R("v", V_JIT) + R("s", S_PC, 2), []),
            valu(f"v_add_u32 v{V_JIT}, 0x2000, v{V_JIT}", R("v", V_JIT), R("v", V_JIT))]
late_setup = []
def setup():
    c = []
    T = V_TMP
    A = lambda t: c.append(salu(t))
    def V(t, rd, wr): c.append(valu(t, rd, wr))
    c.append(salu("s_cmpk_ge_u32 s2, 0x100"))
    c.append(I("s_cbranch_scc1 L_end", "branch"))
    c.append(I("s_load_dwordx4 s[56:59], s[0:1], 0", "smem", [], R("s", 56, 4)))
    c.append(I("s_load_dwordx4 s[60:63], s[0:1], 16", "smem", [], R("s", 60, 4)))
    c += stamp()
    if opt.probe >= 0: c.append(I("s_memrealtime s[96:97]", "smem"))
    A(f"s_mov_b32 s{S_WARM}, 0")
    if opt.stubs:
        c.append(I(f"s_getpc_b64 s[{S_PC}:{S_PC+1}]", "salu", [], R("s", S_PC, 2)))
        c.append(I("L_pc:", "label"))
        if opt.head_prefetch:
            V(f"v_and_b32 v{V_LT}, 15, v0", R("v", 0), R("v", V_LT))
            V(f"v_lshrrev_b32 v{V_LT+1}, 6, v0", R("v", 0), R("v", V_LT+1))
            V(f"v_lshl_add_u32 v{V_LT}, v{V_LT+1}, 4, v{V_LT}", R("v", V_LT, 2), R("v", V_LT))
            V(f"v_lshlrev_b32 v{V_LT}, 7, v{V_LT}", R("v", V_LT), R("v", V_LT))
            c.append(I(f"global_load_dword a{A_DUMMY}, v{V_LT}, s[{S_PC}:{S_PC+1}] offset:256", "vload", R("v", V_LT), []))
        A(f"s_add_u32 s{S_PC}, s{S_PC}, L_main - L_pc")
        A(f"s_addc_u32 s{S_PC+1}, s{S_PC+1}, 0")
        if opt.line_prefetch:
            V(f"v_bfe_u32 v{V_LT}, v0, 2, 2", R("v", 0), R("v", V_LT))
            V(f"v_lshrrev_b32 v{V_LT+1}, 6, v0", R("v", 0), R("v", V_LT+1))
            V(f"v_lshl_add_u32 v{V_LT}, v{V_LT}, 2, v{V_LT+1}", R("v", V_LT, 2), R("v", V_LT))
            V(f"v_lshlrev_b32 v{V_LT}, 5, v{V_LT}", R("v", V_LT), R("v", V_LT))
            V(f"v_and_b32 v{V_LT+1}, 3, v0", R("v", 0), R("v", V_LT+1))
            V(f"v_add_u32 v{V_LT}, v{V_LT}, v{V_LT+1}", R("v", V_LT, 2), R("v", V_LT))
            V(f"v_lshlrev_b32 v{V_LT}, 7, v{V_LT}", R("v", V_LT), R("v", V_LT))
            for k in range(opt.line_prefetch):
                c.append(I(f"global_load_dword a{A_DUMMY}, v{V_LT}, s[{S_PC}:{S_PC+1}]" + (f" offset:{512*k}" if k else ""), "vload", R("v", V_LT), []))
    V(f"v_lshrrev_b32 v{T}, 6, v0", R("v", 0), R("v", T))
    V(f"v_and_b32 v{T+1}, 63, v0", R("v", 0), R("v", T+1))
    V(f"v_readfirstlane_b32 s{S_W}, v{T}", R("v", T), R("s", S_W))
    if opt.stubs and opt.stub_early: c.append(nop(4)); c.append(I("STUB_CALLS0", "label"))
    A(f"s_and_b32 s54, s2, 7")
    A(f"s_lshl_b32 s54, s54, 5")
    A(f"s_lshr_b32 s55, s2, 3")
    def bias(r, src="s3"):
        A(f"s_mul_i32 s{BIAS_REG[r]}, {src}, {(f2u(-1e30) - 0x7f800000) & 0xffffffff:#x}")
        A(f"s_add_u32 s{BIAS_REG[r]}, s{BIAS_REG[r]}, 0x7f800000")
    def blk(r):
        A(f"s_add_u32 s3, s55, {32*r}")
        A(f"s_mul_i32 s45, s3, 43691")
        A(f"s_lshr_b32 s45, s45, 17")
        A(f"s_mul_i32 s41, s45, 3")
        A(f"s_sub_u32 s3, s3, s41")
        A(f"s_add_u32 s45, s45, s54")
        A(f"s_lshl_b32 s{S_KV+r}, s45, 17")
        A(f"s_mul_i32 s45, s45, 188416")
        A(f"s_lshl_b32 s41, s3, 16")
        A(f"s_add_u32 s45, s45, s41")
        A(f"s_mul_i32 s41, s{S_W}, 12288")
        A(f"s_add_u32 s{S_QO+4*r}, s45, s41")
        A(f"s_add_u32 s{S_QO+4*r+1}, s{S_QO+4*r}, 4096")
        A(f"s_lshl_b32 s3, s3, 2")
        A(f"s_add_u32 s3, s3, s{S_W}")
        A(f"s_add_u32 s3, s3, 5")
        A(f"s_lshr_b32 s3, s3, 4")
        if r: bias(r)
        else: A(f"s_mov_b32 s53, s3")
        A(f"s_mul_i32 s41, s3, 0x70000000")
        A(f"s_add_u32 s41, s41, s{S_QO+4*r}")
        A(f"s_add_u32 s{S_QO+4*r+2}, s41, 8192")
        A(f"s_add_u32 s{S_QO+4*r+3}, s41, 12288")
    L = T + 1
    V(f"v_lshrrev_b32 v{T+6}, 3, v{L}", R("v", L), R("v", T+6))
    V(f"v_and_b32 v{T+4}, 6, v{T+6}", R("v", T+6), R("v", T+4))
    V(f"v_and_b32 v{T+5}, 7, v{L}", R("v", L), R("v", T+5))
    V(f"v_xor_b32 v{T+4}, v{T+4}, v{T+5}", R("v", T+4, 2), R("v", T+4))
    V(f"v_lshlrev_b32 v{T+2}, 8, v{T+6}", R("v", T+6), R("v", T+2))
    V(f"v_lshl_add_u32 v{T+2}, v{T+4}, 4, v{T+2}", R("v", T+4) + R("v", T+2), R("v", T+2))
    V(f"v_lshl_add_u32 v{V_KOFF}, v{T}, 12, v{T+2}", R("v", T) + R("v", T+2), R("v", V_KOFF))
    V(f"v_lshrrev_b32 v{T+3}, 4, v{L}", R("v", L), R("v", T+3))
    V(f"v_and_b32 v{T+4}, 15, v{L}", R("v", L), R("v", T+4))
    V(f"v_lshlrev_b32 v{T+2}, 8, v{T+4}", R("v", T+4), R("v", T+2))
    V(f"v_lshl_add_u32 v{T+2}, v{T+3}, 4, v{T+2}", R("v", T+3) + R("v", T+2), R("v", T+2))
    V(f"v_lshl_add_u32 v{V_OOFF}, v{T}, 12, v{T+2}", R("v", T) + R("v", T+2), R("v", V_OOFF))
    blk(0)
    A(f"s_lshl_b32 s{S_MK}, s{S_W}, 12")
    A(f"s_add_u32 s{S_MK}, s{S_MK}, {KB}")
    c.append(wait(lg=0))
    for srd, p, n in ((S_K, 58, 33554432), (S_Q, 56, 48234496), (S_V, 60, 33554432), (S_O, 62, 48234496)):
        A(f"s_mov_b32 s{srd}, s{p}")
        A(f"s_mov_b32 s{srd+1}, s{p+1}")
        A(f"s_mov_b32 s{srd+2}, {n}")
        A(f"s_mov_b32 s{srd+3}, 0x20000")
    c += stamp(True)
    A(f"s_mul_i32 s3, s{S_W}, {QW}")
    A(f"s_add_u32 s{S_MQ}, s3, {QB}")
    for what in ("KQ" if opt.k_first else "QK"):
        if what == "K": c.append(k_soff(0))
        for t in range(4):
            m, d = qp_dma(0, t) if what == "Q" else k_dma(0, t); c += [m, nop(1), d]
    if opt.jit_all:
        A(f"s_lshl_b32 s3, s55, 2")
        A(f"s_add_u32 s3, s3, s{S_W}")
        A(f"s_and_b32 s3, s3, 63")
        A(f"s_lshl_b32 s3, s3, 7")
        V(f"v_lshlrev_b32 v{T+2}, 13, v{T+5}", R("v", T+5), R("v", T+2))
        V(f"v_add_u32 v{T+2}, s3, v{T+2}", R("v", T+2), R("v", T+2))
        c.append(I(f"global_load_dword a{A_DUMMY}, v{T+2}, s[{S_PC}:{S_PC+1}]", "vload", R("v", T+2), []))
    c += stamp(True)
    if opt.stubs and not opt.stub_late:
        for rd in range(1 if opt.stub_early else 0, 5): c.append(I(f"STUB_CALLS{rd}", "label"))
    c += stamp(True)
    A(f"s_lshr_b32 s3, s{S_W}, 1")
    A(f"s_mul_i32 s3, s3, {VPAR + 8 - 8192}")
    A(f"s_add_u32 s3, s3, s{S_MK}")
    A(f"s_add_u32 s{S_MQ1}, s3, {VE + 24576 - KB}")
    for t in range(4):
        m, d = qp_dma(1, t); c += [m, nop(1), d]
    c += stamp(True)
    if opt.jit_every:
        A(f"s_lshl_b32 s3, s55, 2")
        A(f"s_add_u32 s3, s3, s{S_W}")
        A(f"s_and_b32 s3, s3, 63")
        A(f"s_lshl_b32 s3, s3, 7")
        V(f"v_mov_b32 v{V_JIT}, s3", [], R("v", V_JIT))
        for k in range(opt.jit_first): c += jit_ops()
    V(f"v_and_b32 v{T+2}, 2, v{T+6}", R("v", T+6), R("v", T+2))
    V(f"v_lshlrev_b32 v{T+2}, 1, v{T+2}", R("v", T+2), R("v", T+2))
    V(f"v_xor_b32 v{T+2}, v{T+2}, v{T+5}", R("v", T+2) + R("v", T+5), R("v", T+2))
    V(f"v_and_b32 v{T+5}, 4, v{T+6}", R("v", T+6), R("v", T+5))
    V(f"v_add_u32 v{T+5}, v{T+5}, v{T+6}", R("v", T+5, 2), R("v", T+5))
    V(f"v_lshlrev_b32 v{T+5}, 8, v{T+5}", R("v", T+5), R("v", T+5))
    V(f"v_lshl_add_u32 v{T+2}, v{T+2}, 4, v{T+5}", R("v", T+2) + R("v", T+5), R("v", T+2))
    V(f"v_lshl_add_u32 v{V_VOFF}, v{T}, 12, v{T+2}", R("v", T) + R("v", T+2), R("v", V_VOFF))
    assert VE == 0
    A(f"s_lshl_b32 s{S_MV}, s{S_W}, 11")
    V(f"v_and_b32 v{T+2}, 6, v{T+4}", R("v", T+4), R("v", T+2))
    V(f"v_xor_b32 v{T+2}, v{T+2}, v{T+3}", R("v", T+2) + R("v", T+3), R("v", T+2))
    V(f"v_lshlrev_b32 v{T+2}, 4, v{T+2}", R("v", T+2), R("v", T+2))
    V(f"v_lshl_add_u32 v{V_KADDR}, v{T+4}, 7, v{T+2}", R("v", T+4) + R("v", T+2), R("v", V_KADDR))
    V(f"v_xor_b32 v{V_KADDR+1}, 64, v{V_KADDR}", R("v", V_KADDR), R("v", V_KADDR+1))
    for b in range(2):
        V(f"v_add_u32 v{V_QADDR+b}, s{S_MQ}, v{V_KADDR+b}", R("v", V_KADDR+b) + R("s", S_MQ), R("v", V_QADDR+b))
        V(f"v_add_u32 v{V_RCP+b}, s{S_MQ1}, v{V_KADDR+b}", R("v", V_KADDR+b) + R("s", S_MQ1), R("v", V_RCP+b))
        V(f"v_add_u32 v{V_RCP+2+b}, s{S_MK}, v{V_KADDR+b}", R("v", V_KADDR+b) + R("s", S_MK), R("v", V_RCP+2+b))
        V(f"v_add_u32 v{V_KADDR+b}, {KB}, v{V_KADDR+b}", R("v", V_KADDR+b), R("v", V_KADDR+b))
    V(f"v_and_b32 v{T+2}, 1, v{T+3}", R("v", T+3), R("v", T+2))
    V(f"v_mul_u32_u24 v{T+2}, {VPAR}, v{T+2}", R("v", T+2), R("v", T+2))
    V(f"v_lshrrev_b32 v{T+6}, 1, v{T+3}", R("v", T+3), R("v", T+6))
    V(f"v_lshl_add_u32 v{T+2}, v{T+6}, 9, v{T+2}", R("v", T+6) + R("v", T+2), R("v", T+2))
    V(f"v_bfe_u32 v{T+6}, v{L}, 2, 2", R("v", L), R("v", T+6))
    V(f"v_lshl_add_u32 v{T+2}, v{T+6}, 7, v{T+2}", R("v", T+6) + R("v", T+2), R("v", T+2))
    V(f"v_and_b32 v{T+5}, 3, v{L}", R("v", L), R("v", T+5))
    V(f"v_lshl_add_u32 v{T+2}, v{T+5}, 4, v{T+2}", R("v", T+5) + R("v", T+2), R("v", T+2))
    V(f"v_and_b32 v{T+6}, 2, v{T+6}", R("v", T+6), R("v", T+6))
    V(f"v_lshlrev_b32 v{T+6}, 5, v{T+6}", R("v", T+6), R("v", T+6))
    V(f"v_add_u32 v{V_VADDR}, v{T+2}, v{T+6}", R("v", T+2) + R("v", T+6), R("v", V_VADDR))
    V(f"v_xor_b32 v{T+6}, 64, v{T+6}", R("v", T+6), R("v", T+6))
    V(f"v_add_u32 v{V_VADDR+1}, v{T+2}, v{T+6}", R("v", T+2) + R("v", T+6), R("v", V_VADDR+1))
    V(f"v_and_b32 v{T+2}, 1, v{L}", R("v", L), R("v", T+2))
    V(f"v_mul_u32_u24 v{T+2}, 0xaaaa, v{T+2}", R("v", T+2), R("v", T+2))
    V(f"v_add_u32 v{T+2}, 0x4444, v{T+2}", R("v", T+2), R("v", T+2))
    V(f"v_lshl_add_u32 v{V_IDX}, v{T+2}, 16, v{T+2}", R("v", T+2), R("v", V_IDX))
    V(f"v_mov_b32 v{T+2}, 0x3f803f80", [], R("v", T+2))
    for j in range(4): V(f"v_accvgpr_write_b32 a{A_ONE+j}, v{T+2}", R("v", T+2), R("a", A_ONE+j))
    for j in range(16): V(f"v_accvgpr_write_b32 a{A_L+j}, 0", [], R("a", A_L+j))
    if opt.full_line:
        V(f"v_and_b32 v{T+2}, 8, v{L}", R("v", L), R("v", T+2))
        V(f"v_mul_u32_u24 v{T+2}, 248, v{T+2}", R("v", T+2), R("v", T+2))
        V(f"v_sub_u32 v{V_OOFF2}, v{V_OOFF}, v{T+2}", R("v", V_OOFF) + R("v", T+2), R("v", V_OOFF2))
        A(f"s_mov_b32 s{S_LMASK}, 0x00ff00ff")
        A(f"s_mov_b32 s{S_LMASK+1}, 0x00ff00ff")
    bias(0, "s53")
    A(f"s_add_u32 s{S_WB}, s55, s{S_W}")
    A(f"s_mov_b32 s{S_C}, {CSCALE:#x}")
    A(f"s_mov_b32 s{S_C+1}, {CSCALE:#x}")
    A(f"s_mov_b32 s{S_THR}, {0 if opt.force_slow else THR:#x}")
    for j in range(6): A(f"s_mov_b32 s{S_FLAG+j}, 0")
    c += stamp(True)
    if opt.stubs:
        for rd in range(opt.stub_n0): c.append(I(f"STUB_CALLS{rd}", "label"))
    if not opt.q2_late:
        for t in range(4):
            m, d = qp_dma(2, t); c += [m, nop(1), d]
    c += stamp(True)
    late_setup.clear()
    n0 = len(c); blk(1); blk(2); late_setup.extend(c[n0:]); del c[n0:]
    if opt.stubs:
        c.append(I("s_branch L_main", "branch"))
        c.append(I(".p2align 12", "label"))
        c.append(I("L_main:", "label"))
    return c

def flat(ops):
    out = []
    for o in ops:
        out.append(nop(2) if o == "gap2" else o)
    return out

def issue_tile(kind, Tt):
    c = [v_soff(Tt) if kind == "V" else k_soff(Tt)]
    for t in range(4): c += list((v_dma if kind == "V" else k_dma)(Tt, t))
    return c

def weave(ops, pairs, every, start=0):
    out = []; pairs = list(pairs)
    for k, o in enumerate(ops):
        if pairs and k >= start and (k - start) % every == 0:
            p = pairs.pop(0); out += p[:-1] + [o, p[-1]]
        else: out.append(o)
    assert not pairs
    return out

def prologue():
    c = []
    KT = A_Q[1]
    X = lambda qb, kb: V_O + 64 + 16*qb + 4*kb
    def chain(qb, kb):
        return [mfma("v", X(qb, kb), "a", KT + 16*kb + 4*t, "a", q_reg(0, qb, t), (("0" if kb == 0 else V_NEGM + 4*qb) if t == 0 else None)) for t in range(4)]
    def soft(qb, kb):
        e, cv = soft_ops(X(qb, kb), p_reg(0, qb, kb >> 1) + 2*(kb & 1)); return e + cv
    def B(qb): return [o for t in range(4) for o in prescale_ops(V_O + 16*qb + 4*t, q_reg(0, qb, t), True)]
    def D(qb): return [o for o in max_ops(X(qb, 0), qb, V_S) if not isinstance(o, str)]
    def dep(lst, op):
        for x in lst: x.after.append(op)
        return lst
    def paced(tile, anchors):
        so, rest = tile[0], tile[1:]
        for k in range(4): dep(rest[2*k:2*k+2], anchors[k])
        return tile
    ch = lambda qb: [x for kb in (1, 2, 3) for x in chain(qb, kb)]
    b0, b1, b2, b3 = B(0), B(1), B(2), B(3)
    c += stamp(True) + [wait(vm="auto", need=[("P", 0)])] + stamp(True) + [qp_read(0, t) for t in (0, 1)]
    c += [wait(vm="auto", need=[("P", 1)])] + [qp_read(0, t) for t in (2, 3)] + [wait(lg="auto")]
    if opt.q2_late:
        b0w = weave(b0[:40], [list(qp_dma(2, t)) for t in range(4)], 9, 4) + [wait(lg="auto")] + weave(b0[40:], [list(qp_dma(3, t)) for t in range(4)], 9, 4)
        c += b0w
    else:
        b0w = weave(b0, [list(qp_dma(3, t)) for t in range(4)], 16, 10)
        c += b0w[:44] + [wait(lg="auto")] + b0w[44:]
    c += stamp(True)
    if opt.stubs:
        for rd in range(opt.stub_n1): c.append(I(f"STUB_CALLS{opt.stub_n0 + rd}", "label"))
    c += stamp(True)
    c += [wait(vm="auto", need=[("K", 0)]), barrier()]
    c += stamp(True)
    c += [k_read(0, kb, t, dest=KT + 16*kb + 4*t) for kb in range(4) for t in range(4)]
    if not opt.k1_late: c += listsched(issue_tile("K", 1)[:5])[0]
    c.append(wait(lg="auto"))
    s0 = soft(0, 0) + soft(0, 1) + soft(0, 2) + soft(0, 3)
    s1 = soft(1, 0) + soft(1, 1) + soft(1, 2) + soft(1, 3)
    s2 = soft(2, 0) + soft(2, 1) + soft(2, 2) + soft(2, 3)
    def fetch(qb, anchor, anchor2, first):
        w = wait(lg="auto"); dep(first, w)
        return dep([wait(vm="auto", need=[("P", 2*qb), ("P", 2*qb + 1)])], anchor) + [qp_read(qb, t) for t in range(4)] + dep([w], anchor2)
    c3 = ch(3); c0 = ch(0)
    k1 = issue_tile("K", 1)[5:]
    wk = wait(lg=0); d0 = D(0); c00 = chain(0, 0)
    seq = c00 + dep([wk], c00[3]) + d0 + dep(c0[:1], wk) + c0[1:]
    if not opt.k1_late: seq += dep(k1[:2], c0[0]) + dep(k1[2:], c0[4])
    seq += s0[:12] + fetch(1, c0[8], s0[11], b1[:8]) + b1
    if opt.k1_late: seq += paced(issue_tile("K", 1), [b1[20], b1[40], b1[60], b1[79]])
    if opt.pro_order == 0:
        seq += chain(1, 0) + s0[12:] + fetch(2, b1[70], s0[16], b2[:8]) + D(1) + ch(1)
        seq += b2 + paced(issue_tile("V", 0), [b2[0], b2[20], b2[40], b2[60]])
        seq += chain(2, 0) + s1 + fetch(3, b2[70], s1[8], b3[:8]) + D(2) + ch(2)
        seq += b3
    else:
        h = opt.pro_order
        seq += chain(1, 0) + s0[12:] + D(1) + ch(1) + s1[:h] + fetch(2, s1[h-7], s1[h-1], b2[:8])
        seq += b2 + paced(issue_tile("V", 0), [b2[0], b2[20], b2[40], b2[60]])
        seq += chain(2, 0) + s1[h:] + D(2) + ch(2) + s2[:h] + fetch(3, s2[h-7], s2[h-1], b3[:8])
        seq += b3
        s2 = s2[h:]
    if getattr(opt, "first_k", 2) == 3: seq += paced(issue_tile("K", 2), [b3[0], b3[12], b3[24], b3[36]])
    if getattr(opt, "first_v", 1) == 2: seq += paced(issue_tile("V", 1), [b3[48], b3[60], b3[70], b3[79]])
    seq += chain(3, 0) + s2 + D(3) + c3
    seq += dep([wait(vm="auto", lg=0, need=[("K", 1), ("V", 0)]), barrier()], c3[0])
    seq += [v_read(0, n >> 2, (n >> 1) & 1, n & 1) for n in range(4)] + [k_read(1, 0, t) for t in range(4)]
    seq += [v_read(0, n >> 2, (n >> 1) & 1, n & 1) for n in range(4, 10)] + [k_read(1, 1, 0)]
    seq += soft(3, 0) + soft(3, 1) + soft(3, 2) + soft(3, 3)
    p2, t2 = listsched(order_fix(seq), [x for x in c[-30:] if x.kind != "label"])
    if opt.stamps:
        out = []
        for x in p2:
            if x.kind == "wait" and x.vm is not None: out += stamp(True) + [x] + stamp(True)
            else: out.append(x)
        p2 = out
    c += p2
    c.append(wait(lg="auto"))
    return c

def order_fix(seq):
    seen = set()
    for x in seq:
        assert all(id(a) in seen for a in x.after), x
        seen.add(id(x))
    return seq

VALK = ("valu", "trans", "pk", "perm")
def edge_dist(w, x, rg, kind):
    if kind == "raw":
        if w.kind in ("mfma", "smfmac"):
            need = 8 if w.kind == "mfma" else 12
            if x.kind in ("mfma", "smfmac") and rg in x.cread and rg not in x.rd:
                return 0 if (x.cread == w.wr and x.kind == w.kind) else need - 2
            return need
        if w.kind in VALK:
            if rg[0] == "s": return 5 if x.kind in ("dma", "vload", "vstore") else (2 if x.kind in VALK else 0)
            if x.kind in ("mfma", "smfmac", "perm"): return 2
            if w.kind == "trans" and x.kind in VALK and x.kind != "trans": return 1
        if w.kind == "salu" and rg[0] == "m" and x.kind == "dma": return 1
        return 0
    if kind == "waw":
        if w.kind in ("mfma", "smfmac"):
            need = 8 if w.kind == "mfma" else 12
            if x.kind in ("mfma", "smfmac"): return 0 if x.wr == w.wr else need - 2
            return need
        return 0
    if rg in w.cread and x.kind in VALK: return 3 if w.kind == "mfma" else 7
    if w.kind == "vstore" and rg in w.rd[:4]: return 2
    return 0

def listsched(ops, pre=()):
    allops = list(pre) + list(ops); n0 = len(pre); n = len(allops)
    deps = [dict() for _ in range(n)]
    lw = {}; lr = defaultdict(list); lastmem = None
    for k, x in enumerate(allops):
        def add(p, d): deps[k][p] = max(deps[k].get(p, 0), d)
        for rg in x.rd + x.cread:
            if rg in lw: add(lw[rg], edge_dist(allops[lw[rg]], x, rg, "raw"))
        for rg in x.wr:
            if rg in lw: add(lw[rg], edge_dist(allops[lw[rg]], x, rg, "waw"))
            for p in lr[rg]:
                if p != k: add(p, edge_dist(allops[p], x, rg, "war"))
        if x.kind in ("dma", "vload", "vstore", "ds", "wait", "barrier", "smem"):
            if lastmem is not None: add(lastmem, 0)
            lastmem = k
        for a in x.after: add(next(i for i, y in enumerate(allops) if y is a), 0)
        for rg in x.wr: lw[rg] = k; lr[rg] = []
        for rg in x.rd + x.cread: lr[rg].append(k)
    pos = {}; cur = 0
    for k in range(n0): pos[k] = cur; cur += allops[k].nops
    out = []; left = list(range(n0, n)); t = 0; tm = -100; prev = None
    cost = {"mfma": 8, "smfmac": 8, "trans": 8, "vstore": 12}
    while left:
        ready = [k for k in left if all(p in pos and cur - pos[p] - allops[p].nops >= d for p, d in deps[k].items())]
        pick = None
        if ready:
            mf = [k for k in ready if allops[k].kind in ("mfma", "smfmac")]
            ot = [k for k in ready if k not in mf]
            aftermf = prev is not None and prev.kind in ("mfma", "smfmac", "salu", "wait", "ds", "dma", "vstore", "barrier")
            mem = [k for k in ot if allops[k].kind in ("ds", "dma", "vstore", "vload")]
            sc = [k for k in ot if allops[k].kind in ("salu", "wait", "barrier", "smem")]
            va = [k for k in ot if k not in mem and k not in sc]
            vnp = [k for k in va if allops[k].kind != "pk" or t - tm >= 24]
            if mf and (t - tm >= 16 or not (vnp or mem or sc)): pick = mf[0]
            elif sc: pick = sc[0]
            elif mem and (aftermf or allops[mem[0]].after or not mf and not any(allops[k].kind in ("mfma", "smfmac") for k in left) or not vnp): pick = mem[0]
            elif vnp: pick = vnp[0]
            elif va: pick = va[0]
            else: pick = ready[0]
        if pick is None:
            x = nop(1); out.append(x); cur += 1; t += 4; prev = x; continue
        x = allops[pick]
        if x.kind in ("mfma", "smfmac"): t = max(t, tm + 16); tm = t
        if x.kind == "pk": t = max(t, tm + 24)
        pos[pick] = cur; cur += x.nops; t += cost.get(x.kind, 4)
        out.append(x); left.remove(pick); prev = x
    return out, t

COST = {"valu": 1, "trans": 2, "pk": 1, "perm": 1, "ds": 1, "dma": 1, "vstore": 3, "vload": 1}
class Gap:
    def __init__(s, m): s.m, s.shadow, s.mem, s.valu = m, None, [], []
    def load(s): return sum(COST[o.kind] for o in s.mem + s.valu)
    def emit(s):
        return [s.m] + ([s.shadow] if s.shadow else []) + s.mem + s.valu

NT = lambda: 8 * opt.nblocks

class Sched:
    def __init__(s):
        s.groups = []
        s.cur = defaultdict(int)
        s.gaps = []
        s.gstart = []
    def add_group(s, gaps):
        s.gstart.append(len(s.gaps)); s.groups.append(gaps); s.gaps += gaps
    def rng(s, G): return s.gstart[G], s.gstart[G] + len(s.groups[G])
    def put_valu(s, stream, G, op, mingap=0, fat=False):
        a, b = s.rng(G); lo = max(a + mingap, s.cur[stream])
        while lo >= b:
            G += 1; a, b = s.rng(G)
        pick = None
        if not fat:
            for g in range(lo, b):
                if s.gaps[g].load() + COST[op.kind] <= 2: pick = g; break
            if pick is None:
                pick = min(range(lo, b), key=lambda g: (s.gaps[g].load(), g))
        else: pick = lo
        s.gaps[pick].valu.append(op); s.cur[stream] = pick
        return pick
    def put_mem(s, stream, G, op, allowed, pre=None):
        a, b = s.rng(G)
        for gi, si in allowed:
            g = a + gi
            if g >= b or g <= s.cur[stream]: continue
            if any(o.kind in ("dma", "vstore") for o in s.gaps[g].mem): continue
            if pre is not None:
                sg = a + si
                if s.gaps[sg].shadow is not None: continue
                s.gaps[sg].shadow = pre
            s.gaps[g].mem.append(op); s.cur[stream] = g
            return g
        raise AssertionError(("no mem slot", stream, G, op))
    def put_shadow(s, G, op, lo=0, hi=None, stream=None):
        a, b = s.rng(G)
        start = a + lo
        if stream is not None: start = max(start, s.cur[stream] + 1)
        end = b if hi is None else a + hi
        g = start
        while True:
            if g >= end and hi is not None: raise AssertionError(("no shadow", G, op))
            if s.gaps[g].shadow is None and not (g + 1 in s.gstart_set or g + 1 == len(s.gaps)):
                s.gaps[g].shadow = op
                if stream is not None: s.cur[stream] = g
                return g
            g += 1

def fatten(S, G):
    g4, g5 = S.groups[G][4], S.groups[G][5]
    if [o.kind for o in g4.valu] == ["trans"] and [o.kind for o in g5.valu] == ["trans"] and not g4.mem and not g5.mem:
        g4.valu.append(g5.valu.pop()); return True
    return False

def spread(n, lo, hi):
    return [lo + (k * (hi - lo + 1)) // n for k in range(n)]

def body():
    nt = NT(); nb = opt.nblocks
    S = Sched()
    for T in range(nt):
        r, j = T // 8, T % 8
        hasqk = T + 1 < nt
        smf = {1: [0, 1], 2: [2, 3]} if j == 7 else {2: [0], 4: [1], 6: [2], 8: [3]}
        for i in range(16):
            gaps = []
            if hasqk:
                T1 = T + 1; r1 = T1 // 8; kb, qb = i >> 2, i & 3
                special = (T1 % 8 == 0 and kb == 0)
                d = p_reg(T1, qb, 1) if special else V_S + 4*(i & 1)
                for t in range(4):
                    cc = None if t else ("0" if special else V_NEGM + 4*qb)
                    gaps.append(Gap(mfma("v", d, "a", k_reg(kb, t), "a", q_reg(r1, qb, t), cc)))
            db = i >> 1
            for qb in (2*(i & 1), 2*(i & 1) + 1):
                for ks in range(2):
                    gaps.append(Gap(mfma("v", o_reg(db, qb), "a", v_reg(db, ks), "v", p_reg(T, qb, ks), "0" if (j == 0 and ks == 0) else None)))
            for qb in smf.get(i, []):
                gaps.append(Gap(smfmac(qb, p_reg(T, qb, 0))))
            S.add_group(gaps)
    S.gstart_set = set(S.gstart)
    for T in range(nt):
        hasqk = T + 1 < nt
        for i in range(16):
            G = 16*T + i; gp = S.groups[G]
            for n in (2*G + 10, 2*G + 11):
                Tv = n // 32
                if Tv < nt:
                    rem = n % 32
                    gp[0].mem.append(v_read(Tv, rem >> 2, (rem >> 1) & 1, rem & 1))
            kk = ((i + 1) >> 2) + 1; tt = (i + 1) & 3
            Tk = T + 1 if kk < 4 else T + 2
            if Tk < nt: gp[1].mem.append(k_read(Tk, kk & 3, tt))
            if i == 0: Tu, iu = T, 15
            else: Tu, iu = T + 1, i - 1
            if Tu < nt and not (T == 0 and i == 0) and not (Tu % 8 == 0 and iu < 4):
                kb, qb = iu >> 2, iu & 3
                e, cv = soft_ops(V_S + 4*(iu & 1), p_reg(Tu, qb, kb >> 1) + 2*(kb & 1))
                if hasqk:
                    for k in range(4): gp[2 + k].valu.append(e[k])
                    gp[6].valu.append(cv[0]); gp[7].valu.append(cv[1])
                else:
                    gp[0].valu += e[:1]; gp[1].valu += e[1:3]; gp[2].valu += e[3:] + cv[:1]; gp[3].valu += cv[1:]
            need = None; lg = "auto"; vm = None
            if i == 10:
                need = [x for x in (("K", T + 2), ("V", T + 1)) if x[1] < nt]
                vm = "auto" if need else None; lg = 0
            gp[-1].shadow = wait(vm=vm, lg=lg, need=need)
            if i == 11: gp[0].shadow = barrier()
    DM = [(1, 1), (6, 5)]
    for T in range(1, nt):
        lst = []
        if T + 5 < nt: lst += [k_dma(T + 5, t) for t in range(4)]; S.put_shadow(16*T + 10, k_soff(T + 5), 2, 6)
        if T + 4 < nt: lst += [v_dma(T + 4, u) for u in range(4)]; S.put_shadow(16*T + 10, v_soff(T + 4), 2, 6)
        for k, (m, d) in enumerate(lst):
            S.put_mem("kv", 16*T + 11 + k // 2, d, [DM[k & 1]], pre=m)
    extra = [("V", 1, 0), ("K", 2, 2), ("V", 2, 5), ("K", 3, 7), ("K", 4, 11), ("V", 3, 13), ("K", 5, 18), ("V", 4, 20)]
    for kind, Tt, G in extra:
        so = k_soff(Tt) if kind == "K" else v_soff(Tt)
        if G == 0: S.groups[0][0].shadow = so
        else: S.put_shadow(G - 1, so, 2, 5)
        for t in range(4):
            m, d = (k_dma if kind == "K" else v_dma)(Tt, t)
            S.put_mem("kv0", G + t // 2, d, [DM[t & 1]], pre=m)
    for o in late_setup: S.put_shadow(0, o, 0, stream="late")
    assert S.cur["late"] < S.gstart[15]
    if nb > 1:
        for k, G in enumerate((15, 15, 16, 16, 17, 17, 22)):
            m, d = q_dma(16 + k); S.put_mem("qd", G, d, DM, pre=m)
    if opt.jit_every:
        for k in range(opt.jit_first, 8):
            G = int((k - opt.jit_first) * opt.jit_every * 1.6) + opt.jit_g0
            while G % 16 in (10, 11, 12, 13, 14, 15, 0, 1): G += 1
            ld, ad = jit_ops()
            g = S.put_mem("jit", G, ld, [(6, None), (1, None), (7, None)])
            S.cur["jit"] = g; S.put_valu("jit", G, ad)
    for r in range(nb - 1):
        T = 8*r + 7
        for qb in range(4):
            G = 16*T + 1 + qb
            x = p_reg(T + 1, qb, 1)
            e, cv = soft_ops(x, p_reg(T + 1, qb, 0))
            ops = max_ops(x, qb) + e + ["gap1"] + cv
            a, b = S.rng(G)
            pos = [1, 1, 2, 2, None, 3, 3, 3, None, 4, 4, 4, 5, 5, 5, 5, 5, 6, 6, 6, 6, 7, None, 7, 7]
            pos = [1, 1, 2, None, 3, 3, 3, None, 4, 4, 4, 4, 4, 5, 5, 5, 5, 5, 6, 6, 6, None, 7, 7]
            assert len(pos) == len(ops), (len(pos), len(ops))
            for p_, o in zip(pos, ops):
                if isinstance(o, str): continue
                gp = S.groups[G][p_]
                if o.kind == "perm" and gp.shadow is None: gp.shadow = nop(1)
                gp.valu.append(o)
    tail = []; stores = []
    for r in range(nb):
        T = 8*r + 7; last = (r == nb - 1)
        for qb in range(4):
            G = 16*T + 3 + qb//2
            for o in l_ops(r, qb, not last):
                if o.kind == "salu": S.put_shadow(G + 2, o, stream="lor")
                else: S.put_valu("l", G, o)
        items = [(u, qb) for u in range(4) for qb in range(4)]
        avail = {it: 16*T + max(4*it[0] + 3 + (it[1] >> 1), 5 + (it[1] >> 1)) for it in items}
        plan = []
        if last:
            for u, qb in items: plan.append(((u, qb), 16*T + 4*u + 5 + qb, 16*T + 4*u + 6 + qb, None))
        else:
            dead = {it: 16*T + 16 + 4*it[0] + (it[1] >> 1) for it in items}
            slots = [16*T + opt.st_g0 + (opt.st_sp * n) // 10 for n in range(16)]
            left = list(items); direct = []
            for sl in slots:
                cand = [it for it in left if avail[it] + 1 <= sl and sl < dead[it]]
                if not cand: continue
                it = min(cand, key=lambda x: dead[x]); left.remove(it); direct.append((it, sl))
            used = [sl for _, sl in direct]
            rest = [sl for sl in slots if sl not in used]
            assert all(sl > max(used) for sl in rest), (slots, used)
            for it, sl in direct: plan.append((it, sl - 1, sl, None))
            busy = defaultdict(int)
            for it, sl in direct: busy[sl - 1] += 1
            for n, (it, sl) in enumerate(zip(left, rest)):
                g = min(range(avail[it], dead[it]), key=lambda x: (busy[x], -x)); busy[g] += 1
                plan.append((it, g, sl, A_PARK + 4*n))
            assert len(left) <= 10
        for (u, qb), G, Gs, park in sorted(plan, key=lambda x: x[1]):
            mul, cv, st = epi_ops(r, u, qb, park)
            if G >= 16*nt:
                tail.append((mul, cv, st)); continue
            ng = len(S.groups[G])
            if opt.pk_epi and ng >= 8 and fatten(S, G):
                S.groups[G][4].valu += mul
                S.cur["epi"] = S.gstart[G] + 5
                for o in cv: S.put_valu("epi", G, o)
                assert park is not None or S.cur["epi"] < S.gstart[G + 1]
                assert last or S.cur["epi"] < S.gstart[dead[(u, qb)]] + 4
            elif opt.pk_epi:
                S.groups[G][ng - 2].valu += mul
                S.groups[G][ng - 1].valu += cv
            else:
                S.cur["epi"] = 0
                for o in mul + cv: S.put_valu("epi", G, o)
            if Gs >= 16*nt: tail.append(([], [], st)); continue
            stores.append((Gs, st))
    for Gs, st in sorted(stores, key=lambda x: x[0]):
        nn = len(S.groups[Gs])
        S.put_mem("epist", Gs, st, [(7, None), (6, None), (1, None), (2, None)] if nn >= 8 else [(1, None), (2, None), (3, None)])
    for r in range(nb - 1):
        rd = spread(16, 16*(8*r + 1) + (10 if r == 0 else 0), 16*(8*r + 6) + 8)
        for k in range(16):
            kap = 16*(r + 1) + k; G = rd[k]
            S.put_shadow(G - 1, wait(vm="auto", need=[("Q", kap)]), 2, 7)
            S.groups[G][1].mem.append(q_read(kap))
            nxt = rd[k + 1] if k < 15 else G + 6
            ops = prescale_ops(V_RAW + 4*(kap & 1), q_reg(r + 1, k >> 2, k & 3), opt.pk_pre)
            last_g = min(nxt, G + 6)
            if opt.pk_pre:
                gf = G + 1 + (last_g - G) * 8 // 16
                for o, g in zip(ops[:8], spread(8, G + 1, max(G + 1, gf - 1))): S.put_valu("pre", g, o)
                while S.cur["pre"] >= S.gstart[gf] + 4 or not fatten(S, gf): gf += 1
                S.groups[gf][4].valu += ops[8:12]; S.cur["pre"] = S.gstart[gf] + 5
                for o, g in zip(ops[12:], [gf, gf] + spread(6, gf, max(gf, last_g))): S.put_valu("pre", g, o)
            else:
                for o, g in zip(ops, spread(len(ops), G + 1, last_g)): S.put_valu("pre", g, o)
            k2 = kap + NQS
            if k2 < 16*nb:
                g = G + 2
                while True:
                    if g % 16 in (15, 0, 1):
                        try:
                            m, d = q_dma(k2)
                            S.put_mem("qd", g, d, DM, pre=m); break
                        except AssertionError: pass
                    g += 1
    c = []
    for G, gp in enumerate(S.groups):
        if opt.sgrp:
            gs = [int(x) for x in opt.sgrp.split('_')]
            if G in gs: c += stamp()
            for g in gp:
                e = g.emit()
                if G in gs and g.shadow is not None and g.shadow.kind == "wait" and g.shadow.vm is not None:
                    e = e[:1] + stamp() + e[1:2] + stamp() + e[2:]
                c += e
            continue
        if G % 16 == 0 and ((G // 16) in [int(x) for x in opt.sper.split('_')] if opt.sper else (G // 16) % 8 in (0, 1, 7)): c += stamp()
        for g in gp: c += g.emit()
    c += stamp()
    c.append(nop(8))
    for mul, cv, st in tail: c += mul + cv + [st]
    c += stamp()
    per = [sum(max(16, 8 + 4*g.load()) for gp in S.groups[16*T:16*T+16] for g in gp) for T in range(nt)]
    stats = dict(per=per, gaps=len(S.gaps), slots=sum(g.load() for g in S.gaps),
                 est_cycles=sum(max(16, 8 + 4*g.load()) for g in S.gaps),
                 under=sum(max(0, 2 - g.load()) for g in S.gaps), over=sum(max(0, g.load() - 2) for g in S.gaps))
    return c, stats

def resolve(code):
    n = len(code)
    isds = [x.kind == "ds" for x in code]
    isvm = [x.kind in ("dma", "vload", "vstore") for x in code]
    lgw = [k for k, x in enumerate(code) if x.kind == "wait" and x.lg is not None]
    vmw = [k for k, x in enumerate(code) if x.kind == "wait" and x.vm is not None]
    def touched(x): return x.rd + x.wr + x.cread
    lastload = {}
    writer_at = [None]*n
    for k, x in enumerate(code):
        dep = set()
        for rg in touched(x):
            if rg in lastload: dep.add(lastload[rg])
        writer_at[k] = dep
        for rg in x.wr: lastload.pop(rg, None)
        if x.kind in ("ds", "vload"):
            for rg in x.wr: lastload[rg] = k
    for lst, flag, attr, kind in ((lgw, isds, "lg", "ds"), (vmw, isvm, "vm", "vload")):
        for a, w in enumerate(lst):
            x = code[w]
            if getattr(x, attr) != "auto": continue
            end = lst[a + 1] if a + 1 < len(lst) else n
            young = -1
            for k in range(w + 1, end):
                for p in writer_at[k]:
                    if code[p].kind == kind and p < w: young = max(young, p)
            if attr == "vm" and x.need:
                for k in range(w):
                    if code[k].kind == "dma" and code[k].tag in x.need: young = max(young, k)
            if young < 0: setattr(x, attr, None)
            else:
                cnt = sum(flag[young + 1:w])
                setattr(x, attr, min(cnt, 15 if attr == "lg" else 63))
    for x in code:
        if x.kind == "wait":
            parts = []
            if x.vm is not None: parts.append(f"vmcnt({x.vm})")
            if x.lg is not None: parts.append(f"lgkmcnt({x.lg})")
            x.text = "s_waitcnt " + " ".join(parts) if parts else None
    return [x for x in code if x.text is not None]

def check(code):
    errs = []
    pos = 0
    P = []
    for x in code:
        P.append(pos); pos += 0 if x.kind == "label" else x.nops
    def dist(a, b): return P[b] - P[a] - code[a].nops
    lastw = {}; lastc = {}; laststore = {}
    dsq = []; vmq = []; done = set()
    smem_pending = set()
    dma_by_tag = defaultdict(list); read_by_tag = defaultdict(list)
    done_at = {}; barriers = []
    def slot_of(tag):
        if tag[0] == "P": return [("Q", 0), ("Q", 1), tag, ("V", 3), tag, ("K", 2), tag, ("K", 3)][tag[1]]
        return (tag[0], tag[1] & 3) if tag[0] in "KV" else ("Q", tag[1] % NQS)
    shared = lambda tag: tag[0] in "KV" or tag == ("P", 3)
    slot_last = {}
    VAL = ("valu", "trans", "pk", "perm")
    for k, x in enumerate(code):
        if x.kind == "wait":
            if x.lg is not None:
                while len(dsq) > x.lg: p = dsq.pop(0); done.add(p); done_at[p] = k
                if x.lg == 0: smem_pending.clear()
            if x.vm is not None:
                while len(vmq) > x.vm: p = vmq.pop(0); done.add(p); done_at[p] = k
            continue
        if x.kind == "barrier": barriers.append(k); continue
        def E(msg, p): errs.append(f"[{k}] {x.text}  <- [{p}] {code[p].text}: {msg}")
        for rg in x.rd + x.cread + x.wr:
            p = lastw.get(rg)
            if p is None: continue
            w = code[p]; d = dist(p, k)
            isread = rg in x.rd or rg in x.cread
            if w.kind in ("ds", "vload"):
                if p not in done: E("load not waited", p)
            elif w.kind in ("mfma", "smfmac"):
                need = 8 if w.kind == "mfma" else 12
                if x.kind in ("mfma", "smfmac"):
                    if rg in x.rd:
                        if d < need: E("mfma D->A/B", p)
                    elif rg in x.cread:
                        if not (x.cread == w.wr and x.kind == w.kind) and d < need - 2: E("mfma D->C overlap", p)
                    else:
                        if d < need - 2 and x.wr != w.wr: E("mfma D->D", p)
                elif d < need: E("mfma D->valu/mem", p)
            elif w.kind in VAL:
                if rg[0] in "va":
                    if x.kind in ("mfma", "smfmac") and isread and d < 2: E("valu->mfma", p)
                    if x.kind == "perm" and isread and d < 2: E("valu->permlane", p)
                    if w.kind == "trans" and x.kind in VAL and x.kind != "trans" and isread and d < 1: E("trans->valu", p)
                    if "readfirstlane" in x.text and d < 1: E("valu->readfirstlane", p)
                if rg[0] == "s":
                    if x.kind in ("dma", "vload", "vstore") and d < 5: E("valu sgpr->vmem", p)
                    if x.kind in VAL and isread and d < 2: E("valu sgpr->valu", p)
            elif w.kind == "salu":
                if rg[0] == "m" and x.kind == "dma" and d < 1: E("m0->dma", p)
        for rg in x.wr:
            p = lastc.get(rg)
            if p is not None and x.kind in VAL and dist(p, k) < (3 if code[p].kind == "mfma" else 7): E("mfma C read -> valu write", p)
            p = laststore.get(rg)
            if p is not None and dist(p, k) < 2: E("store data WAR", p)
        if x.kind == "ds" and x.tag:
            ds = dma_by_tag[x.tag]
            if len(ds) != (2 if x.tag[0] in "QP" else 4): errs.append(f"[{k}] {x.text}: tile {x.tag} has {len(ds)} dma")
            for p in ds:
                if p not in done: E("dma not waited", p)
                elif x.tag[0] in "KV" and not any(done_at[p] < b < k for b in barriers): E("no barrier after dma wait", p)
            if slot_last.get(slot_of(x.tag)) != x.tag: errs.append(f"[{k}] {x.text}: slot holds {slot_last.get(slot_of(x.tag))} not {x.tag}")
            read_by_tag[x.tag].append(k)
        if x.kind == "dma":
            old = slot_last.get(slot_of(x.tag))
            if old is not None and old != x.tag:
                rs = read_by_tag[old]
                exp = {"K": 16, "V": 32, "Q": 2, "P": 2}[old[0]]
                if len(rs) != exp: errs.append(f"[{k}] {x.text}: overwrites {old} after {len(rs)} reads")
                for p in rs:
                    if p not in done: E("slot WAR: read not waited", p)
                    elif shared(old) and not any(done_at[p] < b < k for b in barriers): E("slot WAR: no barrier", p)
            slot_last[slot_of(x.tag)] = x.tag
            dma_by_tag[x.tag].append(k)
        if x.kind == "ds": dsq.append(k)
        if x.kind in ("dma", "vload", "vstore"):
            vmq.append(k)
            if len(vmq) > 63: errs.append(f"[{k}] more than 63 vmem in flight")
        for rg in x.wr: lastw[rg] = k
        for rg in x.cread: lastc[rg] = k
        if x.kind == "vstore":
            for rg in x.rd[:4]: laststore[rg] = k
    return errs

def slow_path():
    L = []
    A = L.append
    Q, K, SS, P, M, T, LA, VF = 128, 144, 176, 184, 188, 189, 192, 64
    VK, VL, VS, MC = 200, 201, 202, 203
    A("s_or_b64 s[54:55], s[46:47], s[48:49]")
    A("s_or_b64 s[54:55], s[54:55], s[50:51]")
    A("s_cmp_eq_u64 s[54:55], 0")
    A("s_cbranch_scc1 L_end")
    A("s_waitcnt vmcnt(0) lgkmcnt(0)")
    A(f"s_lshl_b32 s3, s{S_W}, 12")
    A(f"v_subrev_u32 v{VK}, s3, v{V_OOFF}")
    A(f"v_mbcnt_lo_u32_b32 v{T}, -1, 0")
    A(f"v_mbcnt_hi_u32_b32 v{T}, -1, v{T}")
    A(f"v_lshlrev_b32 v{VL}, 4, v{T}")
    A(f"v_lshrrev_b32 v{M}, 2, v{T}")
    A(f"v_lshlrev_b32 v{M}, 8, v{M}")
    A(f"v_and_b32 v{T}, 3, v{T}")
    A(f"v_lshl_add_u32 v{M}, v{T}, 4, v{M}")
    A(f"v_add_u32 v{VS}, s{S_MQ}, v{M}")
    A("s_mov_b32 s56, 0")
    A("L_s_item:")
    A("s_lshr_b32 s57, s56, 2")
    A("s_lshl_b32 s58, s57, 1")
    A("s_mov_b32 m0, s58")
    A("s_nop 1")
    A(f"s_movrels_b64 s[54:55], s[{S_FLAG}:{S_FLAG+1}]")
    A("s_cmp_eq_u64 s[54:55], 0")
    A("s_cbranch_scc1 L_s_next")
    A("s_mov_b32 m0, s56")
    A("s_nop 1")
    A(f"s_movrels_b32 s59, s{S_QO}")
    A("s_mov_b32 m0, s57")
    A("s_nop 1")
    A(f"s_movrels_b32 s60, s{S_KV}")
    for t in range(4): A(f"buffer_load_dwordx4 v[{Q+4*t}:{Q+4*t+3}], v{V_OOFF}, s[{S_Q}:{S_Q+3}], s59 offen offset:{64*t}")
    A(f"v_mov_b32 v{M}, 0xff800000")
    A("s_mov_b32 s61, s60")
    A("s_mov_b32 s63, 32")
    A("L_s_max:")
    for t in range(4): A(f"buffer_load_dwordx4 v[{K+4*t}:{K+4*t+3}], v{VK}, s[{S_K}:{S_K+3}], s61 offen offset:{64*t}")
    A("s_waitcnt vmcnt(0)")
    for t in range(4): A(f"v_mfma_f32_16x16x32_bf16 v[{SS}:{SS+3}], v[{K+4*t}:{K+4*t+3}], v[{Q+4*t}:{Q+4*t+3}], " + ("0" if t == 0 else f"v[{SS}:{SS+3}]"))
    A("s_nop 9")
    A(f"v_max3_f32 v{M}, v{M}, v{SS}, v{SS+1}")
    A(f"v_max3_f32 v{M}, v{M}, v{SS+2}, v{SS+3}")
    A("s_add_u32 s61, s61, 4096")
    A("s_sub_u32 s63, s63, 1")
    A("s_cmp_lg_u32 s63, 0")
    A("s_cbranch_scc1 L_s_max")
    for sw in ("32", "16"):
        A(f"v_mov_b32 v{T}, v{M}")
        A("s_nop 2")
        A(f"v_permlane{sw}_swap_b32 v{M}, v{T}")
        A("s_nop 1")
        A(f"v_max_f32 v{M}, v{M}, v{T}")
    A(f"v_mul_f32 v{MC}, s{S_C}, v{M}")
    for j in range(32): A(f"v_mov_b32 v{j}, 0")
    for j in range(4): A(f"v_mov_b32 v{LA+j}, 0")
    A("s_mov_b32 s61, s60")
    A("s_mov_b32 s63, 16")
    A("L_s_pv:")
    A(f"s_mov_b32 m0, s{S_MQ}")
    for h in range(2):
        A(f"s_add_u32 s3, s61, {4096*h}")
        for t in range(4): A(f"buffer_load_dwordx4 v[{K+16*h+4*t}:{K+16*h+4*t+3}], v{VK}, s[{S_K}:{S_K+3}], s3 offen offset:{64*t}")
        for t in range(4): A(f"buffer_load_dwordx4 v{VL}, s[{S_V}:{S_V+3}], s3 offen offset:{1024*t} lds")
        A("s_waitcnt vmcnt(0)")
        for db in range(8): A(f"ds_read_b64_tr_b16 v[{VF+4*db+2*h}:{VF+4*db+2*h+1}], v{VS} offset:{64*(db >> 1) + 8*(db & 1)}")
        A("s_waitcnt lgkmcnt(0)")
    for h in range(2):
        for t in range(4): A(f"v_mfma_f32_16x16x32_bf16 v[{SS+4*h}:{SS+4*h+3}], v[{K+16*h+4*t}:{K+16*h+4*t+3}], v[{Q+4*t}:{Q+4*t+3}], " + ("0" if t == 0 else f"v[{SS+4*h}:{SS+4*h+3}]"))
    A("s_nop 9")
    for j in range(8): A(f"v_fma_f32 v{SS+j}, v{SS+j}, s{S_C}, -v{MC}")
    for j in range(8): A(f"v_exp_f32 v{SS+j}, v{SS+j}")
    A("s_nop 1")
    for j in range(4): A(f"v_cvt_pk_bf16_f32 v{P+j}, v{SS+2*j}, v{SS+2*j+1}")
    A("s_nop 2")
    A(f"v_mfma_f32_16x16x32_bf16 v[{LA}:{LA+3}], a[{A_ONE}:{A_ONE+3}], v[{P}:{P+3}], v[{LA}:{LA+3}]")
    for db in range(8):
        o = 4*db
        A(f"v_mfma_f32_16x16x32_bf16 v[{o}:{o+3}], v[{VF+4*db}:{VF+4*db+3}], v[{P}:{P+3}], v[{o}:{o+3}]")
    A("s_nop 3")
    A("s_add_u32 s61, s61, 8192")
    A("s_sub_u32 s63, s63, 1")
    A("s_cmp_lg_u32 s63, 0")
    A("s_cbranch_scc1 L_s_pv")
    A("s_nop 9")
    A(f"v_rcp_f32 v{T}, v{LA}")
    A("s_nop 1")
    for j in range(32): A(f"v_mul_f32 v{j}, v{T}, v{j}")
    for u in range(4):
        for j in range(4): A(f"v_cvt_pk_bf16_f32 v{8*u+j}, v{8*u+2*j}, v{8*u+2*j+1}")
        A(f"buffer_store_dwordx4 v[{8*u}:{8*u+3}], v{V_OOFF}, s[{S_O}:{S_O+3}], s59 offen offset:{64*u}")
    A("s_waitcnt vmcnt(0)")
    A("L_s_next:")
    A("s_add_u32 s56, s56, 1")
    A(f"s_cmp_lt_u32 s56, {4*opt.nblocks}")
    A("s_cbranch_scc1 L_s_item")
    return L

def stamp_out():
    if not opt.stamps: return []
    if opt.probe >= 0:
        n = stamp_n[0]
        ins = 's_memtime' if opt.scyc else 's_memrealtime'
        if opt.pavg:
            spin = lambda n: [f"L_spin{n}:", "s_sleep 2", "s_memrealtime s[54:55]", "s_waitcnt lgkmcnt(0)", "s_sub_u32 s54, s54, s96",
                              "s_cmp_lt_u32 s54, s3", f"s_cbranch_scc1 L_spin{n}"]
            return (["s_waitcnt vmcnt(0)", f"{ins} s[{S_STAMP+2*n}:{S_STAMP+2*n+1}]", "s_load_dwordx2 s[56:57], s[0:1], 32", "s_waitcnt lgkmcnt(0)",
                    "s_mov_b32 s58, 256", "s_mov_b32 s59, 0x20000",
                    f"s_sub_u32 s3, s{S_STAMP+2*opt.probe}, s{S_STAMP+2*opt.probe0}", "v_mov_b32 v2, s3", "v_mov_b32 v1, 0",
                    "s_mov_b64 exec, 1", "buffer_atomic_add v2, v1, s[56:59], 0 offen", "s_waitcnt vmcnt(0)", "s_mov_b64 exec, -1", "s_mov_b32 s3, 10000"] + spin(0) +
                    [f"s_add_u32 s3, s2, s{S_W}", "s_cmp_lg_u32 s3, 0", "s_cbranch_scc1 L_nospin",
                     "buffer_load_dword v2, v1, s[56:59], 0 offen sc0 sc1", "s_waitcnt vmcnt(0)", "v_readfirstlane_b32 s3, v2", "s_nop 3",
                     f"s_lshr_b32 s3, s3, {11 if opt.scyc else 8}", "s_add_u32 s3, s3, 10000"] + spin(1) + ["L_nospin:"])
        return ["s_waitcnt vmcnt(0)", f"{ins} s[{S_STAMP+2*n}:{S_STAMP+2*n+1}]", "s_waitcnt lgkmcnt(0)",
                f"s_sub_u32 s3, s{S_STAMP+2*opt.probe}, s{S_STAMP+2*opt.probe0}", "s_lshr_b32 s3, s3, 1" if opt.scyc else "s_lshl_b32 s3, s3, 2", "s_add_u32 s3, s3, 10000",
                "L_spin:", "s_sleep 2", "s_memrealtime s[56:57]", "s_waitcnt lgkmcnt(0)", f"s_sub_u32 s56, s56, s96",
                "s_cmp_lt_u32 s56, s3", "s_cbranch_scc1 L_spin"]
    L = ["s_waitcnt vmcnt(0)"] + [x.text for x in stamp()] + ["s_load_dwordx2 s[56:57], s[0:1], 40", "s_waitcnt lgkmcnt(0)"]
    n = stamp_n[0]
    L += [stamp_save(k).text for k in range(max(0, n - 12), n)]
    L += ["s_mov_b32 s58, 0x1000000", "s_mov_b32 s59, 0x20000", "s_lshl_b32 s3, s2, 2", f"s_add_u32 s3, s3, s{S_W}", "s_lshl_b32 s3, s3, 10",
          "v_mbcnt_lo_u32_b32 v1, -1, 0", "v_mbcnt_hi_u32_b32 v1, -1, v1", "v_lshl_add_u32 v1, v1, 2, s3", f"v_mov_b32 v2, {n}",
          "buffer_store_dword v2, v1, s[56:59], 0 offen offset:768"]
    for k in range(3): L.append(f"buffer_store_dword v{253+k}, v1, s[56:59], 0 offen offset:{256*k}")
    L += ["s_getpc_b64 s[60:61]", "L_pc2:", "s_load_dwordx2 s[56:57], s[0:1], 32", "s_waitcnt lgkmcnt(0)", "s_mov_b32 s58, 256",
          f"s_sub_u32 s60, s60, L_pc2 - {NAME}", "s_subb_u32 s61, s61, 0", "v_mov_b32 v2, s60", "v_mov_b32 v3, s61", "v_mov_b32 v1, 0",
          "buffer_store_dwordx2 v[2:3], v1, s[56:59], 0 offen"]
    L += ["s_waitcnt vmcnt(0)"]
    return L

HEADER = """; Attention forward, B8 H32 Sq736 Sk512 D128, bf16 in/out.
; q(8,32,736,128) k,v(8,32,512,128) out(8,32,736,128); kernarg: q,k,v,out,debug,ws pointers.
; 256 persistent workgroups x 4 waves (one wave per SIMD, 512 registers); each does three (head, 256-row) blocks.
; S^T = K Q^T and O^T = V^T P^T with 16x16x32 bf16 MFMA; K/V tiles (64 keys) stream through a 4-slot LDS ring by LDS-DMA.
; Softmax shift: per row, the maximum over the first 16 keys stands in for the row maximum (softmax is shift invariant);
; a run-time check on every row sum (must stay below 2^30, NaN fails too) sends the block to a fallback that
; recomputes it with the true row maximum.
; @launch grid=(256,1,1) block=(256,1,1) lds=%d
""" % LDS_BYTES

def sizes(code):
    import subprocess, re, tempfile, os
    texts = sorted({x.text for x in code if x.kind not in ("label", "branch") and "L_" not in x.text and "NSTUBS" not in x.text})
    d = tempfile.mkdtemp()
    open(d + "/a.s", "w").write('.amdgcn_target "amdgcn-amd-amdhsa--gfx950"\n.text\n' + "\n".join(texts) + "\ns_endpgm\n")
    subprocess.run(["clang", "-x", "assembler", "-target", "amdgcn-amd-amdhsa", "-mcpu=gfx950", "-c", d + "/a.s", "-o", d + "/a.o"], check=True)
    o = subprocess.run(["llvm-objdump", "-d", "--mcpu=gfx950", d + "/a.o"], capture_output=True, text=True).stdout
    ad = [int(m.group(1), 16) for m in re.finditer(r"// ([0-9A-F]{12}):", o)]
    assert len(ad) == len(texts) + 1
    d = {t: ad[i+1] - ad[i] for i, t in enumerate(texts)}
    d.update({x.text: 16 for x in code if "buffer_wbl2" in x.text})
    return d

def add_stubs(code):
    opt.nstub_rounds = opt.stub_n0 + opt.stub_n1
    sz = sizes(code)
    k0 = next(i for i, x in enumerate(code) if x.text == "L_main:")
    out = code[:k0+1] + [I('L_stub0:', 'label'), salu(f's_cmp_eq_u32 s{S_WARM}, 1'), I('s_cbranch_scc1 L_ret0', 'branch')]; pos = 8; n = 1; nxt = 4096
    body = code[k0+1:]
    for i, x in enumerate(body):
        if x.kind != "label" and pos >= nxt:
            if out[-1].kind in ("mfma", "smfmac") or pos + sz.get(x.text, 4) + 8 > nxt + 64 - 8:
                if n < 4*opt.nstub_rounds + (0 if opt.stub_n0 else 1):
                    out += [I(f"L_stub{n}:", "label"), salu(f"s_cmp_eq_u32 s{S_WARM}, 1"), I(f"s_cbranch_scc1 L_ret{n}", "branch")]
                    pos += 8
                n += 1; nxt += 4096
        out.append(x); pos += (40 if x.text.startswith("STUB_CALLS") else 0) if x.kind == "label" else sz.get(x.text, 4)
    for x in out: x.text = x.text.replace("NSTUBS", str(n - 1))
    res = []; used = set()
    for x in out:
        if x.text.startswith("STUB_CALLS"):
            rd = int(x.text[10:])
            if rd >= opt.nstub_rounds: continue
            calls = [salu(f"s_mov_b32 s{S_WARM}, 1")]
            for w in range(4):
                k = 4*rd + w + (0 if opt.stub_n0 else 1)
                if k >= n: continue
                calls += [salu(f"s_cmp_eq_u32 s{S_W}, {w}"), I(f"s_cbranch_scc1 L_stub{k}", "branch")]; used.add(k)
            calls += [I(f"L_ret{rd}:", "label"), salu(f"s_mov_b32 s{S_WARM}, 0")]
            res += calls
        else: res.append(x)
    out = []
    for x in res:
        if x.text.startswith("s_cbranch_scc1 L_ret"):
            k = int(x.text.split("L_ret")[1])
            x.text = f"s_cbranch_scc1 L_ret{(k - (0 if opt.stub_n0 else 1)) // 4}" if k in used else "s_nop 0"
        out.append(x)
    return out

def generate():
    stamp_n[0] = 0
    main, stats = None, None
    s = setup(); p = prologue(); main, stats = body()
    code = resolve(s + p + main)
    errs = check(code)
    if opt.abl:
        k0 = len(s) + len(p) + 60
        def keep(k, x):
            if k < k0: return True
            a = opt.abl
            if 'd' in a and x.kind == "dma" and x.tag[0] in "KV": return False
            if 'q' in a and x.kind == "dma" and x.tag[0] == "Q": return False
            if 'r' in a and x.kind == "ds": return False
            if 'o' in a and x.kind == "vstore": return False
            if 's' in a and x.kind == "smfmac": return False
            if 'e' in a and x.kind == "trans": return False
            if 'c' in a and x.text.startswith("v_cvt_pk"): return False
            if 'p' in a and (x.kind == "pk" or x.text.startswith(("v_lshlrev_b32", "v_and_b32", "v_accvgpr_write"))): return False
            if 'b' in a and x.kind == "barrier": return False
            if 'w' in a and x.kind == "wait": return False
            if 'k' in a and x.kind == "pk": return False
            if 'H' in a and x.kind == "salu" and x.text.startswith(("s_add_u32 s39,", "s_add_u32 s40,")):
                x.text = x.text.split(",")[0] + ", s20, " + str(16384 * (int(x.text.split(",")[2]) // 16384 % 4))
            if 'H' in a and x.kind == "dma" and x.tag[0] == "Q": x.text = x.text.replace(x.text.split(", ")[2].split(" ")[0], "s24")
            if 'm' in a and x.kind == "salu" and "m0" in x.text: return False
            if 'K' in a and x.kind == "pk": x.text = "v_mov_b32 " + x.text.split("[")[1].split(":")[0].join(["v", ","]) + " 0"
            return True
        code = [x for k, x in enumerate(code) if keep(k, x)]
    if opt.stubs: code = add_stubs(code)
    lines = [x.text if x.kind == "label" else "  " + x.text for x in code]
    lines += [x if x.endswith(":") else "  " + x for x in stamp_out() + ([] if opt.abl else slow_path())]
    nbytes_guess = "(((L_end - L_pc) >> 10) << 10) - 1024"
    txt = HEADER + f""".amdgcn_target "amdgcn-amd-amdhsa--gfx950"
.text
.globl {NAME}
.p2align 8
.type {NAME},@function
{NAME}:
""" + "\n".join(lines).replace("CODE_LAST_KIB", nbytes_guess) + f"""
L_end:
  s_endpgm
.if L_end - L_main < 65536
  .fill (65536 - (L_end - L_main)) / 4, 4, 0xbf810000
.endif
.section .rodata,"a"
.p2align 6
.amdhsa_kernel {NAME}
  .amdhsa_next_free_vgpr 512
  .amdhsa_next_free_sgpr 102
  .amdhsa_accum_offset 256
  .amdhsa_group_segment_fixed_size 0
  .amdhsa_kernarg_size 48
  .amdhsa_user_sgpr_count 2
  .amdhsa_user_sgpr_kernarg_segment_ptr 1
  .amdhsa_system_sgpr_workgroup_id_x 1
  .amdhsa_float_denorm_mode_32 3
.end_amdhsa_kernel
"""
    return txt, errs, stats

if __name__ == "__main__":
    out = sys.argv[1]
    for a in sys.argv[2:]:
        k, v = a.split("="); t = type(getattr(opt, k)); setattr(opt, k, v if t is str else t(int(v)))
    txt, errs, stats = generate()
    for e in errs[:40]: print("HAZARD", e)
    print(len(errs), "hazards;", stats, len(txt), "chars")
    open(out, "w").write(txt)
    sys.exit(1 if errs else 0)
```

```python
import sys, heapq
from collections import defaultdict
import gen
from gen import *

opt.tail_k = 2
opt.bar_every = 1
opt.vm_sp = 8
opt.st_gap = 32
opt.vm_lat = 120
opt.ld_lat = 9
opt.pk_pre = True
opt.bar_pos = 88
opt.pre_start = 16
opt.dbg_sched = 0
opt.pre_start0 = 18
opt.pre_end = 14
opt.q_est0 = 60
opt.full_from = 2
opt.st_gap0 = 99
opt.st_gap2 = 40
opt.wb = 0
opt.vm_burst = 1
opt.q_ahead = 400
opt.tail_st_gap = 14

MEMK = ("ds", "dma", "vstore", "vload")
VMK = ("dma", "vstore", "vload")
SCK = ("salu", "wait", "barrier")
COST2 = {"valu": 1, "trans": 2, "pk": 1, "perm": 1, "ds": 1, "dma": 1, "vstore": 3, "vload": 1}
BIG = 10**9

class Node:
    __slots__ = ("i", "m", "pred", "succ", "est", "dl", "pin", "gap", "pos", "left", "burst")
    def __init__(s, i, m=None):
        s.i, s.m, s.pred, s.succ, s.est, s.dl, s.pin, s.gap, s.pos, s.left, s.burst = i, m, {}, [], 0, BIG, None, None, None, 0, None

class Prog:
    def __init__(s):
        s.M = []; s.F = []; s.node = {}
        s.lw = {}; s.lr = defaultdict(list)
    def edge(s, p, x, dist=0, lat=0):
        if p is x: return
        d, l = x.pred.get(p, (0, 0))
        if p not in x.pred: p.succ.append(x)
        x.pred[p] = (max(d, dist), max(l, lat))
    def add(s, ins, est=0, dl=BIG, pin=None):
        ism = ins.kind in ("mfma", "smfmac")
        x = Node(ins, len(s.M) if ism else None)
        x.est, x.dl, x.pin = est, dl, pin
        if pin is not None: x.est = x.dl = pin
        for rg in ins.rd + ins.cread:
            p = s.lw.get(rg)
            if p: s.dep(p, x, rg, "raw")
        for rg in ins.wr:
            p = s.lw.get(rg)
            if p: s.dep(p, x, rg, "waw")
            for p in s.lr[rg]: s.dep(p, x, rg, "war")
        for rg in ins.wr: s.lw[rg] = x; s.lr[rg] = []
        for rg in ins.rd + ins.cread: s.lr[rg].append(x)
        (s.M if ism else s.F).append(x); s.node[id(ins)] = x
        return x
    def dep(s, p, x, rg, kind):
        d = edge_dist(p.i, x.i, rg, kind)
        lat = 0
        if p.i.kind == "ds" and kind != "war": lat = opt.ld_lat
        elif p.m is None and x.m is not None: lat = 2 if d else 1
        elif p.m is None and (d or (x.i.kind in MEMK + SCK and p.i.kind in VALK)): lat = 1
        s.edge(p, x, d, lat)

def phases():
    nt = NT(); A4 = (0, 1, 2, 3); A, B = (0, 1), (2, 3)
    k = opt.tail_k
    ph = [((T + 1, A4), (T, A4)) for T in range(nt - 1 - k)]
    if k == 0: return ph + [(None, (nt - 1, A4))]
    seq = [(T, A) for T in range(nt - k, nt)] + [(T, B) for T in range(nt - k, nt)]
    prev = (nt - k - 1, A4)
    for x in seq: ph.append((x, prev)); prev = x
    return ph + [(None, prev)]

def body2():
    nt = NT(); nb = opt.nblocks
    P = Prog()
    ph = phases()
    kcount = [0]; vcount = [0]
    reads = defaultdict(list)
    phase_start = []; group_start = []
    un = [0]
    done_db = defaultdict(set)
    items = []
    lnodes = {}
    tailitems = []
    pre_at = {8*r + 0: r for r in range(nb - 1)}
    pre_nodes = {}
    first_kset = True; first_vsets = 0

    def kset(T, kb):
        buf = kcount[0] & 1; kcount[0] += 1
        for t in range(4):
            if T == 1 and (kb == 0 or (kb == 1 and t == 0)): continue
            ins = k_read(T, kb, t, dest=A_K + 16*buf + 4*t)
            reads[("K", T)].append(P.add(ins))
        return A_K + 16*buf
    def vset(T, db):
        buf = vcount[0] & 3; vcount[0] += 1
        u, p = db >> 1, db & 1
        for ks in range(2):
            for hf in range(2):
                if T == 0 and 4*db + 2*ks + hf < 10: continue
                ins = v_read(T, db, ks, hf, dest=A_V + 8*buf + 4*ks + 2*hf)
                reads[("V", T)].append(P.add(ins))
        return A_V + 8*buf

    for pi, (qk, pv) in enumerate(ph):
        phase_start.append(len(P.M))
        if pv and pv[0] in pre_at and pv[1][0] == 0 and pv[0] not in pre_nodes:
            r = pre_at[pv[0]]; lst = []
            for k in range(16):
                kap = 16*(r + 1) + k
                if not kap & 1: w = P.add(wait(vm="auto", need=[("Q", kap >> 1)]))
                rd = P.add(q_read(kap)); P.edge(w, rd)
                ops = [P.add(o) for o in prescale_ops(V_RAW + 4*(kap & 1), q_reg(r + 1, k >> 2, k & 3), opt.pk_pre)]
                if opt.pk_pre:
                    for o in ops[8:12]: o.burst = ops[8:12]
                lst.append((kap, w, rd, ops))
            pre_nodes[pv[0]] = lst
        units = [(qk[0], kb, qb) for kb in range(4) for qb in qk[1]] if qk else []
        pairs = [(pv[0], db, pv[1][j:j+2]) for db in range(8) for j in range(0, len(pv[1]), 2)] if pv else []
        ns = max(len(units), len(pairs))
        smf = {}
        if pv:
            early = pv[0] % 8 == 7
            for n, qb in enumerate(pv[1]):
                smf.setdefault((1 + n // 2) if early else (ns // 8) * (1 + n * (8 // len(pv[1])) // 2 + (0 if len(pv[1]) == 4 else 1)), []).append(qb)
        iu = ip = 0; kb_cur = db_cur = None
        for s_ in range(ns):
            group_start.append(len(P.M))
            if iu < len(units) and iu * ns <= s_ * len(units):
                T1, kb, qb = units[iu]; iu += 1
                if kb != kb_cur: kreg = kset(T1, kb); kb_cur = kb
                special = T1 % 8 == 0 and kb == 0
                d = p_reg(T1, qb, 1) if special else V_S + 4*(un[0] & 1)
                un[0] += 1
                for t in range(4):
                    cc = None if t else ("0" if special else V_NEGM + 4*qb)
                    P.add(mfma("v", d, "a", kreg + 4*t, "a", q_reg(T1 // 8, qb, t), cc))
                if special:
                    for o in max_ops(d, qb, r=T1 // 8):
                        if not isinstance(o, str): P.add(o)
                e, cv = soft_ops(d, p_reg(T1, qb, kb >> 1) + 2*(kb & 1))
                for o in e + cv: P.add(o)
            if ip < len(pairs) and ip * ns <= s_ * len(pairs):
                T0, db, qs = pairs[ip]; ip += 1
                if db != db_cur: vreg = vset(T0, db); db_cur = db
                for qb in qs:
                    for ks in range(2):
                        last = P.add(mfma("v", o_reg(db, qb), "a", vreg + 4*ks, "v", p_reg(T0, qb, ks), "0" if (T0 % 8 == 0 and ks == 0) else None))
                    if T0 % 8 == 7 and db & 1: items.append((T0 // 8, db >> 1, qb, last))
            for qb in smf.get(s_, []):
                P.add(smfmac(qb, p_reg(pv[0], qb, 0)))
                if pv[0] % 8 == 7:
                    r = pv[0] // 8
                    lnodes[(r, qb)] = [P.add(o) for o in l_ops(r, qb, r < nb - 1)]
            while items:
                r, u, qb, last = items.pop(0)
                tailitems.append((r, u, qb, last, None))
                tailitems[-1] = (r, u, qb, last, add_item(P, r, u, qb, last))
    n = len(P.M)
    gs = group_start
    full = lambda T: phase_start[T]
    bars = []
    ps = phase_start + [n]
    bpos = [ps[i] + (ps[i+1] - ps[i]) * opt.bar_pos // 132 for i in range(len(ph))]
    firstuse = {tg: min(y.m for x in lst for y in x.succ if y.m is not None) for tg, lst in reads.items() if lst}
    unpub = [("K", x) for x in range(2, nt)] + [("V", x) for x in range(1, nt)]
    enabled = {("K", x) for x in range(5)} | {("V", x) for x in range(4)}
    enable = {}; freeK = 0; freeV = -1
    blist = list(range(len(ph))) if opt.bar_every == 1 else [0] + list(range(1, nt - 4, 2)) + list(range(nt - 4, len(ph)))
    for bi, pi in enumerate(blist):
        if not unpub: break
        g = bpos[pi]
        nxt = bpos[blist[bi + 1]] if bi + 1 < len(blist) else n
        if all(tg in enabled for tg in unpub) and pi >= nt - 6: pub = list(unpub)
        else: pub = [tg for tg in unpub if firstuse[tg] - opt.ld_lat - 30 < nxt]
        assert all(tg in enabled for tg in pub), (pi, pub)
        unpub = [tg for tg in unpub if tg not in pub]
        free = []
        if pi <= nt - 2 - opt.tail_k:
            free = [("K", x) for x in range(freeK + 1, pi + 2)] + [("V", x) for x in range(freeV + 1, pi + 1)]
            freeK, freeV = pi + 1, pi
        free = [tg for tg in free if tg[1] + 4 < nt]
        w = P.add(wait(vm="auto", lg="bar", need=pub), pin=g - 1)
        b = P.add(barrier(), pin=g); P.edge(w, b, 0, 1)
        w.burst = [x for tg in free for x in reads[tg]]
        for tg in free:
            for x in reads[tg]: x.dl = min(x.dl, g - 1 - 7)
            enable[(tg[0], tg[1] + 4)] = b; enabled.add((tg[0], tg[1] + 4))
        for tg in pub:
            for x in reads[tg]: P.edge(b, x)
        bars.append((g, w, pub))
    assert not unpub
    pubgap = {tg: g for g, w, pub in bars for tg in pub}
    pubw = {tg: w for g, w, pub in bars for tg in pub}
    qplan = {}
    for T0, lst in pre_nodes.items():
        lo = gs[16*T0 + (opt.pre_start0 if T0 == 0 else opt.pre_start)]; hi = gs[16*(T0 + 6) + opt.pre_end]
        for k, (kap, w, rd, ops) in enumerate(lst):
            a = lo + (hi - lo) * k // 16; b = lo + (hi - lo) * (k + 1) // 16
            qplan[kap] = a
            if not kap & 1: w.est = a - 8; w.dl = a - 1
            rd.est = a; rd.dl = a + 4
            for j, o in enumerate(ops): o.dl = min(o.dl, a + 4 + opt.ld_lat + (b - a) * (j + 1) // len(ops))
    jobs = []
    for kind, first in (("K", opt.first_k), ("V", opt.first_v)):
        for T in range(first, nt):
            b = enable.get((kind, T))
            est = b.pin if b else 0
            for t in range(4): jobs.append([est, pubgap[(kind, T)] - opt.vm_lat - 4*(3 - t) - (32 if pubgap.get((kind, T + 1)) == pubgap[(kind, T)] else 0), kind, T, t])
    for pc in range(8, 8*nb):
        est = qplan[2*(pc - NQS) + 1] + 4 + opt.ld_lat + 10 if pc - NQS >= 8 else opt.q_est0
        est = max(est, qplan[2*pc] - opt.q_ahead)
        for hh in range(2): jobs.append([est, qplan[2*pc] - 8 - opt.vm_lat - 4*(1 - hh), "Q", pc, hh])
    order = []; t = 0
    jobs.sort()
    pend = list(jobs)
    while pend:
        av = [j for j in pend if j[0] <= t]
        if not av: t = min(j[0] for j in pend); continue
        j = min(av, key=lambda j: (j[1], j[2], j[3], j[4])); pend.remove(j); order.append(j); t += (opt.vm_sp + 1 if j[1] > t else 2)
    late = [P.add(o, dl=(min(106, opt.q_est0 - 2) if k < len(gen.late_setup) // 2 else 200)) for k, o in enumerate(gen.late_setup)]
    for a, b in zip(late, late[1:]): P.edge(a, b, 0, 1)
    qfirst = {kap: ops[0] for lst in pre_nodes.values() for kap, w, rd, ops in lst}
    qwait = {kap: w for lst in pre_nodes.values() for kap, w, rd, ops in lst}
    for est, dl, kind, T, t in order:
        if kind == "Q":
            m, d = q_dma(T, t)
            mn = P.add(m); dn = P.add(d, est=est, dl=max(dl, est + 16 + 4*t))
            if 2*(T - NQS) + 1 in qfirst: P.edge(qfirst[2*(T - NQS) + 1], dn, 0, 1)
            P.edge(late[len(late) // 2 - 1 if T < 16 else -1], dn); P.edge(dn, qwait[2*T], 0, 1)
        else:
            if t == 0:
                so = P.add(k_soff(T) if kind == "K" else v_soff(T))
                if T >= 8: P.edge(late[-1], so)
            m, d = (k_dma if kind == "K" else v_dma)(T, t)
            mn = P.add(m); dn = P.add(d, est=est, dl=max(dl, est + 16 + 4*t))
            b = enable.get((kind, T))
            if b: P.edge(b, dn)
            P.edge(dn, pubw[(kind, T)], 0, 1)
    if opt.jit_every:
        for k in range(opt.jit_first, 8):
            g = gs[int((k - opt.jit_first) * opt.jit_every * 1.6) + opt.jit_g0]
            ld, ad = jit_ops()
            P.add(ld, est=g, dl=g + 60); P.add(ad, est=g, dl=g + 100)
    plan_stores(P, tailitems, phase_start, gs)
    return schedule(P, phase_start, gs)

def add_item(P, r, u, qb, last):
    mul, cv, st = epi_ops(r, u, qb)
    mn = [P.add(o) for o in mul]
    if opt.pk_epi:
        for o in mn: o.burst = mn
    cn = [P.add(o) for o in cv]
    last_block = r == opt.nblocks - 1
    if r >= opt.full_from and opt.full_line:
        if not u & 1:
            _pp[("half", qb)] = (mn, cn); return None
        pk = [None, None]
        if not last_block:
            pk = [park_plan(r).get((u - 1 + h, qb)) for h in range(2)]
            pk = [A_Q[r & 1] + 4*p[1] if isinstance(p, tuple) else p for p in pk]
        o1, s1, o2, s2 = line_ops(r, u >> 1, qb, pk)
        x1 = [P.add(o) for o in o1]; sn1 = P.add(s1); x2 = [P.add(o) for o in o2]; sn2 = P.add(s2)
        sn1.burst = (_pp[("half", qb)], (mn, cn), x1, x2, sn2)
        return sn1
    park = None if last_block else park_plan(r).get((u, qb))
    if isinstance(park, tuple): park = A_Q[r & 1] + 4*park[1]
    if park is None: sn = P.add(st)
    else:
        b = V_O + 32*u + 8*qb
        for j in range(4): P.add(valu(f"v_accvgpr_write_b32 {ar(park+j)}, {vr(b+j)}", R("v", b+j), R("a", park+j)))
        sn = P.add(vstore(park, V_OOFF, S_O, S_QO + 4*r + qb, 64*u, "a"))
    sn.burst = (mn, cn)
    return sn

_pp = {}
def park_plan(r):
    if ("plan", r) not in _pp:
        sp = (opt.st_gap2 if r == opt.nblocks - 2 else opt.st_gap) / 8.25
        items = [(u, qb) for u in range(4) for qb in range(4)]
        avail = {it: max(4*it[0] + 3 + (it[1] >> 1), 5) + 1.5 for it in items}
        dead = {it: 16 + 4*it[0] + (it[1] >> 1) - 0.5 for it in items}
        if r >= opt.full_from and opt.full_line:
            avail = {it: 4*(it[0] | 1) + 3 + (it[1] >> 1) + 2.5 + (it[0] & 1) for it in items}
            dead = {it: 16 + 4*it[0] + 2 + (it[1] >> 1) - 0.5 for it in items}
        left = list(items); t = min(avail.values()); slots = {}
        while True:
            cand = [it for it in left if avail[it] <= t < dead[it]]
            if cand:
                it = min(cand, key=lambda x: dead[x]); left.remove(it); slots[it] = t
            elif not any(t < dead[it] for it in left): break
            t += min(sp, opt.st_gap0 / 8.25)
        for it in left: slots[it] = t; t += sp
        nq = max(0, len(left) - 10)
        _pp[("plan", r)] = {it: (("q", 16 - nq + n) if n < nq else A_PARK + 4*(n - nq)) for n, it in enumerate(left)}
        _pp[("slot", r)] = slots
    return _pp[("plan", r)]

def plan_stores(P, tailitems, phase_start, gs):
    nb = opt.nblocks
    for r, u, qb, last, sn in tailitems:
        if r < nb - 1 and sn:
            park_plan(r)
            for uu, x in ([(u - 1, sn), (u, sn.burst[4])] if r >= opt.full_from and opt.full_line else [(u, sn)]):
                t = _pp[("slot", r)][(uu, qb)]
                g = gs[16*(8*r + 7) + int(t)] + int(8*(t - int(t)))
                x.est = g; x.dl = min(x.dl, g + (12 if opt.vm_burst == 1 else 40))
    if opt.wb:
        g = max(sn.dl for r, u, qb, last, sn in tailitems if r == nb - 2) + opt.wb
        P.add(I(f"s_cmp_eq_u32 s{S_WB}, 0\n  s_cbranch_scc0 L_nowb\n  buffer_wbl2 sc1\nL_nowb:", "salu", nops=2), pin=g)
        print("write-back at gap", g, "phases", phase_start[19:])
    n = len(P.M); tv = ts = 0
    for r, u, qb, last, sn in sorted([x for x in tailitems if x[0] == nb - 1 and x[4]], key=lambda x: x[3].m):
        if opt.full_line:
            h0, h1, x1, x2, sn2 = sn.burst
            tv = max(last.m + 8, tv + 8)
            for (mn, cn), t0 in ((h0, tv - 4), (h1, tv)):
                if t0 + 3 < n:
                    for o in mn: o.dl = t0
                    for j, o in enumerate(cn): o.dl = t0 + 1 + j // 2
            for xs, st, t0 in ((x1, sn, tv + 4), (x2, sn2, tv + 6)):
                if t0 + 2 < n:
                    for o in xs: o.dl = t0
                ts = max(t0 + 2, ts + opt.tail_st_gap)
                if ts < n: st.dl = ts
            continue
        mn, cn = sn.burst
        tv = max(last.m + 8, tv + 4); ts = max(tv + 5, ts + opt.tail_st_gap)
        if tv + 3 < n:
            for o in mn: o.dl = tv
            for j, o in enumerate(cn): o.dl = tv + 1 + j // 2
        if ts < n: sn.dl = ts

def schedule(P, phase_start, gs):
    M, F = P.M, P.F; n = len(M)
    indeg = {}
    for x in F: indeg[x] = sum(1 for y in x.succ if y.m is None)
    stack = [x for x in F if indeg[x] == 0]; seen = 0
    while stack:
        x = stack.pop(); seen += 1
        for y in x.succ:
            d, l = y.pred[x]
            lim = (y.m - max(l, 1)) if y.m is not None else (y.dl - l if y.dl < BIG else BIG)
            if x.pin is None: x.dl = min(x.dl, lim)
        for p in x.pred:
            if p.m is None:
                indeg[p] -= 1
                if indeg[p] == 0: stack.append(p)
    assert seen == len(F), "cycle"
    for k, x in enumerate(F): x.left = len(x.pred); x.pos = None
    seq = {x: k for k, x in enumerate(F)}
    pool = [x for x in F if x.left == 0]
    gaps = []; pos = [0]; out_nops = 0
    lastvm = -99; lastst = -99; late = []; bst = [-99, 0]
    def placed(x, g):
        x.gap = g; x.pos = pos[0]; pos[0] += x.i.nops
        for y in x.succ:
            if y.m is None:
                y.left -= 1
                if y.left == 0: pool.append(y)
    def short(x, at):
        return max([d - (at - p.pos - p.i.nops) for p, (d, l) in x.pred.items()] + [0])
    def latok(x, g):
        for p, (d, l) in x.pred.items():
            if p.m is None and p.gap + (l if p.i.kind != "ds" or x.i.kind in VALK else 0) > g: return False
        return True
    for g in range(n + 1):
        final = g == n
        cur = []
        if not final:
            m = M[g]
            for p in m.pred:
                assert p.pos is not None, ("unplaced predecessor", g, m.i, p.i, p.dl, p.est)
            s_ = short(m, pos[0])
            if s_: cur.append(nop(s_)); pos[0] += s_; out_nops += s_
            placed(m, g); cur.append(m.i)
        gp = dict(pre=cur, shadow=[], mem=[], valu=[]); gaps.append(gp)
        load = 0
        def emit(x, where):
            nonlocal load, lastvm, lastst, out_nops
            pool.remove(x)
            s_ = short(x, pos[0])
            if s_: gp[where].append(nop(s_)); pos[0] += s_; load += s_; out_nops += s_
            if x.dl < g: late.append((g, x.dl, x.i.text))
            placed(x, g); gp[where].append(x.i)
            if x.i.kind in VMK:
                if g - lastvm <= 4 and bst[1] < opt.vm_burst: bst[1] += 1
                else: bst[0] = g; bst[1] = 1
                lastvm = g
            if x.i.kind == "vstore": lastst = g
            load += COST2.get(x.i.kind, 0)
        key = lambda x: (x.dl, seq[x])
        if final:
            while pool:
                c = [x for x in pool if short(x, pos[0]) == 0] or pool
                emit(min(c, key=lambda x: seq[x]), "valu")
            break
        sc = sorted([x for x in pool if x.i.kind in SCK and x.est <= g and (latok(x, g) or x.dl <= g)], key=key)
        m0s = [x for x in sc if "m0" in x.i.text]
        if sc and sc[0].dl > g + 3 and m0s: emit(m0s[0], "shadow")
        elif sc and (sc[0].dl <= g + 40 or g % 2): emit(sc[0], "shadow")
        elif not gp["shadow"]: pos[0] += 0
        while True:
            sc = [x for x in pool if x.i.kind in SCK and x.dl <= g and x.est <= g]
            if not sc: break
            emit(min(sc, key=key), "shadow"); load += 1
        def vm_ok(x):
            if x.i.kind not in VMK or x.dl <= g: return True
            stg = opt.tail_st_gap if g >= phase_start[-1 - 2*opt.tail_k] else min(opt.st_gap, opt.st_gap2, opt.st_gap0) - 4
            if x.i.kind == "vstore" and g - lastst < stg: return False
            if opt.vm_burst > 1:
                if g - lastvm < 2: return False
                return (g - lastvm <= 4 and bst[1] < opt.vm_burst) or g - bst[0] >= bst[1] * opt.vm_sp
            return g - lastvm >= (opt.vm_sp if x.i.kind != "vstore" else 3)
        def cands(kinds):
            return sorted([x for x in pool if x.i.kind in kinds and x.est <= g and latok(x, g) and short(x, pos[0]) == 0 and vm_ok(x)], key=key)
        mem = cands(MEMK); val = cands(("valu", "trans", "perm"))
        pkc = cands(("pk",))
        burst = None
        if pkc:
            b = pkc[0]
            if all(y in pool or y.pos is not None for y in b.burst) and b.dl - g <= 10:
                avail = sum(COST2[x.i.kind] for x in val)
                if avail >= 4 or b.dl <= g: burst = [y for y in b.burst if y.pos is None]
        cap = 4 if burst else 2
        nvm = 0
        for x in mem:
            forced = x.dl <= g
            c = COST2[x.i.kind]
            if x.i.kind in VMK and nvm and not forced: continue
            if not forced:
                if load + min(c, 2) > cap: continue
                inburst = opt.vm_burst > 1 and x.i.kind in VMK and g - lastvm <= 4 and val and val[0].dl > g
                if val and val[0].i.kind == "trans" and load == 0 and key(val[0]) < key(x) and not inburst: continue
                if load == 0 and cap == 2 and c == 1:
                    other = [y for y in mem + val if y is not x and COST2[y.i.kind] == 1 and not (y.i.kind in VMK and x.i.kind in VMK)]
                    if not other and any(y.i.kind == "trans" for y in val) and x.dl > g + 2 and not inburst: continue
            if short(x, pos[0]) and not forced: continue
            emit(x, "mem"); nvm += x.i.kind in VMK
        while True:
            f = [x for x in pool if x.i.kind in MEMK and x.dl <= g and x.est <= g]
            if not f or gp["valu"]: break
            emit(min(f, key=key), "mem")
        while True:
            val = cands(("valu", "trans", "perm"))
            f = sorted([x for x in pool if x.i.kind in VALK and x.dl <= g and x.est <= g and x.i.kind != "pk"], key=key)
            if f: emit(f[0], "valu"); continue
            fit = [x for x in val if load + COST2[x.i.kind] <= cap]
            if not fit: break
            x = fit[0]
            if cap - load == 2 and COST2[x.i.kind] == 1:
                ones = [y for y in fit if COST2[y.i.kind] == 1]
                tr = [y for y in fit if y.i.kind == "trans"]
                follow = any(y.left == 1 and y.m is None and y.i.kind in ("valu",) and y.pred[x][0] == 0 for y in x.succ)
                if len(ones) < 2 and tr and not follow and x.dl > g + 1: x = tr[0]
            emit(x, "valu")
        if burst:
            for y in burst: emit(y, "valu")
        while True:
            f = [x for x in pool if x.dl <= g and x.est <= g]
            if not f: break
            emit(min(f, key=key), "valu")
        gp["load"] = load
    assert not pool and all(x.pos is not None for x in F)
    dsn = 0; ds_gap = []; prod = {}
    need = [-1]*(n + 2)
    for g, gp in enumerate(gaps):
        for part in ("pre", "shadow", "mem", "valu"):
            for ins in gp[part]:
                for rg in ins.rd + ins.cread + ins.wr:
                    if rg in prod:
                        gi = g - 1 if part == "pre" else g
                        need[gi] = max(need[gi], prod[rg])
                for rg in ins.wr: prod.pop(rg, None)
                if ins.kind == "ds":
                    for rg in ins.wr: prod[rg] = dsn
                    ins.lg = dsn; ds_gap.append(g); dsn += 1
    before = [0]*(n + 2)
    for g in range(n + 1): before[g + 1] = before[g] + sum(1 for part in ("mem", "valu") for i in gaps[g][part] if i.kind == "ds")
    cov = -1; extra = 0
    for g in range(n + 1):
        for ins in gaps[g]["shadow"]:
            if ins.kind == "wait" and ins.lg == "bar":
                x = P.node[id(ins)]
                tgt = max([y.i.lg for y in x.burst] + [-1])
                assert tgt < before[g]
                if tgt > cov: ins.lg = min(15, before[g] - 1 - tgt); cov = before[g] - 1 - ins.lg
                else: ins.lg = None
        if need[g] > cov:
            h = g
            while h > ds_gap[need[g]] + 2 and h > g - 4 and gaps[h]["shadow"]: h -= 1
            if gaps[h]["shadow"] or h <= ds_gap[need[g]]:
                h = g
                assert ds_gap[need[g]] < g, ("read and use in one gap", g)
                wv = [i for i in gaps[g]["shadow"] if i.kind == "wait" and i.lg is None]
            else: wv = []
            tgt = max(need[g], before[max(0, h - 6)] - 1)
            cnt = min(15, before[h] - 1 - tgt)
            if wv: wv[0].lg = cnt
            else:
                if gaps[h]["shadow"]: extra += 1; gaps[h]["load"] = gaps[h].get("load", 0) + 1
                gaps[h]["shadow"].append(wait(lg=cnt))
            cov = before[h] - 1 - cnt
    for g in range(n + 1):
        for part in ("mem", "valu"):
            for ins in gaps[g][part]:
                if ins.kind == "ds": ins.lg = None
    c = []
    sper = [int(x) for x in opt.sper.split('_')] if opt.sper else [0, 1, 7, 8, 9, 15, 16, 17] + list(range(20, len(phase_start)))
    marks = {phase_start[T] for T in sper if T < len(phase_start)}
    if opt.sgrp: marks = {gs[int(x)] for x in opt.sgrp.split('_')}
    for g, gp in enumerate(gaps):
        if g in marks or g == n: c += stamp()
        lst = gp["pre"] + gp["shadow"] + gp["mem"] + gp["valu"]
        if opt.sgrp and min(marks) <= g <= max(marks):
            for ins in lst:
                if ins.kind in VMK or ins.kind == "barrier" or (ins.kind == "wait" and ins.vm is not None): c += stamp() + [ins] + stamp()
                else: c.append(ins)
        else: c += lst
    c += stamp()
    cyc = [max(16, 8 + 4*gp.get("load", 0)) for gp in gaps[:n]]
    ps = phase_start + [n]
    stats = dict(nbar=sum(1 for x in F if x.i.kind == 'barrier'), per=[sum(cyc[a:b]) for a, b in zip(ps, ps[1:])], gaps=n, est_cycles=sum(cyc), tail_instr=len(gaps[n]["valu"]),
                 under=sum(max(0, 2 - gp.get("load", 0)) for gp in gaps[:n]), nops=out_nops, extra_waits=extra, late=len(late))
    if opt.dbg_sched:
        for l in late[:40]: print("late", l)
    if opt.dbg_sched > 1:
        ab = {"trans": "E", "valu": "v", "pk": "P", "perm": "x", "ds": "r", "dma": "D", "vstore": "S", "vload": "L", "nop": "n", "salu": "s", "wait": "w", "barrier": "B"}
        for T in range(len(phase_start)):
            row = []
            for g in range(ps[T], ps[T+1]):
                gp = gaps[g]
                row.append(("|" if g in gs else "") + "".join(ab[i.kind] for i in gp["shadow"][1:] + gp["mem"] + gp["valu"]) + ("" if gp["load"] >= 2 else "_" * (2 - gp["load"])))
            print(T, " ".join(row))
    return c, stats

opt.st_gap = 62; opt.st_gap2 = 56; opt.vm_sp = 10; opt.full_from = 0
opt.o_pol = opt.o1_pol = opt.olast_pol = opt.olastb_pol = 'sc1'; opt.q_pol = opt.kv_pol = 'nt'
opt.pro_order = 12; opt.line_prefetch = 0; opt.jit_every = 0; opt.stub_n0 = 1; opt.stub_n1 = 3
opt.first_k = 3
opt.first_v = 2
gen.body = body2

if __name__ == "__main__":
    out = sys.argv[1]
    for a in sys.argv[2:]:
        k, v = a.split("="); t = type(getattr(opt, k)); setattr(opt, k, v if t is str else t(int(v)))
    txt, errs, stats = gen.generate()
    for e in errs[:40]: print("HAZARD", e)
    print(len(errs), "hazards;", stats, len(txt), "chars")
    open(out, "w").write(txt)
    sys.exit(1 if errs else 0)
```

```python
import sys, struct, math, json
from collections import defaultdict

NAME = "standalone__gqa_softmax__near_ridge_kernel"

class Opt:
    stamps = False
    force_slow = False
    code_prefetch = False
    pk_epi = True
    pk_pre = False
    nblocks = 3
    kv_pol = ''
    q_pol = ''
    o_pol = ''
    olast_pol = ''
    olastb_pol = ''
    o1_pol = ''
    full_line = 1
    late_issue = 1
    st_sp = 25
    st_g0 = 6
    scyc = 0
    sper = ''
    sgrp = ''
    line_prefetch = 1
    head_prefetch = 1
    zero_pad = 1
    rot = 0
    rot_sh = 0
    pro_order = 0
    k1_late = 0
    k_first = 0
    q2_late = 0
    jit_all = 1
    stub_n0 = 1
    stub_n1 = 2
    stub_late = 1
    stub_early = 0
    nstub_rounds = 4
    jit_every = 29
    jit_first = 2
    jit_g0 = 23
    stubs = 1
    abl = ''
    lin_dma = 0
    probe0 = 0
    pavg = 0
    probe = -1
opt = Opt()

def f2u(x): return struct.unpack("<I", struct.pack("<f", x))[0]
CSCALE = f2u(math.log2(math.e) / math.sqrt(128.0))
THR = f2u(2.0 ** 40)

VE = 0
KB = 65552
VPAR = 32768 + 8
QB = 131088
QW = 7168
NQS = 3
LDS_BYTES = 163840

V_O = 0
V_P = 128
V_S = 192
V_NEGM = 200
V_RAW = 216
V_T = 224
V_JIT = 252
A_DUMMY = 255
V_RCP = 232
V_MT = 224
V_LT = 226
V_KADDR = 240
V_VADDR = 242
V_QADDR = 249
V_KOFF = 245
V_VOFF = 246
V_OOFF = 247
V_IDX = 248
V_OOFF2 = 251
V_TMP = 64
A_Q = [0, 64]
A_K = 128
A_V = 160
A_L = 192
A_ONE = 208
A_PARK = 212
S_K, S_V, S_Q, S_O = 4, 8, 12, 16
S_KV = 20
S_W = 23
S_QO = 24
S_MK, S_MV, S_MQ = 36, 37, 38
S_SK, S_SV = 39, 40
S_LMASK = 58
VCC = ("s", 106)
S_MQ1 = 62
S_C = 42
S_THR = 44
S_FLAG = 46
S_CMP = 52
S_T = 54
S_BIAS = 60
S_ANDM = 41+0
S_ROT = [96, 97, 98]
S_WB = 98
S_WARM = 99
S_PC = 100
S_STAMP = 64

def vr(b, n=1): return f"v{b}" if n == 1 else f"v[{b}:{b+n-1}]"
def ar(b, n=1): return f"a{b}" if n == 1 else f"a[{b}:{b+n-1}]"
def sr(b, n=1): return f"s{b}" if n == 1 else f"s[{b}:{b+n-1}]"
def R(c, b, n=1): return [(c, b + i) for i in range(n)]

class I:
    __slots__ = ("text", "kind", "rd", "wr", "tag", "cread", "nops", "need", "vm", "lg", "after")
    def __init__(s, text, kind, rd=(), wr=(), tag=None, cread=(), nops=1):
        s.text, s.kind, s.rd, s.wr, s.tag, s.cread, s.nops = text, kind, list(rd), list(wr), tag, list(cread), nops
        s.need = None; s.vm = None; s.lg = None; s.after = []
    def __repr__(s): return s.text

def mfma(dc, d, ac, a, bc, b, c=None):
    f = {"v": vr, "a": ar}
    if c is None: ct, cr = f[dc](d, 4), R(dc, d, 4)
    elif c == "0": ct, cr = "0", []
    else: ct, cr = f[dc](c, 4), R(dc, c, 4)
    return I(f"v_mfma_f32_16x16x32_bf16 {f[dc](d,4)}, {f[ac](a,4)}, {f[bc](b,4)}, {ct}", "mfma",
             rd=R(ac, a, 4) + R(bc, b, 4), wr=R(dc, d, 4), cread=cr)
def smfmac(qb, pb):
    return I(f"v_smfmac_f32_16x16x64_bf16 {ar(A_L+4*qb,4)}, {ar(A_ONE,4)}, {vr(pb,8)}, {vr(V_IDX)}", "smfmac",
             rd=R("a", A_ONE, 4) + R("v", pb, 8) + R("v", V_IDX), wr=R("a", A_L + 4*qb, 4), cread=R("a", A_L + 4*qb, 4))
def valu(text, rd, wr, kind="valu"): return I(text, kind, rd, wr)
def vexp(r): return I(f"v_exp_f32 {vr(r)}, {vr(r)}", "trans", R("v", r), R("v", r))
def vcvt(d, a, b): return I(f"v_cvt_pk_bf16_f32 {vr(d)}, {vr(a)}, {vr(b)}", "valu", R("v", a) + R("v", b), R("v", d))
def salu(text, rd=(), wr=()): return I(text, "salu", rd, wr)
def nop(n): return I(f"s_nop {n-1}", "nop", nops=n)
def wait(vm=None, lg=None, need=None):
    i = I("s_waitcnt", "wait"); i.vm, i.lg, i.need = vm, lg, need; return i
def barrier(): return I("s_barrier", "barrier")
def dsr(dc, d, addr, off, tag):
    f = {"v": vr, "a": ar}[dc]
    return I(f"ds_read_b128 {f(d,4)}, {vr(addr)} offset:{off}", "ds", R("v", addr), R(dc, d, 4), tag)
def dst(d, addr, off, tag):
    return I(f"ds_read_b64_tr_b16 {ar(d,2)}, {vr(addr)} offset:{off}", "ds", R("v", addr), R("a", d, 2), tag)
def setm0(sbase, imm):

    return I(f"s_add_u32 m0, {sr(sbase)}, {imm}", "salu", R("s", sbase), [("m", 0)])
def pol(p): return ''.join(' ' + x for x in p.split('_') if x)
def dma(voff, srd, soff, imm, tag):
    o = f" offset:{imm}" if imm else ""
    o += pol(opt.q_pol if srd == S_Q else opt.kv_pol)
    return I(f"buffer_load_dwordx4 {vr(voff)}, {sr(srd,4)}, {sr(soff)} offen{o} lds", "dma",
             R("v", voff) + R("s", srd, 4) + R("s", soff) + [("m", 0)], [], tag)
def vload(d, voff, srd, soff, imm):
    o = f" offset:{imm}" if imm else ""
    o += pol(opt.q_pol)
    return I(f"buffer_load_dwordx4 {vr(d,4)}, {vr(voff)}, {sr(srd,4)}, {sr(soff)} offen{o}", "vload",
             R("v", voff) + R("s", srd, 4) + R("s", soff), R("v", d, 4))
def vstore(d, voff, srd, soff, imm, dc="v", last=False):
    o = f" offset:{imm}" if imm else ""
    if 'L' in opt.abl and last: voff = V_KOFF; imm = kq_imm(imm // 64); o = f" offset:{imm}" if imm else ""
    o += pol((opt.olast_pol if (soff - S_QO) % 4 < getattr(opt, 'tail_a', 2) else opt.olastb_pol) if last else (opt.o1_pol if (soff - S_QO) // 4 == opt.nblocks - 2 and opt.o1_pol else opt.o_pol))
    return I(f"buffer_store_dwordx4 {(vr if dc == 'v' else ar)(d,4)}, {vr(voff)}, {sr(srd,4)}, {sr(soff)} offen{o}", "vstore",
             R(dc, d, 4) + R("v", voff) + R("s", srd, 4) + R("s", soff), [])

def o_reg(db, qb): return V_O + 32*(db >> 1) + 8*qb + 4*(db & 1)
def p_reg(T, qb, ks): return V_P + 32*(T & 1) + 8*qb + 4*ks
def q_reg(r, qb, t): return A_Q[r & 1] + 16*qb + 4*t
def k_reg(kb, t): return A_K + 16*(kb & 1) + 4*t
def v_reg(db, ks): return A_V + 8*(db & 3) + 4*ks
def k_read(T, kb, t, dest=None):
    return dsr("a", k_reg(kb, t) if dest is None else dest, V_KADDR + (t & 1), (T & 3)*16384 + kb*4096 + (t >> 1)*2048, ("K", T))
def v_read(T, db, ks, hf, dest=None):
    u, p = db >> 1, db & 1
    return dst(v_reg(db, ks) + 2*hf if dest is None else dest, V_VADDR + (u & 1), (T & 3)*8192 + (2*ks + hf)*2048 + (u >> 1)*1024 + 8*p, ("V", T))
def kq_imm(j): return (j & 1)*2048 + (j >> 1)*128
def k_dma(T, j):
    return setm0(S_MK, (T & 3)*16384 + j*1024 - kq_imm(j)), dma(V_KOFF, S_K, S_SK, kq_imm(j), ("K", T))
def v_dma(T, j):
    par, up = j & 1, j >> 1; imm = par*1024 + up*128
    return setm0(S_MV, par*VPAR + (T & 3)*8192 + up*1024 - imm), dma(V_VOFF, S_V, S_SV, imm, ("V", T))
def soff(reg, T):
    r = T // 8
    if not opt.rot: return [salu(f"s_add_u32 {sr(reg)}, {sr(S_KV + r)}, {(T % 8)*16384}", R("s", S_KV + r), R("s", reg))]
    return [salu(f"s_add_u32 {sr(reg)}, {sr(S_ROT[r])}, {(T % 8)*16384}", R("s", S_ROT[r]), R("s", reg)),
            salu(f"s_and_b32 {sr(reg)}, {sr(reg)}, 0x1ffff", R("s", reg), R("s", reg)),
            salu(f"s_add_u32 {sr(reg)}, {sr(reg)}, {sr(S_KV + r)}", R("s", reg) + R("s", S_KV + r), R("s", reg))]
def k_soff(T): return soff(S_SK, T)
def v_soff(T): return soff(S_SV, T)
def q_dma(pc, hh):
    r, qb, tp = pc // 8, (pc >> 1) & 3, pc & 1
    j = 2*tp + hh
    return setm0(S_MQ, (pc % NQS)*2048 + hh*1024 - kq_imm(j)), dma(V_KOFF, S_Q, S_QO + 4*r + qb, kq_imm(j), ("Q", pc))
def qp_dma(qb, j):
    base, off = [(S_MQ, 0), (S_MQ1, 0), (S_MK, 32768), (S_MK, 49152)][qb]
    return setm0(base, off + 1024*j - kq_imm(j)), dma(V_KOFF, S_Q, S_QO + qb, kq_imm(j), ("P", 2*qb + (j >> 1)))
def qp_read(qb, t):
    addr, off = [(V_QADDR, 0), (V_RCP, 0), (V_RCP + 2, 32768), (V_RCP + 2, 49152)][qb]
    return dsr("v", V_O + 16*qb + 4*t, addr + (t & 1), off + 2048*(t >> 1), ("P", 2*qb + (t >> 1)))
def q_read(kap):
    return dsr("v", V_RAW + 4*(kap & 1), V_QADDR + (kap & 1), ((kap >> 1) % NQS)*2048, ("Q", kap >> 1))

def prescale_ops(src, dst_a, pk, tbase=V_T):
    ops = []
    if pk:
        for j in range(4):
            ops.append(valu(f"v_lshlrev_b32 {vr(tbase+2*j)}, 16, {vr(src+j)}", R("v", src+j), R("v", tbase+2*j)))
            ops.append(valu(f"v_and_b32 {vr(tbase+2*j+1)}, 0xffff0000, {vr(src+j)}", R("v", src+j), R("v", tbase+2*j+1)))
        for j in range(4):
            ops.append(valu(f"v_pk_mul_f32 {vr(tbase+2*j,2)}, {vr(tbase+2*j,2)}, {sr(S_C,2)}", R("v", tbase+2*j, 2) + R("s", S_C, 2), R("v", tbase+2*j, 2), "pk"))
        for j in range(4):
            ops.append(vcvt(src+j, tbase+2*j, tbase+2*j+1))
        for j in range(4):
            ops.append(valu(f"v_accvgpr_write_b32 {ar(dst_a+j)}, {vr(src+j)}", R("v", src+j), R("a", dst_a+j)))
    else:
        for j in range(4):
            t0 = tbase + 2*(j & 1)
            ops.append(valu(f"v_lshlrev_b32 {vr(t0)}, 16, {vr(src+j)}", R("v", src+j), R("v", t0)))
            ops.append(valu(f"v_and_b32 {vr(t0+1)}, 0xffff0000, {vr(src+j)}", R("v", src+j), R("v", t0+1)))
            ops.append(valu(f"v_mul_f32 {vr(t0)}, {sr(S_C)}, {vr(t0)}", R("v", t0) + R("s", S_C), R("v", t0)))
            ops.append(valu(f"v_mul_f32 {vr(t0+1)}, {sr(S_C)}, {vr(t0+1)}", R("v", t0+1) + R("s", S_C), R("v", t0+1)))
            ops.append(vcvt(src+j, t0, t0+1))
            ops.append(valu(f"v_accvgpr_write_b32 {ar(dst_a+j)}, {vr(src+j)}", R("v", src+j), R("a", dst_a+j)))
    return ops

BIAS_REG = [60, 61, 63]
def max_ops(x, qb, mt=V_MT, r=0):
    m, t, n = mt, mt + 1, V_NEGM + 4*qb
    ops = [valu(f"v_max3_f32 {vr(m)}, {vr(x)}, {vr(x+1)}, {vr(x+2)}", R("v", x, 3), R("v", m)),
           valu(f"v_max_f32 {vr(m)}, {vr(m)}, {vr(x+3)}", R("v", m) + R("v", x+3), R("v", m)),
           valu(f"v_mov_b32 {vr(t)}, {vr(m)}", R("v", m), R("v", t)),
           "gap2",
           valu(f"v_permlane32_swap_b32 {vr(m)}, {vr(t)}", R("v", m, 2), R("v", m, 2), "perm"),
           valu(f"v_max_f32 {vr(m)}, {vr(m)}, {vr(t)}", R("v", m, 2), R("v", m)),
           valu(f"v_mov_b32 {vr(t)}, {vr(m)}", R("v", m), R("v", t)),
           "gap2",
           valu(f"v_permlane16_swap_b32 {vr(m)}, {vr(t)}", R("v", m, 2), R("v", m, 2), "perm")]
    for j in range(4):
        if qb >= 2 and opt.zero_pad: ops.append(valu(f"v_min3_f32 {vr(n+j)}, -{vr(m)}, -{vr(t)}, s{BIAS_REG[r]}", R("v", m, 2), R("v", n+j)))
        else: ops.append(valu(f"v_min_f32_e64 {vr(n+j)}, -{vr(m)}, -{vr(t)}", R("v", m, 2), R("v", n+j)))
    for j in range(4):
        ops.append(valu(f"v_add_f32 {vr(x+j)}, {vr(n)}, {vr(x+j)}", R("v", n) + R("v", x+j), R("v", x+j)))
    return ops

def soft_ops(x, pd):
    return [vexp(x), vexp(x+1), vexp(x+2), vexp(x+3)], [vcvt(pd, x, x+1), vcvt(pd+1, x+2, x+3)]

def l_ops(r, qb, more):
    a = A_L + 4*qb
    ops = [valu(f"v_accvgpr_read_b32 {vr(V_LT)}, {ar(a)}", R("a", a), R("v", V_LT)),
           valu(f"v_accvgpr_read_b32 {vr(V_LT+1)}, {ar(a+1)}", R("a", a+1), R("v", V_LT+1)),
           valu(f"v_add_f32 {vr(V_LT)}, {vr(V_LT)}, {vr(V_LT+1)}", R("v", V_LT, 2), R("v", V_LT)),
           I(f"v_rcp_f32 {vr(V_RCP+2*qb)}, {vr(V_LT)}", "trans", R("v", V_LT), R("v", V_RCP+2*qb))]
    cm = S_CMP + 2*(qb - 1)
    dst = S_FLAG + 2*r if qb == 0 else cm
    ops.append(valu(f"v_cmp_nlt_f32_e64 {sr(dst,2)}, {vr(V_LT)}, {sr(S_THR)}", R("v", V_LT) + R("s", S_THR), R("s", dst, 2)))
    if opt.pk_epi:
        ops.append(valu(f"v_mov_b32 {vr(V_RCP+2*qb+1)}, {vr(V_RCP+2*qb)}", R("v", V_RCP+2*qb), R("v", V_RCP+2*qb+1)))
    if more:
        ops.append(valu(f"v_accvgpr_write_b32 {ar(a)}, 0", [], R("a", a)))
        ops.append(valu(f"v_accvgpr_write_b32 {ar(a+1)}, 0", [], R("a", a+1)))
    if qb:
        ops.append(salu(f"s_or_b64 {sr(S_FLAG+2*r,2)}, {sr(S_FLAG+2*r,2)}, {sr(cm,2)}", R("s", S_FLAG+2*r, 2) + R("s", cm, 2), R("s", S_FLAG+2*r, 2)))
    return ops

def epi_ops(r, u, qb, park=None):
    b = V_O + 32*u + 8*qb
    rc = V_RCP + 2*qb
    mul = []
    if opt.pk_epi:
        for j in range(0, 8, 2):
            mul.append(valu(f"v_pk_mul_f32 {vr(b+j,2)}, {vr(b+j,2)}, {vr(rc,2)}", R("v", b+j, 2) + R("v", rc, 2), R("v", b+j, 2), "pk"))
    else:
        for j in range(8):
            mul.append(valu(f"v_mul_f32 {vr(b+j)}, {vr(rc)}, {vr(b+j)}", R("v", b+j) + R("v", rc), R("v", b+j)))
    cv = [vcvt(b+j, b+2*j, b+2*j+1) for j in range(4)]
    if park is None:
        st = vstore(b, V_OOFF, S_O, S_QO + 4*r + qb, 64*u, last=(r == opt.nblocks - 1))
    else:
        cv += [valu(f"v_accvgpr_write_b32 {ar(park+j)}, {vr(b+j)}", R("v", b+j), R("a", park+j)) for j in range(4)]
        st = vstore(park, V_OOFF, S_O, S_QO + 4*r + qb, 64*u, "a")
    return mul, cv, st

def line_ops(r, v, qb, park=(None, None)):
    a, b = V_O + 64*v + 8*qb, V_O + 64*v + 32 + 8*qb
    dpp = " row_ror:8 row_mask:0xf bank_mask:0xf"
    ops = [salu(f"s_mov_b64 vcc, {sr(S_LMASK,2)}", [], [VCC])]
    ops += [valu(f"v_cndmask_b32_dpp {vr(a+4+j)}, {vr(b+j)}, {vr(a+j)}, vcc{dpp}", R("v", a+j) + R("v", b+j) + [VCC], R("v", a+4+j), "perm") for j in range(4)]
    last = r == opt.nblocks - 1
    pk = lambda p, x: [valu(f"v_accvgpr_write_b32 {ar(p+j)}, {vr(x+j)}", R("v", x+j), R("a", p+j)) for j in range(4)]
    if park[0] is None: s1 = vstore(a+4, V_OOFF2, S_O, S_QO + 4*r + qb, 128*v, last=last)
    else: ops += pk(park[0], a+4); s1 = vstore(park[0], V_OOFF2, S_O, S_QO + 4*r + qb, 128*v, "a")
    ops2 = [salu(f"s_not_b64 vcc, {sr(S_LMASK,2)}", [], [VCC])]
    ops2 += [valu(f"v_cndmask_b32_dpp {vr(b+4+j)}, {vr(a+j)}, {vr(b+j)}, vcc{dpp}", R("v", a+j) + R("v", b+j) + [VCC], R("v", b+4+j), "perm") for j in range(4)]
    if park[1] is None: s2 = vstore(b+4, V_OOFF2, S_O, S_QO + 4*r + qb, 2048 + 128*v, last=last)
    else: ops2 += pk(park[1], b+4); s2 = vstore(park[1], V_OOFF2, S_O, S_QO + 4*r + qb, 2048 + 128*v, "a")
    return ops, s1, ops2, s2

stamp_n = [0]
def stamp(pro=False):
    if not opt.stamps: return []
    if pro and (opt.sper or opt.sgrp): return []
    n = stamp_n[0]; stamp_n[0] += 1
    ins = 's_memtime' if opt.scyc else 's_memrealtime'
    if opt.probe >= 0:
        assert S_STAMP + 2*n + 3 <= 93
        return [I(f"{ins} {sr(S_STAMP+2*n,2)}", "smem", [], R("s", S_STAMP+2*n, 2))]
    out = [I(f"{ins} {sr(S_STAMP+2*(n%16),2)}", "smem", [], [])]
    if n >= 12: out.append(stamp_save(n - 12))
    return out
def stamp_save(n):
    assert n < 192
    return I(f"v_writelane_b32 v{253 + n//64}, s{S_STAMP+2*(n%16)}, {n%64}", "salu")

def jit_ops():
    return [I(f"global_load_dword a{A_DUMMY}, v{V_JIT}, s[{S_PC}:{S_PC+1}]", "vload", R("v", V_JIT) + R("s", S_PC, 2), []),
            valu(f"v_add_u32 v{V_JIT}, 0x2000, v{V_JIT}", R("v", V_JIT), R("v", V_JIT))]
late_setup = []
def setup():
    c = []
    T = V_TMP
    A = lambda t: c.append(salu(t))
    def V(t, rd, wr): c.append(valu(t, rd, wr))
    c.append(salu("s_cmpk_ge_u32 s2, 0x100"))
    c.append(I("s_cbranch_scc1 L_end", "branch"))
    for srd, off in ((S_Q, 0), (S_K, 8), (S_V, 16), (S_O, 24)):
        c.append(I(f"s_load_dwordx2 s[{srd}:{srd+1}], s[0:1], {off}", "smem", [], R("s", srd, 2)))
    c += stamp()
    if opt.probe >= 0: c.append(I("s_memrealtime s[94:95]", "smem"))
    A(f"s_mov_b32 s{S_WARM}, 0")
    if opt.stubs:
        c.append(I(f"s_getpc_b64 s[{S_PC}:{S_PC+1}]", "salu", [], R("s", S_PC, 2)))
        c.append(I("L_pc:", "label"))
        if opt.head_prefetch:
            V(f"v_and_b32 v{V_LT}, 15, v0", R("v", 0), R("v", V_LT))
            V(f"v_lshrrev_b32 v{V_LT+1}, 6, v0", R("v", 0), R("v", V_LT+1))
            V(f"v_lshl_add_u32 v{V_LT}, v{V_LT+1}, 4, v{V_LT}", R("v", V_LT, 2), R("v", V_LT))
            V(f"v_lshlrev_b32 v{V_LT}, 7, v{V_LT}", R("v", V_LT), R("v", V_LT))
            c.append(I(f"global_load_dword a{A_DUMMY}, v{V_LT}, s[{S_PC}:{S_PC+1}] offset:256", "vload", R("v", V_LT), []))
        A(f"s_add_u32 s{S_PC}, s{S_PC}, L_main - L_pc")
        A(f"s_addc_u32 s{S_PC+1}, s{S_PC+1}, 0")
        if opt.line_prefetch:
            V(f"v_bfe_u32 v{V_LT}, v0, 2, 2", R("v", 0), R("v", V_LT))
            V(f"v_lshrrev_b32 v{V_LT+1}, 6, v0", R("v", 0), R("v", V_LT+1))
            V(f"v_lshl_add_u32 v{V_LT}, v{V_LT}, 2, v{V_LT+1}", R("v", V_LT, 2), R("v", V_LT))
            V(f"v_lshlrev_b32 v{V_LT}, 5, v{V_LT}", R("v", V_LT), R("v", V_LT))
            V(f"v_and_b32 v{V_LT+1}, 3, v0", R("v", 0), R("v", V_LT+1))
            V(f"v_add_u32 v{V_LT}, v{V_LT}, v{V_LT+1}", R("v", V_LT, 2), R("v", V_LT))
            V(f"v_lshlrev_b32 v{V_LT}, 7, v{V_LT}", R("v", V_LT), R("v", V_LT))
            for k in range(opt.line_prefetch):
                c.append(I(f"global_load_dword a{A_DUMMY}, v{V_LT}, s[{S_PC}:{S_PC+1}]" + (f" offset:{512*k}" if k else ""), "vload", R("v", V_LT), []))
    V(f"v_lshrrev_b32 v{T}, 6, v0", R("v", 0), R("v", T))
    V(f"v_and_b32 v{T+1}, 63, v0", R("v", 0), R("v", T+1))
    V(f"v_readfirstlane_b32 s{S_W}, v{T}", R("v", T), R("s", S_W))
    if opt.stubs and opt.stub_early: c.append(nop(4)); c.append(I("STUB_CALLS0", "label"))
    A(f"s_and_b32 s54, s2, 7")
    A(f"s_lshl_b32 s54, s54, 5")
    A(f"s_lshr_b32 s55, s2, 3")
    def bias(r, src="s3"):
        A(f"s_mul_i32 s{BIAS_REG[r]}, {src}, {(f2u(-1e30) - 0x7f800000) & 0xffffffff:#x}")
        A(f"s_add_u32 s{BIAS_REG[r]}, s{BIAS_REG[r]}, 0x7f800000")
    def blk(r):
        A(f"s_add_u32 s3, s55, {32*r}")
        A(f"s_mul_i32 s45, s3, 43691")
        A(f"s_lshr_b32 s45, s45, 17")
        A(f"s_mul_i32 s41, s45, 3")
        A(f"s_sub_u32 s3, s3, s41")
        A(f"s_add_u32 s45, s45, s54")
        A(f"s_lshl_b32 s{S_KV+r}, s45, 17")
        if opt.rot:
            A(f"s_lshr_b32 s{S_ROT[r]}, s45, {opt.rot_sh}")
            A(f"s_lshl_b32 s{S_ROT[r]}, s{S_ROT[r]}, 14")
        A(f"s_mul_i32 s45, s45, 188416")
        A(f"s_lshl_b32 s41, s3, 16")
        A(f"s_add_u32 s45, s45, s41")
        A(f"s_mul_i32 s41, s{S_W}, 12288")
        A(f"s_add_u32 s{S_QO+4*r}, s45, s41")
        A(f"s_add_u32 s{S_QO+4*r+1}, s{S_QO+4*r}, 4096")
        A(f"s_lshl_b32 s3, s3, 2")
        A(f"s_add_u32 s3, s3, s{S_W}")
        A(f"s_add_u32 s3, s3, 5")
        A(f"s_lshr_b32 s3, s3, 4")
        if r: bias(r)
        else: A(f"s_mov_b32 s53, s3")
        A(f"s_mul_i32 s41, s3, 0x70000000")
        A(f"s_add_u32 s41, s41, s{S_QO+4*r}")
        A(f"s_add_u32 s{S_QO+4*r+2}, s41, 8192")
        A(f"s_add_u32 s{S_QO+4*r+3}, s41, 12288")
    L = T + 1
    V(f"v_lshrrev_b32 v{T+6}, 3, v{L}", R("v", L), R("v", T+6))
    V(f"v_and_b32 v{T+4}, 6, v{T+6}", R("v", T+6), R("v", T+4))
    V(f"v_and_b32 v{T+5}, 7, v{L}", R("v", L), R("v", T+5))
    V(f"v_xor_b32 v{T+4}, v{T+4}, v{T+5}", R("v", T+4, 2), R("v", T+4))
    V(f"v_lshlrev_b32 v{T+2}, 8, v{T+6}", R("v", T+6), R("v", T+2))
    V(f"v_lshl_add_u32 v{T+2}, v{T+4}, 4, v{T+2}", R("v", T+4) + R("v", T+2), R("v", T+2))
    V(f"v_lshl_add_u32 v{V_KOFF}, v{T}, 12, v{T+2}", R("v", T) + R("v", T+2), R("v", V_KOFF))
    V(f"v_lshrrev_b32 v{T+3}, 4, v{L}", R("v", L), R("v", T+3))
    V(f"v_and_b32 v{T+4}, 15, v{L}", R("v", L), R("v", T+4))
    V(f"v_lshlrev_b32 v{T+2}, 8, v{T+4}", R("v", T+4), R("v", T+2))
    V(f"v_lshl_add_u32 v{T+2}, v{T+3}, 4, v{T+2}", R("v", T+3) + R("v", T+2), R("v", T+2))
    V(f"v_lshl_add_u32 v{V_OOFF}, v{T}, 12, v{T+2}", R("v", T) + R("v", T+2), R("v", V_OOFF))
    blk(0)
    A(f"s_lshl_b32 s{S_MK}, s{S_W}, 12")
    A(f"s_add_u32 s{S_MK}, s{S_MK}, {KB}")
    for srd, n in ((S_K, 33554432), (S_Q, 48234496), (S_V, 33554432), (S_O, 48234496)):
        A(f"s_mov_b32 s{srd+2}, {n}")
        A(f"s_mov_b32 s{srd+3}, 0x20000")
    A(f"s_mul_i32 s3, s{S_W}, {QW}")
    A(f"s_add_u32 s{S_MQ}, s3, {QB}")
    c.append(wait(lg=0))
    c += stamp(True)
    for what in ("KQ" if opt.k_first else "QK"):
        if what == "K": c += k_soff(0)
        for t in range(4):
            m, d = qp_dma(0, t) if what == "Q" else k_dma(0, t); c += [m, nop(1), d]
    if opt.jit_all:
        A(f"s_lshl_b32 s3, s55, 2")
        A(f"s_add_u32 s3, s3, s{S_W}")
        A(f"s_and_b32 s3, s3, 63")
        A(f"s_lshl_b32 s3, s3, 7")
        V(f"v_lshlrev_b32 v{T+2}, 13, v{T+5}", R("v", T+5), R("v", T+2))
        V(f"v_add_u32 v{T+2}, s3, v{T+2}", R("v", T+2), R("v", T+2))
        c.append(I(f"global_load_dword a{A_DUMMY}, v{T+2}, s[{S_PC}:{S_PC+1}]", "vload", R("v", T+2), []))
    c += stamp(True)
    if opt.stubs and not opt.stub_late:
        for rd in range(1 if opt.stub_early else 0, 5): c.append(I(f"STUB_CALLS{rd}", "label"))
    c += stamp(True)
    A(f"s_lshr_b32 s3, s{S_W}, 1")
    A(f"s_mul_i32 s3, s3, {VPAR + 8 - 8192}")
    A(f"s_add_u32 s3, s3, s{S_MK}")
    A(f"s_add_u32 s{S_MQ1}, s3, {VE + 24576 - KB}")
    for t in range(4):
        m, d = qp_dma(1, t); c += [m, nop(1), d]
    c += stamp(True)
    if opt.jit_every:
        A(f"s_lshl_b32 s3, s55, 2")
        A(f"s_add_u32 s3, s3, s{S_W}")
        A(f"s_and_b32 s3, s3, 63")
        A(f"s_lshl_b32 s3, s3, 7")
        V(f"v_mov_b32 v{V_JIT}, s3", [], R("v", V_JIT))
        for k in range(opt.jit_first): c += jit_ops()
    V(f"v_and_b32 v{T+2}, 2, v{T+6}", R("v", T+6), R("v", T+2))
    V(f"v_lshlrev_b32 v{T+2}, 1, v{T+2}", R("v", T+2), R("v", T+2))
    V(f"v_xor_b32 v{T+2}, v{T+2}, v{T+5}", R("v", T+2) + R("v", T+5), R("v", T+2))
    V(f"v_and_b32 v{T+5}, 4, v{T+6}", R("v", T+6), R("v", T+5))
    V(f"v_add_u32 v{T+5}, v{T+5}, v{T+6}", R("v", T+5, 2), R("v", T+5))
    V(f"v_lshlrev_b32 v{T+5}, 8, v{T+5}", R("v", T+5), R("v", T+5))
    V(f"v_lshl_add_u32 v{T+2}, v{T+2}, 4, v{T+5}", R("v", T+2) + R("v", T+5), R("v", T+2))
    V(f"v_lshl_add_u32 v{V_VOFF}, v{T}, 12, v{T+2}", R("v", T) + R("v", T+2), R("v", V_VOFF))
    assert VE == 0
    A(f"s_lshl_b32 s{S_MV}, s{S_W}, 11")
    V(f"v_and_b32 v{T+2}, 6, v{T+4}", R("v", T+4), R("v", T+2))
    V(f"v_xor_b32 v{T+2}, v{T+2}, v{T+3}", R("v", T+2) + R("v", T+3), R("v", T+2))
    V(f"v_lshlrev_b32 v{T+2}, 4, v{T+2}", R("v", T+2), R("v", T+2))
    V(f"v_lshl_add_u32 v{V_KADDR}, v{T+4}, 7, v{T+2}", R("v", T+4) + R("v", T+2), R("v", V_KADDR))
    V(f"v_xor_b32 v{V_KADDR+1}, 64, v{V_KADDR}", R("v", V_KADDR), R("v", V_KADDR+1))
    for b in range(2):
        V(f"v_add_u32 v{V_QADDR+b}, s{S_MQ}, v{V_KADDR+b}", R("v", V_KADDR+b) + R("s", S_MQ), R("v", V_QADDR+b))
        V(f"v_add_u32 v{V_RCP+b}, s{S_MQ1}, v{V_KADDR+b}", R("v", V_KADDR+b) + R("s", S_MQ1), R("v", V_RCP+b))
        V(f"v_add_u32 v{V_RCP+2+b}, s{S_MK}, v{V_KADDR+b}", R("v", V_KADDR+b) + R("s", S_MK), R("v", V_RCP+2+b))
        V(f"v_add_u32 v{V_KADDR+b}, {KB}, v{V_KADDR+b}", R("v", V_KADDR+b), R("v", V_KADDR+b))
    V(f"v_and_b32 v{T+2}, 1, v{T+3}", R("v", T+3), R("v", T+2))
    V(f"v_mul_u32_u24 v{T+2}, {VPAR}, v{T+2}", R("v", T+2), R("v", T+2))
    V(f"v_lshrrev_b32 v{T+6}, 1, v{T+3}", R("v", T+3), R("v", T+6))
    V(f"v_lshl_add_u32 v{T+2}, v{T+6}, 9, v{T+2}", R("v", T+6) + R("v", T+2), R("v", T+2))
    V(f"v_bfe_u32 v{T+6}, v{L}, 2, 2", R("v", L), R("v", T+6))
    V(f"v_lshl_add_u32 v{T+2}, v{T+6}, 7, v{T+2}", R("v", T+6) + R("v", T+2), R("v", T+2))
    V(f"v_and_b32 v{T+5}, 3, v{L}", R("v", L), R("v", T+5))
    V(f"v_lshl_add_u32 v{T+2}, v{T+5}, 4, v{T+2}", R("v", T+5) + R("v", T+2), R("v", T+2))
    V(f"v_and_b32 v{T+6}, 2, v{T+6}", R("v", T+6), R("v", T+6))
    V(f"v_lshlrev_b32 v{T+6}, 5, v{T+6}", R("v", T+6), R("v", T+6))
    V(f"v_add_u32 v{V_VADDR}, v{T+2}, v{T+6}", R("v", T+2) + R("v", T+6), R("v", V_VADDR))
    V(f"v_xor_b32 v{T+6}, 64, v{T+6}", R("v", T+6), R("v", T+6))
    V(f"v_add_u32 v{V_VADDR+1}, v{T+2}, v{T+6}", R("v", T+2) + R("v", T+6), R("v", V_VADDR+1))
    V(f"v_and_b32 v{T+2}, 1, v{L}", R("v", L), R("v", T+2))
    V(f"v_mul_u32_u24 v{T+2}, 0xaaaa, v{T+2}", R("v", T+2), R("v", T+2))
    V(f"v_add_u32 v{T+2}, 0x4444, v{T+2}", R("v", T+2), R("v", T+2))
    V(f"v_lshl_add_u32 v{V_IDX}, v{T+2}, 16, v{T+2}", R("v", T+2), R("v", V_IDX))
    V(f"v_mov_b32 v{T+2}, 0x3f803f80", [], R("v", T+2))
    for j in range(4): V(f"v_accvgpr_write_b32 a{A_ONE+j}, v{T+2}", R("v", T+2), R("a", A_ONE+j))
    for j in range(16): V(f"v_accvgpr_write_b32 a{A_L+j}, 0", [], R("a", A_L+j))
    if opt.full_line:
        V(f"v_and_b32 v{T+2}, 8, v{L}", R("v", L), R("v", T+2))
        V(f"v_mul_u32_u24 v{T+2}, 248, v{T+2}", R("v", T+2), R("v", T+2))
        V(f"v_sub_u32 v{V_OOFF2}, v{V_OOFF}, v{T+2}", R("v", V_OOFF) + R("v", T+2), R("v", V_OOFF2))
        A(f"s_mov_b32 s{S_LMASK}, 0x00ff00ff")
        A(f"s_mov_b32 s{S_LMASK+1}, 0x00ff00ff")
    bias(0, "s53")
    if getattr(opt, "wb", 0): A(f"s_add_u32 s{S_WB}, s55, s{S_W}")
    A(f"s_mov_b32 s{S_C}, {CSCALE:#x}")
    A(f"s_mov_b32 s{S_C+1}, {CSCALE:#x}")
    A(f"s_mov_b32 s{S_THR}, {0 if opt.force_slow else THR:#x}")
    for j in range(6): A(f"s_mov_b32 s{S_FLAG+j}, 0")
    c += stamp(True)
    if opt.stubs:
        for rd in range(opt.stub_n0): c.append(I(f"STUB_CALLS{rd}", "label"))
    if not opt.q2_late:
        for t in range(4):
            m, d = qp_dma(2, t); c += [m, nop(1), d]
    c += stamp(True)
    late_setup.clear()
    n0 = len(c); blk(1); blk(2); late_setup.extend(c[n0:]); del c[n0:]
    if opt.stubs:
        c.append(I("s_branch L_main", "branch"))
        c.append(I(".p2align 12", "label"))
        c.append(I("L_main:", "label"))
    return c

def flat(ops):
    out = []
    for o in ops:
        out.append(nop(2) if o == "gap2" else o)
    return out

class Tile(list): pass
def issue_tile(kind, Tt):
    c = Tile(v_soff(Tt) if kind == "V" else k_soff(Tt)); c.n = len(c)
    for t in range(4): c += list((v_dma if kind == "V" else k_dma)(Tt, t))
    return c

def weave(ops, pairs, every, start=0):
    out = []; pairs = list(pairs)
    for k, o in enumerate(ops):
        if pairs and k >= start and (k - start) % every == 0:
            p = pairs.pop(0); out += p[:-1] + [o, p[-1]]
        else: out.append(o)
    assert not pairs
    return out

def prologue():
    c = []
    KT = A_Q[1]
    X = lambda qb, kb: V_O + 64 + 16*qb + 4*kb
    def chain(qb, kb):
        return [mfma("v", X(qb, kb), "a", KT + 16*kb + 4*t, "a", q_reg(0, qb, t), (("0" if kb == 0 else V_NEGM + 4*qb) if t == 0 else None)) for t in range(4)]
    def soft(qb, kb):
        e, cv = soft_ops(X(qb, kb), p_reg(0, qb, kb >> 1) + 2*(kb & 1)); return e + cv
    def B(qb): return [o for t in range(4) for o in prescale_ops(V_O + 16*qb + 4*t, q_reg(0, qb, t), True)]
    def D(qb): return [o for o in max_ops(X(qb, 0), qb, V_S) if not isinstance(o, str)]
    def dep(lst, op):
        for x in lst: x.after.append(op)
        return lst
    def paced(tile, anchors):
        rest = tile[tile.n:]
        for k in range(4): dep(rest[2*k:2*k+2], anchors[k])
        return tile
    ch = lambda qb: [x for kb in (1, 2, 3) for x in chain(qb, kb)]
    b0, b1, b2, b3 = B(0), B(1), B(2), B(3)
    c += stamp(True) + [wait(vm="auto", need=[("P", 0)])] + stamp(True) + [qp_read(0, t) for t in (0, 1)]
    c += [wait(vm="auto", need=[("P", 1)])] + [qp_read(0, t) for t in (2, 3)] + [wait(lg="auto")]
    if opt.q2_late:
        b0w = weave(b0[:40], [list(qp_dma(2, t)) for t in range(4)], 9, 4) + [wait(lg="auto")] + weave(b0[40:], [list(qp_dma(3, t)) for t in range(4)], 9, 4)
        c += b0w
    else:
        b0w = weave(b0, [list(qp_dma(3, t)) for t in range(4)], 16, 10)
        c += b0w[:44] + [wait(lg="auto")] + b0w[44:]
    c += stamp(True)
    if opt.stubs:
        for rd in range(opt.stub_n1): c.append(I(f"STUB_CALLS{opt.stub_n0 + rd}", "label"))
    c += stamp(True)
    c += [wait(vm="auto", need=[("K", 0)]), barrier()]
    c += stamp(True)
    c += [k_read(0, kb, t, dest=KT + 16*kb + 4*t) for kb in range(4) for t in range(4)]
    if not opt.k1_late: c += listsched(issue_tile("K", 1)[:-4])[0]
    c.append(wait(lg="auto"))
    s0 = soft(0, 0) + soft(0, 1) + soft(0, 2) + soft(0, 3)
    s1 = soft(1, 0) + soft(1, 1) + soft(1, 2) + soft(1, 3)
    s2 = soft(2, 0) + soft(2, 1) + soft(2, 2) + soft(2, 3)
    def fetch(qb, anchor, anchor2, first):
        w = wait(lg="auto"); dep(first, w)
        return dep([wait(vm="auto", need=[("P", 2*qb), ("P", 2*qb + 1)])], anchor) + [qp_read(qb, t) for t in range(4)] + dep([w], anchor2)
    c3 = ch(3); c0 = ch(0)
    k1 = issue_tile("K", 1)[-4:]
    wk = wait(lg=0); d0 = D(0); c00 = chain(0, 0)
    seq = c00 + dep([wk], c00[3]) + d0 + dep(c0[:1], wk) + c0[1:]
    if not opt.k1_late: seq += dep(k1[:2], c0[0]) + dep(k1[2:], c0[4])
    seq += s0[:12] + fetch(1, c0[8], s0[11], b1[:8]) + b1
    if opt.k1_late: seq += paced(issue_tile("K", 1), [b1[20], b1[40], b1[60], b1[79]])
    if opt.pro_order == 0:
        seq += chain(1, 0) + s0[12:] + fetch(2, b1[70], s0[16], b2[:8]) + D(1) + ch(1)
        seq += b2 + paced(issue_tile("V", 0), [b2[0], b2[20], b2[40], b2[60]])
        seq += chain(2, 0) + s1 + fetch(3, b2[70], s1[8], b3[:8]) + D(2) + ch(2)
        seq += b3
    else:
        h = opt.pro_order
        seq += chain(1, 0) + s0[12:] + D(1) + ch(1) + s1[:h] + fetch(2, s1[h-7], s1[h-1], b2[:8])
        seq += b2 + paced(issue_tile("V", 0), [b2[0], b2[20], b2[40], b2[60]])
        seq += chain(2, 0) + s1[h:] + D(2) + ch(2) + s2[:h] + fetch(3, s2[h-7], s2[h-1], b3[:8])
        seq += b3
        s2 = s2[h:]
    if getattr(opt, "first_k", 2) == 3: seq += paced(issue_tile("K", 2), [b3[0], b3[12], b3[24], b3[36]])
    if getattr(opt, "first_v", 1) == 2: seq += paced(issue_tile("V", 1), [b3[48], b3[60], b3[70], b3[79]])
    seq += chain(3, 0) + s2 + D(3) + c3
    seq += dep([wait(vm="auto", lg=0, need=[("K", 1), ("V", 0)]), barrier()], c3[0])
    seq += [v_read(0, n >> 2, (n >> 1) & 1, n & 1) for n in range(4)] + [k_read(1, 0, t) for t in range(4)]
    seq += [v_read(0, n >> 2, (n >> 1) & 1, n & 1) for n in range(4, 10)] + [k_read(1, 1, 0)]
    seq += soft(3, 0) + soft(3, 1) + soft(3, 2) + soft(3, 3)
    p2, t2 = listsched(order_fix(seq), [x for x in c[-30:] if x.kind != "label"])
    if opt.stamps:
        out = []
        for x in p2:
            if x.kind == "wait" and x.vm is not None: out += stamp(True) + [x] + stamp(True)
            else: out.append(x)
        p2 = out
    c += p2
    c.append(wait(lg="auto"))
    return c

def order_fix(seq):
    seen = set()
    for x in seq:
        assert all(id(a) in seen for a in x.after), x
        seen.add(id(x))
    return seq

VALK = ("valu", "trans", "pk", "perm")
def edge_dist(w, x, rg, kind):
    if kind == "raw":
        if w.kind in ("mfma", "smfmac"):
            need = 8 if w.kind == "mfma" else 12
            if x.kind in ("mfma", "smfmac") and rg in x.cread and rg not in x.rd:
                return 0 if (x.cread == w.wr and x.kind == w.kind) else need - 2
            return need
        if w.kind in VALK:
            if rg[0] == "s": return 5 if x.kind in ("dma", "vload", "vstore") else (2 if x.kind in VALK else 0)
            if x.kind in ("mfma", "smfmac", "perm"): return 2
            if w.kind == "trans" and x.kind in VALK and x.kind != "trans": return 1
        if w.kind == "salu" and rg[0] == "m" and x.kind == "dma": return 1
        return 0
    if kind == "waw":
        if w.kind in ("mfma", "smfmac"):
            need = 8 if w.kind == "mfma" else 12
            if x.kind in ("mfma", "smfmac"): return 0 if x.wr == w.wr else need - 2
            return need
        return 0
    if rg in w.cread and x.kind in VALK: return 3 if w.kind == "mfma" else 7
    if w.kind == "vstore" and rg in w.rd[:4]: return 2
    return 0

def listsched(ops, pre=()):
    allops = list(pre) + list(ops); n0 = len(pre); n = len(allops)
    deps = [dict() for _ in range(n)]
    lw = {}; lr = defaultdict(list); lastmem = None
    for k, x in enumerate(allops):
        def add(p, d): deps[k][p] = max(deps[k].get(p, 0), d)
        for rg in x.rd + x.cread:
            if rg in lw: add(lw[rg], edge_dist(allops[lw[rg]], x, rg, "raw"))
        for rg in x.wr:
            if rg in lw: add(lw[rg], edge_dist(allops[lw[rg]], x, rg, "waw"))
            for p in lr[rg]:
                if p != k: add(p, edge_dist(allops[p], x, rg, "war"))
        if x.kind in ("dma", "vload", "vstore", "ds", "wait", "barrier", "smem"):
            if lastmem is not None: add(lastmem, 0)
            lastmem = k
        for a in x.after: add(next(i for i, y in enumerate(allops) if y is a), 0)
        for rg in x.wr: lw[rg] = k; lr[rg] = []
        for rg in x.rd + x.cread: lr[rg].append(k)
    pos = {}; cur = 0
    for k in range(n0): pos[k] = cur; cur += allops[k].nops
    out = []; left = list(range(n0, n)); t = 0; tm = -100; prev = None
    cost = {"mfma": 8, "smfmac": 8, "trans": 8, "vstore": 12}
    while left:
        ready = [k for k in left if all(p in pos and cur - pos[p] - allops[p].nops >= d for p, d in deps[k].items())]
        pick = None
        if ready:
            mf = [k for k in ready if allops[k].kind in ("mfma", "smfmac")]
            ot = [k for k in ready if k not in mf]
            aftermf = prev is not None and prev.kind in ("mfma", "smfmac", "salu", "wait", "ds", "dma", "vstore", "barrier")
            mem = [k for k in ot if allops[k].kind in ("ds", "dma", "vstore", "vload")]
            sc = [k for k in ot if allops[k].kind in ("salu", "wait", "barrier", "smem")]
            va = [k for k in ot if k not in mem and k not in sc]
            vnp = [k for k in va if allops[k].kind != "pk" or t - tm >= 24]
            if mf and (t - tm >= 16 or not (vnp or mem or sc)): pick = mf[0]
            elif sc: pick = sc[0]
            elif mem and (aftermf or allops[mem[0]].after or not mf and not any(allops[k].kind in ("mfma", "smfmac") for k in left) or not vnp): pick = mem[0]
            elif vnp: pick = vnp[0]
            elif va: pick = va[0]
            else: pick = ready[0]
        if pick is None:
            x = nop(1); out.append(x); cur += 1; t += 4; prev = x; continue
        x = allops[pick]
        if x.kind in ("mfma", "smfmac"): t = max(t, tm + 16); tm = t
        if x.kind == "pk": t = max(t, tm + 24)
        pos[pick] = cur; cur += x.nops; t += cost.get(x.kind, 4)
        out.append(x); left.remove(pick); prev = x
    return out, t

COST = {"valu": 1, "trans": 2, "pk": 1, "perm": 1, "ds": 1, "dma": 1, "vstore": 3, "vload": 1}
class Gap:
    def __init__(s, m): s.m, s.shadow, s.mem, s.valu = m, None, [], []
    def load(s): return sum(COST[o.kind] for o in s.mem + s.valu)
    def emit(s):
        return [s.m] + ([s.shadow] if s.shadow else []) + s.mem + s.valu

NT = lambda: 8 * opt.nblocks

class Sched:
    def __init__(s):
        s.groups = []
        s.cur = defaultdict(int)
        s.gaps = []
        s.gstart = []
    def add_group(s, gaps):
        s.gstart.append(len(s.gaps)); s.groups.append(gaps); s.gaps += gaps
    def rng(s, G): return s.gstart[G], s.gstart[G] + len(s.groups[G])
    def put_valu(s, stream, G, op, mingap=0, fat=False):
        a, b = s.rng(G); lo = max(a + mingap, s.cur[stream])
        while lo >= b:
            G += 1; a, b = s.rng(G)
        pick = None
        if not fat:
            for g in range(lo, b):
                if s.gaps[g].load() + COST[op.kind] <= 2: pick = g; break
            if pick is None:
                pick = min(range(lo, b), key=lambda g: (s.gaps[g].load(), g))
        else: pick = lo
        s.gaps[pick].valu.append(op); s.cur[stream] = pick
        return pick
    def put_mem(s, stream, G, op, allowed, pre=None):
        a, b = s.rng(G)
        for gi, si in allowed:
            g = a + gi
            if g >= b or g <= s.cur[stream]: continue
            if any(o.kind in ("dma", "vstore") for o in s.gaps[g].mem): continue
            if pre is not None:
                sg = a + si
                if s.gaps[sg].shadow is not None: continue
                s.gaps[sg].shadow = pre
            s.gaps[g].mem.append(op); s.cur[stream] = g
            return g
        raise AssertionError(("no mem slot", stream, G, op))
    def put_shadow(s, G, op, lo=0, hi=None, stream=None):
        a, b = s.rng(G)
        start = a + lo
        if stream is not None: start = max(start, s.cur[stream] + 1)
        end = b if hi is None else a + hi
        g = start
        while True:
            if g >= end and hi is not None: raise AssertionError(("no shadow", G, op))
            if s.gaps[g].shadow is None and not (g + 1 in s.gstart_set or g + 1 == len(s.gaps)):
                s.gaps[g].shadow = op
                if stream is not None: s.cur[stream] = g
                return g
            g += 1

def fatten(S, G):
    g4, g5 = S.groups[G][4], S.groups[G][5]
    if [o.kind for o in g4.valu] == ["trans"] and [o.kind for o in g5.valu] == ["trans"] and not g4.mem and not g5.mem:
        g4.valu.append(g5.valu.pop()); return True
    return False

def spread(n, lo, hi):
    return [lo + (k * (hi - lo + 1)) // n for k in range(n)]

def body():
    nt = NT(); nb = opt.nblocks
    S = Sched()
    for T in range(nt):
        r, j = T // 8, T % 8
        hasqk = T + 1 < nt
        smf = {1: [0, 1], 2: [2, 3]} if j == 7 else {2: [0], 4: [1], 6: [2], 8: [3]}
        for i in range(16):
            gaps = []
            if hasqk:
                T1 = T + 1; r1 = T1 // 8; kb, qb = i >> 2, i & 3
                special = (T1 % 8 == 0 and kb == 0)
                d = p_reg(T1, qb, 1) if special else V_S + 4*(i & 1)
                for t in range(4):
                    cc = None if t else ("0" if special else V_NEGM + 4*qb)
                    gaps.append(Gap(mfma("v", d, "a", k_reg(kb, t), "a", q_reg(r1, qb, t), cc)))
            db = i >> 1
            for qb in (2*(i & 1), 2*(i & 1) + 1):
                for ks in range(2):
                    gaps.append(Gap(mfma("v", o_reg(db, qb), "a", v_reg(db, ks), "v", p_reg(T, qb, ks), "0" if (j == 0 and ks == 0) else None)))
            for qb in smf.get(i, []):
                gaps.append(Gap(smfmac(qb, p_reg(T, qb, 0))))
            S.add_group(gaps)
    S.gstart_set = set(S.gstart)
    for T in range(nt):
        hasqk = T + 1 < nt
        for i in range(16):
            G = 16*T + i; gp = S.groups[G]
            for n in (2*G + 10, 2*G + 11):
                Tv = n // 32
                if Tv < nt:
                    rem = n % 32
                    gp[0].mem.append(v_read(Tv, rem >> 2, (rem >> 1) & 1, rem & 1))
            kk = ((i + 1) >> 2) + 1; tt = (i + 1) & 3
            Tk = T + 1 if kk < 4 else T + 2
            if Tk < nt: gp[1].mem.append(k_read(Tk, kk & 3, tt))
            if i == 0: Tu, iu = T, 15
            else: Tu, iu = T + 1, i - 1
            if Tu < nt and not (T == 0 and i == 0) and not (Tu % 8 == 0 and iu < 4):
                kb, qb = iu >> 2, iu & 3
                e, cv = soft_ops(V_S + 4*(iu & 1), p_reg(Tu, qb, kb >> 1) + 2*(kb & 1))
                if hasqk:
                    for k in range(4): gp[2 + k].valu.append(e[k])
                    gp[6].valu.append(cv[0]); gp[7].valu.append(cv[1])
                else:
                    gp[0].valu += e[:1]; gp[1].valu += e[1:3]; gp[2].valu += e[3:] + cv[:1]; gp[3].valu += cv[1:]
            need = None; lg = "auto"; vm = None
            if i == 10:
                need = [x for x in (("K", T + 2), ("V", T + 1)) if x[1] < nt]
                vm = "auto" if need else None; lg = 0
            gp[-1].shadow = wait(vm=vm, lg=lg, need=need)
            if i == 11: gp[0].shadow = barrier()
    DM = [(1, 1), (6, 5)]
    for T in range(1, nt):
        lst = []
        if T + 5 < nt: lst += [k_dma(T + 5, t) for t in range(4)]; S.put_shadow(16*T + 10, k_soff(T + 5), 2, 6)
        if T + 4 < nt: lst += [v_dma(T + 4, u) for u in range(4)]; S.put_shadow(16*T + 10, v_soff(T + 4), 2, 6)
        for k, (m, d) in enumerate(lst):
            S.put_mem("kv", 16*T + 11 + k // 2, d, [DM[k & 1]], pre=m)
    extra = [("V", 1, 0), ("K", 2, 2), ("V", 2, 5), ("K", 3, 7), ("K", 4, 11), ("V", 3, 13), ("K", 5, 18), ("V", 4, 20)]
    for kind, Tt, G in extra:
        so = k_soff(Tt) if kind == "K" else v_soff(Tt)
        if G == 0: S.groups[0][0].shadow = so
        else: S.put_shadow(G - 1, so, 2, 5)
        for t in range(4):
            m, d = (k_dma if kind == "K" else v_dma)(Tt, t)
            S.put_mem("kv0", G + t // 2, d, [DM[t & 1]], pre=m)
    for o in late_setup: S.put_shadow(0, o, 0, stream="late")
    assert S.cur["late"] < S.gstart[15]
    if nb > 1:
        for k, G in enumerate((15, 15, 16, 16, 17, 17, 22)):
            m, d = q_dma(16 + k); S.put_mem("qd", G, d, DM, pre=m)
    if opt.jit_every:
        for k in range(opt.jit_first, 8):
            G = int((k - opt.jit_first) * opt.jit_every * 1.6) + opt.jit_g0
            while G % 16 in (10, 11, 12, 13, 14, 15, 0, 1): G += 1
            ld, ad = jit_ops()
            g = S.put_mem("jit", G, ld, [(6, None), (1, None), (7, None)])
            S.cur["jit"] = g; S.put_valu("jit", G, ad)
    for r in range(nb - 1):
        T = 8*r + 7
        for qb in range(4):
            G = 16*T + 1 + qb
            x = p_reg(T + 1, qb, 1)
            e, cv = soft_ops(x, p_reg(T + 1, qb, 0))
            ops = max_ops(x, qb) + e + ["gap1"] + cv
            a, b = S.rng(G)
            pos = [1, 1, 2, 2, None, 3, 3, 3, None, 4, 4, 4, 5, 5, 5, 5, 5, 6, 6, 6, 6, 7, None, 7, 7]
            pos = [1, 1, 2, None, 3, 3, 3, None, 4, 4, 4, 4, 4, 5, 5, 5, 5, 5, 6, 6, 6, None, 7, 7]
            assert len(pos) == len(ops), (len(pos), len(ops))
            for p_, o in zip(pos, ops):
                if isinstance(o, str): continue
                gp = S.groups[G][p_]
                if o.kind == "perm" and gp.shadow is None: gp.shadow = nop(1)
                gp.valu.append(o)
    tail = []; stores = []
    for r in range(nb):
        T = 8*r + 7; last = (r == nb - 1)
        for qb in range(4):
            G = 16*T + 3 + qb//2
            for o in l_ops(r, qb, not last):
                if o.kind == "salu": S.put_shadow(G + 2, o, stream="lor")
                else: S.put_valu("l", G, o)
        items = [(u, qb) for u in range(4) for qb in range(4)]
        avail = {it: 16*T + max(4*it[0] + 3 + (it[1] >> 1), 5 + (it[1] >> 1)) for it in items}
        plan = []
        if last:
            for u, qb in items: plan.append(((u, qb), 16*T + 4*u + 5 + qb, 16*T + 4*u + 6 + qb, None))
        else:
            dead = {it: 16*T + 16 + 4*it[0] + (it[1] >> 1) for it in items}
            slots = [16*T + opt.st_g0 + (opt.st_sp * n) // 10 for n in range(16)]
            left = list(items); direct = []
            for sl in slots:
                cand = [it for it in left if avail[it] + 1 <= sl and sl < dead[it]]
                if not cand: continue
                it = min(cand, key=lambda x: dead[x]); left.remove(it); direct.append((it, sl))
            used = [sl for _, sl in direct]
            rest = [sl for sl in slots if sl not in used]
            assert all(sl > max(used) for sl in rest), (slots, used)
            for it, sl in direct: plan.append((it, sl - 1, sl, None))
            busy = defaultdict(int)
            for it, sl in direct: busy[sl - 1] += 1
            for n, (it, sl) in enumerate(zip(left, rest)):
                g = min(range(avail[it], dead[it]), key=lambda x: (busy[x], -x)); busy[g] += 1
                plan.append((it, g, sl, A_PARK + 4*n))
            assert len(left) <= 10
        for (u, qb), G, Gs, park in sorted(plan, key=lambda x: x[1]):
            mul, cv, st = epi_ops(r, u, qb, park)
            if G >= 16*nt:
                tail.append((mul, cv, st)); continue
            ng = len(S.groups[G])
            if opt.pk_epi and ng >= 8 and fatten(S, G):
                S.groups[G][4].valu += mul
                S.cur["epi"] = S.gstart[G] + 5
                for o in cv: S.put_valu("epi", G, o)
                assert park is not None or S.cur["epi"] < S.gstart[G + 1]
                assert last or S.cur["epi"] < S.gstart[dead[(u, qb)]] + 4
            elif opt.pk_epi:
                S.groups[G][ng - 2].valu += mul
                S.groups[G][ng - 1].valu += cv
            else:
                S.cur["epi"] = 0
                for o in mul + cv: S.put_valu("epi", G, o)
            if Gs >= 16*nt: tail.append(([], [], st)); continue
            stores.append((Gs, st))
    for Gs, st in sorted(stores, key=lambda x: x[0]):
        nn = len(S.groups[Gs])
        S.put_mem("epist", Gs, st, [(7, None), (6, None), (1, None), (2, None)] if nn >= 8 else [(1, None), (2, None), (3, None)])
    for r in range(nb - 1):
        rd = spread(16, 16*(8*r + 1) + (10 if r == 0 else 0), 16*(8*r + 6) + 8)
        for k in range(16):
            kap = 16*(r + 1) + k; G = rd[k]
            S.put_shadow(G - 1, wait(vm="auto", need=[("Q", kap)]), 2, 7)
            S.groups[G][1].mem.append(q_read(kap))
            nxt = rd[k + 1] if k < 15 else G + 6
            ops = prescale_ops(V_RAW + 4*(kap & 1), q_reg(r + 1, k >> 2, k & 3), opt.pk_pre)
            last_g = min(nxt, G + 6)
            if opt.pk_pre:
                gf = G + 1 + (last_g - G) * 8 // 16
                for o, g in zip(ops[:8], spread(8, G + 1, max(G + 1, gf - 1))): S.put_valu("pre", g, o)
                while S.cur["pre"] >= S.gstart[gf] + 4 or not fatten(S, gf): gf += 1
                S.groups[gf][4].valu += ops[8:12]; S.cur["pre"] = S.gstart[gf] + 5
                for o, g in zip(ops[12:], [gf, gf] + spread(6, gf, max(gf, last_g))): S.put_valu("pre", g, o)
            else:
                for o, g in zip(ops, spread(len(ops), G + 1, last_g)): S.put_valu("pre", g, o)
            k2 = kap + NQS
            if k2 < 16*nb:
                g = G + 2
                while True:
                    if g % 16 in (15, 0, 1):
                        try:
                            m, d = q_dma(k2)
                            S.put_mem("qd", g, d, DM, pre=m); break
                        except AssertionError: pass
                    g += 1
    c = []
    for G, gp in enumerate(S.groups):
        if opt.sgrp:
            gs = [int(x) for x in opt.sgrp.split('_')]
            if G in gs: c += stamp()
            for g in gp:
                e = g.emit()
                if G in gs and g.shadow is not None and g.shadow.kind == "wait" and g.shadow.vm is not None:
                    e = e[:1] + stamp() + e[1:2] + stamp() + e[2:]
                c += e
            continue
        if G % 16 == 0 and ((G // 16) in [int(x) for x in opt.sper.split('_')] if opt.sper else (G // 16) % 8 in (0, 1, 7)): c += stamp()
        for g in gp: c += g.emit()
    c += stamp()
    c.append(nop(8))
    for mul, cv, st in tail: c += mul + cv + [st]
    c += stamp()
    per = [sum(max(16, 8 + 4*g.load()) for gp in S.groups[16*T:16*T+16] for g in gp) for T in range(nt)]
    stats = dict(per=per, gaps=len(S.gaps), slots=sum(g.load() for g in S.gaps),
                 est_cycles=sum(max(16, 8 + 4*g.load()) for g in S.gaps),
                 under=sum(max(0, 2 - g.load()) for g in S.gaps), over=sum(max(0, g.load() - 2) for g in S.gaps))
    return c, stats

def resolve(code):
    n = len(code)
    isds = [x.kind == "ds" for x in code]
    isvm = [x.kind in ("dma", "vload", "vstore") for x in code]
    lgw = [k for k, x in enumerate(code) if x.kind == "wait" and x.lg is not None]
    vmw = [k for k, x in enumerate(code) if x.kind == "wait" and x.vm is not None]
    def touched(x): return x.rd + x.wr + x.cread
    lastload = {}
    writer_at = [None]*n
    for k, x in enumerate(code):
        dep = set()
        for rg in touched(x):
            if rg in lastload: dep.add(lastload[rg])
        writer_at[k] = dep
        for rg in x.wr: lastload.pop(rg, None)
        if x.kind in ("ds", "vload"):
            for rg in x.wr: lastload[rg] = k
    for lst, flag, attr, kind in ((lgw, isds, "lg", "ds"), (vmw, isvm, "vm", "vload")):
        for a, w in enumerate(lst):
            x = code[w]
            if getattr(x, attr) != "auto": continue
            end = lst[a + 1] if a + 1 < len(lst) else n
            young = -1
            for k in range(w + 1, end):
                for p in writer_at[k]:
                    if code[p].kind == kind and p < w: young = max(young, p)
            if attr == "vm" and x.need:
                for k in range(w):
                    if code[k].kind == "dma" and code[k].tag in x.need: young = max(young, k)
            if young < 0: setattr(x, attr, None)
            else:
                cnt = sum(flag[young + 1:w])
                setattr(x, attr, min(cnt, 15 if attr == "lg" else 63))
    for x in code:
        if x.kind == "wait":
            parts = []
            if x.vm is not None: parts.append(f"vmcnt({x.vm})")
            if x.lg is not None: parts.append(f"lgkmcnt({x.lg})")
            x.text = "s_waitcnt " + " ".join(parts) if parts else None
    return [x for x in code if x.text is not None]

def check(code):
    errs = []
    pos = 0
    P = []
    for x in code:
        P.append(pos); pos += 0 if x.kind == "label" else x.nops
    def dist(a, b): return P[b] - P[a] - code[a].nops
    lastw = {}; lastc = {}; laststore = {}
    dsq = []; vmq = []; done = set()
    smem_pending = set()
    dma_by_tag = defaultdict(list); read_by_tag = defaultdict(list)
    done_at = {}; barriers = []
    def slot_of(tag):
        if tag[0] == "P": return [("Q", 0), ("Q", 1), tag, ("V", 3), tag, ("K", 2), tag, ("K", 3)][tag[1]]
        return (tag[0], tag[1] & 3) if tag[0] in "KV" else ("Q", tag[1] % NQS)
    shared = lambda tag: tag[0] in "KV" or tag == ("P", 3)
    slot_last = {}
    VAL = ("valu", "trans", "pk", "perm")
    for k, x in enumerate(code):
        if x.kind == "wait":
            if x.lg is not None:
                while len(dsq) > x.lg: p = dsq.pop(0); done.add(p); done_at[p] = k
                if x.lg == 0: smem_pending.clear()
            if x.vm is not None:
                while len(vmq) > x.vm: p = vmq.pop(0); done.add(p); done_at[p] = k
            continue
        if x.kind == "barrier": barriers.append(k); continue
        def E(msg, p): errs.append(f"[{k}] {x.text}  <- [{p}] {code[p].text}: {msg}")
        for rg in x.rd + x.cread + x.wr:
            p = lastw.get(rg)
            if p is None: continue
            w = code[p]; d = dist(p, k)
            isread = rg in x.rd or rg in x.cread
            if w.kind in ("ds", "vload"):
                if p not in done: E("load not waited", p)
            elif w.kind in ("mfma", "smfmac"):
                need = 8 if w.kind == "mfma" else 12
                if x.kind in ("mfma", "smfmac"):
                    if rg in x.rd:
                        if d < need: E("mfma D->A/B", p)
                    elif rg in x.cread:
                        if not (x.cread == w.wr and x.kind == w.kind) and d < need - 2: E("mfma D->C overlap", p)
                    else:
                        if d < need - 2 and x.wr != w.wr: E("mfma D->D", p)
                elif d < need: E("mfma D->valu/mem", p)
            elif w.kind in VAL:
                if rg[0] in "va":
                    if x.kind in ("mfma", "smfmac") and isread and d < 2: E("valu->mfma", p)
                    if x.kind == "perm" and isread and d < 2: E("valu->permlane", p)
                    if w.kind == "trans" and x.kind in VAL and x.kind != "trans" and isread and d < 1: E("trans->valu", p)
                    if "readfirstlane" in x.text and d < 1: E("valu->readfirstlane", p)
                if rg[0] == "s":
                    if x.kind in ("dma", "vload", "vstore") and d < 5: E("valu sgpr->vmem", p)
                    if x.kind in VAL and isread and d < 2: E("valu sgpr->valu", p)
            elif w.kind == "salu":
                if rg[0] == "m" and x.kind == "dma" and d < 1: E("m0->dma", p)
        for rg in x.wr:
            p = lastc.get(rg)
            if p is not None and x.kind in VAL and dist(p, k) < (3 if code[p].kind == "mfma" else 7): E("mfma C read -> valu write", p)
            p = laststore.get(rg)
            if p is not None and dist(p, k) < 2: E("store data WAR", p)
        if x.kind == "ds" and x.tag:
            ds = dma_by_tag[x.tag]
            if len(ds) != (2 if x.tag[0] in "QP" else 4): errs.append(f"[{k}] {x.text}: tile {x.tag} has {len(ds)} dma")
            for p in ds:
                if p not in done: E("dma not waited", p)
                elif x.tag[0] in "KV" and not any(done_at[p] < b < k for b in barriers): E("no barrier after dma wait", p)
            if slot_last.get(slot_of(x.tag)) != x.tag: errs.append(f"[{k}] {x.text}: slot holds {slot_last.get(slot_of(x.tag))} not {x.tag}")
            read_by_tag[x.tag].append(k)
        if x.kind == "dma":
            old = slot_last.get(slot_of(x.tag))
            if old is not None and old != x.tag:
                rs = read_by_tag[old]
                exp = {"K": 16, "V": 32, "Q": 2, "P": 2}[old[0]]
                if len(rs) != exp: errs.append(f"[{k}] {x.text}: overwrites {old} after {len(rs)} reads")
                for p in rs:
                    if p not in done: E("slot WAR: read not waited", p)
                    elif shared(old) and not any(done_at[p] < b < k for b in barriers): E("slot WAR: no barrier", p)
            slot_last[slot_of(x.tag)] = x.tag
            dma_by_tag[x.tag].append(k)
        if x.kind == "ds": dsq.append(k)
        if x.kind in ("dma", "vload", "vstore"):
            vmq.append(k)
            if len(vmq) > 63: errs.append(f"[{k}] more than 63 vmem in flight")
        for rg in x.wr: lastw[rg] = k
        for rg in x.cread: lastc[rg] = k
        if x.kind == "vstore":
            for rg in x.rd[:4]: laststore[rg] = k
    return errs

def slow_path():
    L = []
    A = L.append
    Q, K, SS, P, M, T, LA, VF = 128, 144, 176, 184, 188, 189, 192, 64
    VK, VL, VS, MC = 200, 201, 202, 203
    A("s_or_b64 s[54:55], s[46:47], s[48:49]")
    A("s_or_b64 s[54:55], s[54:55], s[50:51]")
    A("s_cmp_eq_u64 s[54:55], 0")
    A("s_cbranch_scc1 L_end")
    A("s_waitcnt vmcnt(0) lgkmcnt(0)")
    A(f"s_lshl_b32 s3, s{S_W}, 12")
    A(f"v_subrev_u32 v{VK}, s3, v{V_OOFF}")
    A(f"v_mbcnt_lo_u32_b32 v{T}, -1, 0")
    A(f"v_mbcnt_hi_u32_b32 v{T}, -1, v{T}")
    A(f"v_lshlrev_b32 v{VL}, 4, v{T}")
    A(f"v_lshrrev_b32 v{M}, 2, v{T}")
    A(f"v_lshlrev_b32 v{M}, 8, v{M}")
    A(f"v_and_b32 v{T}, 3, v{T}")
    A(f"v_lshl_add_u32 v{M}, v{T}, 4, v{M}")
    A(f"v_add_u32 v{VS}, s{S_MQ}, v{M}")
    A("s_mov_b32 s56, 0")
    A("L_s_item:")
    A("s_lshr_b32 s57, s56, 2")
    A("s_lshl_b32 s58, s57, 1")
    A("s_mov_b32 m0, s58")
    A("s_nop 1")
    A(f"s_movrels_b64 s[54:55], s[{S_FLAG}:{S_FLAG+1}]")
    A("s_cmp_eq_u64 s[54:55], 0")
    A("s_cbranch_scc1 L_s_next")
    A("s_mov_b32 m0, s56")
    A("s_nop 1")
    A(f"s_movrels_b32 s59, s{S_QO}")
    A("s_mov_b32 m0, s57")
    A("s_nop 1")
    A(f"s_movrels_b32 s60, s{S_KV}")
    for t in range(4): A(f"buffer_load_dwordx4 v[{Q+4*t}:{Q+4*t+3}], v{V_OOFF}, s[{S_Q}:{S_Q+3}], s59 offen offset:{64*t}")
    A(f"v_mov_b32 v{M}, 0xff800000")
    A("s_mov_b32 s61, s60")
    A("s_mov_b32 s63, 32")
    A("L_s_max:")
    for t in range(4): A(f"buffer_load_dwordx4 v[{K+4*t}:{K+4*t+3}], v{VK}, s[{S_K}:{S_K+3}], s61 offen offset:{64*t}")
    A("s_waitcnt vmcnt(0)")
    for t in range(4): A(f"v_mfma_f32_16x16x32_bf16 v[{SS}:{SS+3}], v[{K+4*t}:{K+4*t+3}], v[{Q+4*t}:{Q+4*t+3}], " + ("0" if t == 0 else f"v[{SS}:{SS+3}]"))
    A("s_nop 9")
    A(f"v_max3_f32 v{M}, v{M}, v{SS}, v{SS+1}")
    A(f"v_max3_f32 v{M}, v{M}, v{SS+2}, v{SS+3}")
    A("s_add_u32 s61, s61, 4096")
    A("s_sub_u32 s63, s63, 1")
    A("s_cmp_lg_u32 s63, 0")
    A("s_cbranch_scc1 L_s_max")
    for sw in ("32", "16"):
        A(f"v_mov_b32 v{T}, v{M}")
        A("s_nop 2")
        A(f"v_permlane{sw}_swap_b32 v{M}, v{T}")
        A("s_nop 1")
        A(f"v_max_f32 v{M}, v{M}, v{T}")
    A(f"v_mul_f32 v{MC}, s{S_C}, v{M}")
    for j in range(32): A(f"v_mov_b32 v{j}, 0")
    for j in range(4): A(f"v_mov_b32 v{LA+j}, 0")
    A("s_mov_b32 s61, s60")
    A("s_mov_b32 s63, 16")
    A("L_s_pv:")
    A(f"s_mov_b32 m0, s{S_MQ}")
    for h in range(2):
        A(f"s_add_u32 s3, s61, {4096*h}")
        for t in range(4): A(f"buffer_load_dwordx4 v[{K+16*h+4*t}:{K+16*h+4*t+3}], v{VK}, s[{S_K}:{S_K+3}], s3 offen offset:{64*t}")
        for t in range(4): A(f"buffer_load_dwordx4 v{VL}, s[{S_V}:{S_V+3}], s3 offen offset:{1024*t} lds")
        A("s_waitcnt vmcnt(0)")
        for db in range(8): A(f"ds_read_b64_tr_b16 v[{VF+4*db+2*h}:{VF+4*db+2*h+1}], v{VS} offset:{64*(db >> 1) + 8*(db & 1)}")
        A("s_waitcnt lgkmcnt(0)")
    for h in range(2):
        for t in range(4): A(f"v_mfma_f32_16x16x32_bf16 v[{SS+4*h}:{SS+4*h+3}], v[{K+16*h+4*t}:{K+16*h+4*t+3}], v[{Q+4*t}:{Q+4*t+3}], " + ("0" if t == 0 else f"v[{SS+4*h}:{SS+4*h+3}]"))
    A("s_nop 9")
    for j in range(8): A(f"v_fma_f32 v{SS+j}, v{SS+j}, s{S_C}, -v{MC}")
    for j in range(8): A(f"v_exp_f32 v{SS+j}, v{SS+j}")
    A("s_nop 1")
    for j in range(4): A(f"v_cvt_pk_bf16_f32 v{P+j}, v{SS+2*j}, v{SS+2*j+1}")
    A("s_nop 2")
    A(f"v_mfma_f32_16x16x32_bf16 v[{LA}:{LA+3}], a[{A_ONE}:{A_ONE+3}], v[{P}:{P+3}], v[{LA}:{LA+3}]")
    for db in range(8):
        o = 4*db
        A(f"v_mfma_f32_16x16x32_bf16 v[{o}:{o+3}], v[{VF+4*db}:{VF+4*db+3}], v[{P}:{P+3}], v[{o}:{o+3}]")
    A("s_nop 3")
    A("s_add_u32 s61, s61, 8192")
    A("s_sub_u32 s63, s63, 1")
    A("s_cmp_lg_u32 s63, 0")
    A("s_cbranch_scc1 L_s_pv")
    A("s_nop 9")
    A(f"v_rcp_f32 v{T}, v{LA}")
    A("s_nop 1")
    for j in range(32): A(f"v_mul_f32 v{j}, v{T}, v{j}")
    for u in range(4):
        for j in range(4): A(f"v_cvt_pk_bf16_f32 v{8*u+j}, v{8*u+2*j}, v{8*u+2*j+1}")
        A(f"buffer_store_dwordx4 v[{8*u}:{8*u+3}], v{V_OOFF}, s[{S_O}:{S_O+3}], s59 offen offset:{64*u}")
    A("s_waitcnt vmcnt(0)")
    A("L_s_next:")
    A("s_add_u32 s56, s56, 1")
    A(f"s_cmp_lt_u32 s56, {4*opt.nblocks}")
    A("s_cbranch_scc1 L_s_item")
    return L

def stamp_out():
    if not opt.stamps: return []
    if opt.probe >= 0:
        n = stamp_n[0]
        ins = 's_memtime' if opt.scyc else 's_memrealtime'
        if opt.pavg:
            spin = lambda n: [f"L_spin{n}:", "s_sleep 2", "s_memrealtime s[54:55]", "s_waitcnt lgkmcnt(0)", "s_sub_u32 s54, s54, s94",
                              "s_cmp_lt_u32 s54, s3", f"s_cbranch_scc1 L_spin{n}"]
            return (["s_waitcnt vmcnt(0)", f"{ins} s[{S_STAMP+2*n}:{S_STAMP+2*n+1}]", "s_load_dwordx2 s[56:57], s[0:1], 32", "s_waitcnt lgkmcnt(0)",
                    "s_mov_b32 s58, 256", "s_mov_b32 s59, 0x20000",
                    f"s_sub_u32 s3, s{S_STAMP+2*opt.probe}, s{S_STAMP+2*opt.probe0}", "v_mov_b32 v2, s3", "v_mov_b32 v1, 0",
                    "s_mov_b64 exec, 1", "buffer_atomic_add v2, v1, s[56:59], 0 offen", "s_waitcnt vmcnt(0)", "s_mov_b64 exec, -1", "s_mov_b32 s3, 10000"] + spin(0) +
                    [f"s_add_u32 s3, s2, s{S_W}", "s_cmp_lg_u32 s3, 0", "s_cbranch_scc1 L_nospin",
                     "buffer_load_dword v2, v1, s[56:59], 0 offen sc0 sc1", "s_waitcnt vmcnt(0)", "v_readfirstlane_b32 s3, v2", "s_nop 3",
                     f"s_lshr_b32 s3, s3, {11 if opt.scyc else 8}", "s_add_u32 s3, s3, 10000"] + spin(1) + ["L_nospin:"])
        return ["s_waitcnt vmcnt(0)", f"{ins} s[{S_STAMP+2*n}:{S_STAMP+2*n+1}]", "s_waitcnt lgkmcnt(0)",
                f"s_sub_u32 s3, s{S_STAMP+2*opt.probe}, s{S_STAMP+2*opt.probe0}", "s_lshr_b32 s3, s3, 1" if opt.scyc else "s_lshl_b32 s3, s3, 2", "s_add_u32 s3, s3, 10000",
                "L_spin:", "s_sleep 2", "s_memrealtime s[56:57]", "s_waitcnt lgkmcnt(0)", f"s_sub_u32 s56, s56, s94",
                "s_cmp_lt_u32 s56, s3", "s_cbranch_scc1 L_spin"]
    L = ["s_waitcnt vmcnt(0)"] + [x.text for x in stamp()] + ["s_load_dwordx2 s[56:57], s[0:1], 40", "s_waitcnt lgkmcnt(0)"]
    n = stamp_n[0]
    L += [stamp_save(k).text for k in range(max(0, n - 12), n)]
    L += ["s_mov_b32 s58, 0x1000000", "s_mov_b32 s59, 0x20000", "s_lshl_b32 s3, s2, 2", f"s_add_u32 s3, s3, s{S_W}", "s_lshl_b32 s3, s3, 10",
          "v_mbcnt_lo_u32_b32 v1, -1, 0", "v_mbcnt_hi_u32_b32 v1, -1, v1", "v_lshl_add_u32 v1, v1, 2, s3", f"v_mov_b32 v2, {n}",
          "buffer_store_dword v2, v1, s[56:59], 0 offen offset:768"]
    for k in range(3): L.append(f"buffer_store_dword v{253+k}, v1, s[56:59], 0 offen offset:{256*k}")
    L += ["s_getpc_b64 s[60:61]", "L_pc2:", "s_load_dwordx2 s[56:57], s[0:1], 32", "s_waitcnt lgkmcnt(0)", "s_mov_b32 s58, 256",
          f"s_sub_u32 s60, s60, L_pc2 - {NAME}", "s_subb_u32 s61, s61, 0", "v_mov_b32 v2, s60", "v_mov_b32 v3, s61", "v_mov_b32 v1, 0",
          "buffer_store_dwordx2 v[2:3], v1, s[56:59], 0 offen"]
    L += ["s_waitcnt vmcnt(0)"]
    return L

HEADER = """; Attention forward, B8 H32 Sq736 Sk512 D128, bf16 in/out.
; q(8,32,736,128) k,v(8,32,512,128) out(8,32,736,128); kernarg: q,k,v,out,debug,ws pointers.
; 256 persistent workgroups x 4 waves (one wave per SIMD, 512 registers); each does three (head, 256-row) blocks.
; S^T = K Q^T and O^T = V^T P^T with 16x16x32 bf16 MFMA; K/V tiles (64 keys) stream through a 4-slot LDS ring by LDS-DMA.
; Softmax shift: per row, the maximum over the first 16 keys stands in for the row maximum (softmax is shift invariant);
; a run-time check on every row sum (must stay below 2^40, NaN fails too) sends the block to a fallback that
; recomputes it with the true row maximum.
; @launch grid=(256,1,1) block=(256,1,1) lds=%d
""" % LDS_BYTES

def sizes(code):
    import subprocess, re, tempfile, os
    texts = sorted({x.text for x in code if x.kind not in ("label", "branch") and "L_" not in x.text and "NSTUBS" not in x.text})
    d = tempfile.mkdtemp()
    open(d + "/a.s", "w").write('.amdgcn_target "amdgcn-amd-amdhsa--gfx950"\n.text\n' + "\n".join(texts) + "\ns_endpgm\n")
    subprocess.run(["clang", "-x", "assembler", "-target", "amdgcn-amd-amdhsa", "-mcpu=gfx950", "-c", d + "/a.s", "-o", d + "/a.o"], check=True)
    o = subprocess.run(["llvm-objdump", "-d", "--mcpu=gfx950", d + "/a.o"], capture_output=True, text=True).stdout
    ad = [int(m.group(1), 16) for m in re.finditer(r"// ([0-9A-F]{12}):", o)]
    assert len(ad) == len(texts) + 1
    d = {t: ad[i+1] - ad[i] for i, t in enumerate(texts)}
    d.update({x.text: 16 for x in code if "buffer_wbl2" in x.text})
    return d

def add_stubs(code):
    opt.nstub_rounds = opt.stub_n0 + opt.stub_n1
    sz = sizes(code)
    k0 = next(i for i, x in enumerate(code) if x.text == "L_main:")
    out = code[:k0+1] + [I('L_stub0:', 'label'), salu(f's_cmp_eq_u32 s{S_WARM}, 1'), I('s_cbranch_scc1 L_ret0', 'branch')]; pos = 8; n = 1; nxt = 4096
    body = code[k0+1:]
    for i, x in enumerate(body):
        if x.kind != "label" and pos >= nxt:
            if out[-1].kind in ("mfma", "smfmac") or pos + sz.get(x.text, 4) + 8 > nxt + 64 - 8:
                if n < 4*opt.nstub_rounds + (0 if opt.stub_n0 else 1):
                    out += [I(f"L_stub{n}:", "label"), salu(f"s_cmp_eq_u32 s{S_WARM}, 1"), I(f"s_cbranch_scc1 L_ret{n}", "branch")]
                    pos += 8
                n += 1; nxt += 4096
        out.append(x); pos += (40 if x.text.startswith("STUB_CALLS") else 0) if x.kind == "label" else sz.get(x.text, 4)
    for x in out: x.text = x.text.replace("NSTUBS", str(n - 1))
    res = []; used = set()
    for x in out:
        if x.text.startswith("STUB_CALLS"):
            rd = int(x.text[10:])
            if rd >= opt.nstub_rounds: continue
            calls = [salu(f"s_mov_b32 s{S_WARM}, 1")]
            for w in range(4):
                k = 4*rd + w + (0 if opt.stub_n0 else 1)
                if k >= n: continue
                calls += [salu(f"s_cmp_eq_u32 s{S_W}, {w}"), I(f"s_cbranch_scc1 L_stub{k}", "branch")]; used.add(k)
            calls += [I(f"L_ret{rd}:", "label"), salu(f"s_mov_b32 s{S_WARM}, 0")]
            res += calls
        else: res.append(x)
    out = []
    for x in res:
        if x.text.startswith("s_cbranch_scc1 L_ret"):
            k = int(x.text.split("L_ret")[1])
            x.text = f"s_cbranch_scc1 L_ret{(k - (0 if opt.stub_n0 else 1)) // 4}" if k in used else "s_nop 0"
        out.append(x)
    return out

def generate():
    stamp_n[0] = 0
    main, stats = None, None
    s = setup(); p = prologue(); main, stats = body()
    code = resolve(s + p + main)
    errs = check(code)
    if opt.abl:
        k0 = len(s) + len(p) + 60
        def keep(k, x):
            if k < k0: return True
            a = opt.abl
            if 'd' in a and x.kind == "dma" and x.tag[0] in "KV": return False
            if 'q' in a and x.kind == "dma" and x.tag[0] == "Q": return False
            if 'r' in a and x.kind == "ds": return False
            if 'o' in a and x.kind == "vstore": return False
            if 's' in a and x.kind == "smfmac": return False
            if 'e' in a and x.kind == "trans": return False
            if 'c' in a and x.text.startswith("v_cvt_pk"): return False
            if 'p' in a and (x.kind == "pk" or x.text.startswith(("v_lshlrev_b32", "v_and_b32", "v_accvgpr_write"))): return False
            if 'b' in a and x.kind == "barrier": return False
            if 'w' in a and x.kind == "wait": return False
            if 'k' in a and x.kind == "pk": return False
            if 'H' in a and x.kind == "salu" and x.text.startswith(("s_add_u32 s39,", "s_add_u32 s40,")):
                x.text = x.text.split(",")[0] + ", s20, " + str(16384 * (int(x.text.split(",")[2]) // 16384 % 4))
            if 'H' in a and x.kind == "dma" and x.tag[0] == "Q": x.text = x.text.replace(x.text.split(", ")[2].split(" ")[0], "s24")
            if 'm' in a and x.kind == "salu" and "m0" in x.text: return False
            if 'K' in a and x.kind == "pk": x.text = "v_mov_b32 " + x.text.split("[")[1].split(":")[0].join(["v", ","]) + " 0"
            return True
        code = [x for k, x in enumerate(code) if keep(k, x)]
    if opt.stubs: code = add_stubs(code)
    lines = [x.text if x.kind == "label" else "  " + x.text for x in code]
    lines += [x if x.endswith(":") else "  " + x for x in stamp_out() + ([] if opt.abl else slow_path())]
    nbytes_guess = "(((L_end - L_pc) >> 10) << 10) - 1024"
    txt = HEADER + f""".amdgcn_target "amdgcn-amd-amdhsa--gfx950"
.text
.globl {NAME}
.p2align 8
.type {NAME},@function
{NAME}:
""" + "\n".join(lines).replace("CODE_LAST_KIB", nbytes_guess) + f"""
L_end:
  s_endpgm
.if L_end - L_main < 65536
  .fill (65536 - (L_end - L_main)) / 4, 4, 0xbf810000
.endif
.section .rodata,"a"
.p2align 6
.amdhsa_kernel {NAME}
  .amdhsa_next_free_vgpr 512
  .amdhsa_next_free_sgpr 102
  .amdhsa_accum_offset 256
  .amdhsa_group_segment_fixed_size 0
  .amdhsa_kernarg_size 48
  .amdhsa_user_sgpr_count 2
  .amdhsa_user_sgpr_kernarg_segment_ptr 1
  .amdhsa_system_sgpr_workgroup_id_x 1
  .amdhsa_float_denorm_mode_32 3
.end_amdhsa_kernel
"""
    return txt, errs, stats

if __name__ == "__main__":
    out = sys.argv[1]
    for a in sys.argv[2:]:
        k, v = a.split("="); t = type(getattr(opt, k)); setattr(opt, k, v if t is str else t(int(v)))
    txt, errs, stats = generate()
    for e in errs[:40]: print("HAZARD", e)
    print(len(errs), "hazards;", stats, len(txt), "chars")
    open(out, "w").write(txt)
    sys.exit(1 if errs else 0)
```

```python
import sys, heapq
from collections import defaultdict
import gen
from gen import *

opt.tail_k = 2
opt.bar_every = 1
opt.vm_sp = 8
opt.st_gap = 32
opt.vm_lat = 120
opt.ld_lat = 9
opt.pk_pre = True
opt.bar_pos = 88
opt.pre_start = 16
opt.dbg_sched = 0
opt.tail_a = 2
opt.pre_start0 = 18
opt.pre_end = 14
opt.q_est0 = 60
opt.full_from = 2
opt.st_gap0 = 99
opt.st_gap2 = 40
opt.wb = 0
opt.vm_burst = 1
opt.q_ahead = 400
opt.tail_st_gap = 14

MEMK = ("ds", "dma", "vstore", "vload")
VMK = ("dma", "vstore", "vload")
SCK = ("salu", "wait", "barrier")
COST2 = {"valu": 1, "trans": 2, "pk": 1, "perm": 1, "ds": 1, "dma": 1, "vstore": 3, "vload": 1}
BIG = 10**9

class Node:
    __slots__ = ("i", "m", "pred", "succ", "est", "dl", "pin", "gap", "pos", "left", "burst")
    def __init__(s, i, m=None):
        s.i, s.m, s.pred, s.succ, s.est, s.dl, s.pin, s.gap, s.pos, s.left, s.burst = i, m, {}, [], 0, BIG, None, None, None, 0, None

class Prog:
    def __init__(s):
        s.M = []; s.F = []; s.node = {}
        s.lw = {}; s.lr = defaultdict(list)
    def edge(s, p, x, dist=0, lat=0):
        if p is x: return
        d, l = x.pred.get(p, (0, 0))
        if p not in x.pred: p.succ.append(x)
        x.pred[p] = (max(d, dist), max(l, lat))
    def add(s, ins, est=0, dl=BIG, pin=None):
        ism = ins.kind in ("mfma", "smfmac")
        x = Node(ins, len(s.M) if ism else None)
        x.est, x.dl, x.pin = est, dl, pin
        if pin is not None: x.est = x.dl = pin
        for rg in ins.rd + ins.cread:
            p = s.lw.get(rg)
            if p: s.dep(p, x, rg, "raw")
        for rg in ins.wr:
            p = s.lw.get(rg)
            if p: s.dep(p, x, rg, "waw")
            for p in s.lr[rg]: s.dep(p, x, rg, "war")
        for rg in ins.wr: s.lw[rg] = x; s.lr[rg] = []
        for rg in ins.rd + ins.cread: s.lr[rg].append(x)
        (s.M if ism else s.F).append(x); s.node[id(ins)] = x
        return x
    def dep(s, p, x, rg, kind):
        d = edge_dist(p.i, x.i, rg, kind)
        lat = 0
        if p.i.kind == "ds" and kind != "war": lat = opt.ld_lat
        elif p.m is None and x.m is not None: lat = 2 if d else 1
        elif p.m is None and (d or (x.i.kind in MEMK + SCK and p.i.kind in VALK)): lat = 1
        s.edge(p, x, d, lat)

def phases():
    nt = NT(); A4 = (0, 1, 2, 3); A, B = A4[:opt.tail_a], A4[opt.tail_a:]
    k = opt.tail_k
    ph = [((T + 1, A4), (T, A4)) for T in range(nt - 1 - k)]
    if k == 0: return ph + [(None, (nt - 1, A4))]
    seq = [(T, A) for T in range(nt - k, nt)] + [(T, B) for T in range(nt - k, nt)]
    prev = (nt - k - 1, A4)
    for x in seq: ph.append((x, prev)); prev = x
    return ph + [(None, prev)]

def body2():
    nt = NT(); nb = opt.nblocks
    P = Prog()
    ph = phases()
    kcount = [0]; vcount = [0]
    reads = defaultdict(list)
    phase_start = []; group_start = []
    un = [0]
    done_db = defaultdict(set)
    items = []
    lnodes = {}
    tailitems = []
    pre_at = {8*r + 0: r for r in range(nb - 1)}
    pre_nodes = {}
    first_kset = True; first_vsets = 0

    def kset(T, kb):
        buf = kcount[0] & 1; kcount[0] += 1
        for t in range(4):
            if T == 1 and (kb == 0 or (kb == 1 and t == 0)): continue
            ins = k_read(T, kb, t, dest=A_K + 16*buf + 4*t)
            reads[("K", T)].append(P.add(ins))
        return A_K + 16*buf
    def vset(T, db):
        buf = vcount[0] & 3; vcount[0] += 1
        u, p = db >> 1, db & 1
        for ks in range(2):
            for hf in range(2):
                if T == 0 and 4*db + 2*ks + hf < 10: continue
                ins = v_read(T, db, ks, hf, dest=A_V + 8*buf + 4*ks + 2*hf)
                reads[("V", T)].append(P.add(ins))
        return A_V + 8*buf

    for pi, (qk, pv) in enumerate(ph):
        phase_start.append(len(P.M))
        if pv and pv[0] in pre_at and pv[1][0] == 0 and pv[0] not in pre_nodes:
            r = pre_at[pv[0]]; lst = []
            for k in range(16):
                kap = 16*(r + 1) + k
                if not kap & 1: w = P.add(wait(vm="auto", need=[("Q", kap >> 1)]))
                rd = P.add(q_read(kap)); P.edge(w, rd)
                ops = [P.add(o) for o in prescale_ops(V_RAW + 4*(kap & 1), q_reg(r + 1, k >> 2, k & 3), opt.pk_pre)]
                if opt.pk_pre:
                    for o in ops[8:12]: o.burst = ops[8:12]
                lst.append((kap, w, rd, ops))
            pre_nodes[pv[0]] = lst
        units = [(qk[0], kb, qb) for kb in range(4) for qb in qk[1]] if qk else []
        chains = [(pv[0], db, qb) for db in range(8) for qb in pv[1]] if pv else []
        pairs = [chains[j:j+2] for j in range(0, len(chains), 2)]
        ns = max(len(units), len(pairs))
        smf = {}
        if pv:
            early = pv[0] % 8 == 7
            for n, qb in enumerate(pv[1]):
                smf.setdefault(min(ns - 1, (1 + n // 2) if early else max(1, (ns * (n + 1)) // (2 * len(pv[1])))), []).append(qb)
        iu = ip = 0; kb_cur = db_cur = None
        for s_ in range(ns):
            group_start.append(len(P.M))
            if iu < len(units) and iu * ns <= s_ * len(units):
                T1, kb, qb = units[iu]; iu += 1
                if kb != kb_cur: kreg = kset(T1, kb); kb_cur = kb
                special = T1 % 8 == 0 and kb == 0
                d = p_reg(T1, qb, 1) if special else V_S + 4*(un[0] & 1)
                un[0] += 1
                for t in range(4):
                    cc = None if t else ("0" if special else V_NEGM + 4*qb)
                    P.add(mfma("v", d, "a", kreg + 4*t, "a", q_reg(T1 // 8, qb, t), cc))
                if special:
                    for o in max_ops(d, qb, r=T1 // 8):
                        if not isinstance(o, str): P.add(o)
                e, cv = soft_ops(d, p_reg(T1, qb, kb >> 1) + 2*(kb & 1))
                for o in e + cv: P.add(o)
            if ip < len(pairs) and ip * ns <= s_ * len(pairs):
                for T0, db, qb in pairs[ip]:
                    if db != db_cur: vreg = vset(T0, db); db_cur = db
                    for ks in range(2):
                        last = P.add(mfma("v", o_reg(db, qb), "a", vreg + 4*ks, "v", p_reg(T0, qb, ks), "0" if (T0 % 8 == 0 and ks == 0) else None))
                    if T0 % 8 == 7 and db & 1: items.append((T0 // 8, db >> 1, qb, last))
                ip += 1
            for qb in smf.get(s_, []):
                P.add(smfmac(qb, p_reg(pv[0], qb, 0)))
                if pv[0] % 8 == 7:
                    r = pv[0] // 8
                    lnodes[(r, qb)] = [P.add(o) for o in l_ops(r, qb, r < nb - 1)]
            while items and (items[0][0], items[0][2]) in lnodes:
                r, u, qb, last = items.pop(0)
                tailitems.append((r, u, qb, last, None))
                tailitems[-1] = (r, u, qb, last, add_item(P, r, u, qb, last))
    n = len(P.M)
    gs = group_start
    full = lambda T: phase_start[T]
    bars = []
    ps = phase_start + [n]
    bpos = [ps[i] + (ps[i+1] - ps[i]) * opt.bar_pos // 132 for i in range(len(ph))]
    firstuse = {tg: min(y.m for x in lst for y in x.succ if y.m is not None) for tg, lst in reads.items() if lst}
    unpub = [("K", x) for x in range(2, nt)] + [("V", x) for x in range(1, nt)]
    enabled = {("K", x) for x in range(5)} | {("V", x) for x in range(4)}
    enable = {}; freeK = 0; freeV = -1
    blist = list(range(len(ph))) if opt.bar_every == 1 else [0] + list(range(1, nt - 4, 2)) + list(range(nt - 4, len(ph)))
    for bi, pi in enumerate(blist):
        if not unpub: break
        g = bpos[pi]
        nxt = bpos[blist[bi + 1]] if bi + 1 < len(blist) else n
        if all(tg in enabled for tg in unpub) and pi >= nt - 6: pub = list(unpub)
        else: pub = [tg for tg in unpub if firstuse[tg] - opt.ld_lat - 30 < nxt]
        assert all(tg in enabled for tg in pub), (pi, pub)
        unpub = [tg for tg in unpub if tg not in pub]
        free = []
        if pi <= nt - 2 - opt.tail_k:
            free = [("K", x) for x in range(freeK + 1, pi + 2)] + [("V", x) for x in range(freeV + 1, pi + 1)]
            freeK, freeV = pi + 1, pi
        if pi == nt - 1 - opt.tail_k and opt.tail_k:
            free = [("V", x) for x in range(freeV + 1, pi + 1)]; freeV = pi
        free = [tg for tg in free if tg[1] + 4 < nt]
        w = P.add(wait(vm="auto", lg="bar", need=pub), pin=g - 1)
        b = P.add(barrier(), pin=g); P.edge(w, b, 0, 1)
        w.burst = [x for tg in free for x in reads[tg]]
        for tg in free:
            for x in reads[tg]: x.dl = min(x.dl, g - 1 - 7)
            enable[(tg[0], tg[1] + 4)] = b; enabled.add((tg[0], tg[1] + 4))
        for tg in pub:
            for x in reads[tg]: P.edge(b, x)
        bars.append((g, w, pub))
    assert not unpub
    pubgap = {tg: g for g, w, pub in bars for tg in pub}
    pubw = {tg: w for g, w, pub in bars for tg in pub}
    qplan = {}
    for T0, lst in pre_nodes.items():
        lo = gs[16*T0 + (opt.pre_start0 if T0 == 0 else opt.pre_start)]; hi = gs[16*(T0 + 6) + opt.pre_end]
        for k, (kap, w, rd, ops) in enumerate(lst):
            a = lo + (hi - lo) * k // 16; b = lo + (hi - lo) * (k + 1) // 16
            qplan[kap] = a
            if not kap & 1: w.est = a - 8; w.dl = a - 1
            rd.est = a; rd.dl = a + 4
            for j, o in enumerate(ops): o.dl = min(o.dl, a + 4 + opt.ld_lat + (b - a) * (j + 1) // len(ops))
    jobs = []
    for kind, first in (("K", opt.first_k), ("V", opt.first_v)):
        for T in range(first, nt):
            b = enable.get((kind, T))
            est = b.pin if b else 0
            for t in range(4): jobs.append([est, pubgap[(kind, T)] - opt.vm_lat - 4*(3 - t) - (32 if pubgap.get((kind, T + 1)) == pubgap[(kind, T)] else 0), kind, T, t])
    for pc in range(8, 8*nb):
        est = qplan[2*(pc - NQS) + 1] + 4 + opt.ld_lat + 10 if pc - NQS >= 8 else opt.q_est0
        est = max(est, qplan[2*pc] - opt.q_ahead)
        for hh in range(2): jobs.append([est, qplan[2*pc] - 8 - opt.vm_lat - 4*(1 - hh), "Q", pc, hh])
    order = []; t = 0
    jobs.sort()
    pend = list(jobs)
    while pend:
        av = [j for j in pend if j[0] <= t]
        if not av: t = min(j[0] for j in pend); continue
        j = min(av, key=lambda j: (j[1], j[2], j[3], j[4])); pend.remove(j); order.append(j); t += (opt.vm_sp + 1 if j[1] > t else 2)
    late = [P.add(o, dl=(min(106, opt.q_est0 - 2) if k < len(gen.late_setup) // 2 else 200)) for k, o in enumerate(gen.late_setup)]
    for a, b in zip(late, late[1:]): P.edge(a, b, 0, 1)
    qfirst = {kap: ops[0] for lst in pre_nodes.values() for kap, w, rd, ops in lst}
    qwait = {kap: w for lst in pre_nodes.values() for kap, w, rd, ops in lst}
    for est, dl, kind, T, t in order:
        if kind == "Q":
            m, d = q_dma(T, t)
            mn = P.add(m); dn = P.add(d, est=est, dl=max(dl, est + 16 + 4*t))
            if 2*(T - NQS) + 1 in qfirst: P.edge(qfirst[2*(T - NQS) + 1], dn, 0, 1)
            P.edge(late[len(late) // 2 - 1 if T < 16 else -1], dn); P.edge(dn, qwait[2*T], 0, 1)
        else:
            if t == 0:
                so = [P.add(o) for o in (k_soff(T) if kind == "K" else v_soff(T))]
                for a, b in zip(so, so[1:]): P.edge(a, b, 0, 1)
                if T >= 8: P.edge(late[-1], so[0])
            m, d = (k_dma if kind == "K" else v_dma)(T, t)
            mn = P.add(m); dn = P.add(d, est=est, dl=max(dl, est + 16 + 4*t))
            b = enable.get((kind, T))
            if b: P.edge(b, dn)
            P.edge(dn, pubw[(kind, T)], 0, 1)
    if opt.jit_every:
        for k in range(opt.jit_first, 8):
            g = gs[int((k - opt.jit_first) * opt.jit_every * 1.6) + opt.jit_g0]
            ld, ad = jit_ops()
            P.add(ld, est=g, dl=g + 60); P.add(ad, est=g, dl=g + 100)
    plan_stores(P, tailitems, phase_start, gs)
    return schedule(P, phase_start, gs)

def add_item(P, r, u, qb, last):
    mul, cv, st = epi_ops(r, u, qb)
    mn = [P.add(o) for o in mul]
    if opt.pk_epi:
        for o in mn: o.burst = mn
    cn = [P.add(o) for o in cv]
    last_block = r == opt.nblocks - 1
    if r >= opt.full_from and opt.full_line:
        if not u & 1:
            _pp[("half", qb)] = (mn, cn); return None
        pk = [None, None]
        if not last_block:
            pk = [park_plan(r).get((u - 1 + h, qb)) for h in range(2)]
            pk = [A_Q[r & 1] + 4*p[1] if isinstance(p, tuple) else p for p in pk]
        o1, s1, o2, s2 = line_ops(r, u >> 1, qb, pk)
        x1 = [P.add(o) for o in o1]; sn1 = P.add(s1); x2 = [P.add(o) for o in o2]; sn2 = P.add(s2)
        sn1.burst = (_pp[("half", qb)], (mn, cn), x1, x2, sn2)
        return sn1
    park = None if last_block else park_plan(r).get((u, qb))
    if isinstance(park, tuple): park = A_Q[r & 1] + 4*park[1]
    if park is None: sn = P.add(st)
    else:
        b = V_O + 32*u + 8*qb
        for j in range(4): P.add(valu(f"v_accvgpr_write_b32 {ar(park+j)}, {vr(b+j)}", R("v", b+j), R("a", park+j)))
        sn = P.add(vstore(park, V_OOFF, S_O, S_QO + 4*r + qb, 64*u, "a"))
    sn.burst = (mn, cn)
    return sn

_pp = {}
def park_plan(r):
    if ("plan", r) not in _pp:
        sp = (opt.st_gap2 if r == opt.nblocks - 2 else opt.st_gap) / 8.25
        items = [(u, qb) for u in range(4) for qb in range(4)]
        avail = {it: max(4*it[0] + 3 + (it[1] >> 1), 5) + 1.5 for it in items}
        dead = {it: 16 + 4*it[0] + (it[1] >> 1) - 0.5 for it in items}
        if r >= opt.full_from and opt.full_line:
            avail = {it: 4*(it[0] | 1) + 3 + (it[1] >> 1) + 2.5 + (it[0] & 1) for it in items}
            dead = {it: 16 + 4*it[0] + 2 + (it[1] >> 1) - 0.5 for it in items}
        left = list(items); t = min(avail.values()); slots = {}
        while True:
            cand = [it for it in left if avail[it] <= t < dead[it]]
            if cand:
                it = min(cand, key=lambda x: dead[x]); left.remove(it); slots[it] = t
            elif not any(t < dead[it] for it in left): break
            t += min(sp, opt.st_gap0 / 8.25)
        for it in left: slots[it] = t; t += sp
        nq = max(0, len(left) - 10)
        _pp[("plan", r)] = {it: (("q", 16 - nq + n) if n < nq else A_PARK + 4*(n - nq)) for n, it in enumerate(left)}
        _pp[("slot", r)] = slots
    return _pp[("plan", r)]

def plan_stores(P, tailitems, phase_start, gs):
    nb = opt.nblocks
    for r, u, qb, last, sn in tailitems:
        if r < nb - 1 and sn:
            park_plan(r)
            for uu, x in ([(u - 1, sn), (u, sn.burst[4])] if r >= opt.full_from and opt.full_line else [(u, sn)]):
                t = _pp[("slot", r)][(uu, qb)]
                g = gs[16*(8*r + 7) + int(t)] + int(8*(t - int(t)))
                x.est = g; x.dl = min(x.dl, g + (12 if opt.vm_burst == 1 else 40))
    if opt.wb:
        g = max(sn.dl for r, u, qb, last, sn in tailitems if r == nb - 2) + opt.wb
        P.add(I(f"s_cmp_eq_u32 s{S_WB}, 0\n  s_cbranch_scc0 L_nowb\n  buffer_wbl2 sc1\nL_nowb:", "salu", nops=2), pin=g)
        print("write-back at gap", g, "phases", phase_start[19:])
    n = len(P.M); tv = ts = 0
    for r, u, qb, last, sn in sorted([x for x in tailitems if x[0] == nb - 1 and x[4]], key=lambda x: x[3].m):
        if opt.full_line:
            h0, h1, x1, x2, sn2 = sn.burst
            tv = max(last.m + 8, tv + 8)
            for (mn, cn), t0 in ((h0, tv - 4), (h1, tv)):
                if t0 + 3 < n:
                    for o in mn: o.dl = t0
                    for j, o in enumerate(cn): o.dl = t0 + 1 + j // 2
            for xs, st, t0 in ((x1, sn, tv + 4), (x2, sn2, tv + 6)):
                if t0 + 2 < n:
                    for o in xs: o.dl = t0
                ts = max(t0 + 2, ts + opt.tail_st_gap)
                if ts < n: st.dl = ts
            continue
        mn, cn = sn.burst
        tv = max(last.m + 8, tv + 4); ts = max(tv + 5, ts + opt.tail_st_gap)
        if tv + 3 < n:
            for o in mn: o.dl = tv
            for j, o in enumerate(cn): o.dl = tv + 1 + j // 2
        if ts < n: sn.dl = ts

def schedule(P, phase_start, gs):
    M, F = P.M, P.F; n = len(M)
    indeg = {}
    for x in F: indeg[x] = sum(1 for y in x.succ if y.m is None)
    stack = [x for x in F if indeg[x] == 0]; seen = 0
    while stack:
        x = stack.pop(); seen += 1
        for y in x.succ:
            d, l = y.pred[x]
            lim = (y.m - max(l, 1)) if y.m is not None else (y.dl - l if y.dl < BIG else BIG)
            if x.pin is None: x.dl = min(x.dl, lim)
        for p in x.pred:
            if p.m is None:
                indeg[p] -= 1
                if indeg[p] == 0: stack.append(p)
    assert seen == len(F), "cycle"
    for k, x in enumerate(F): x.left = len(x.pred); x.pos = None
    seq = {x: k for k, x in enumerate(F)}
    pool = [x for x in F if x.left == 0]
    gaps = []; pos = [0]; out_nops = 0
    lastvm = -99; lastst = -99; late = []; bst = [-99, 0]
    def placed(x, g):
        x.gap = g; x.pos = pos[0]; pos[0] += x.i.nops
        for y in x.succ:
            if y.m is None:
                y.left -= 1
                if y.left == 0: pool.append(y)
    def short(x, at):
        return max([d - (at - p.pos - p.i.nops) for p, (d, l) in x.pred.items()] + [0])
    def latok(x, g):
        for p, (d, l) in x.pred.items():
            if p.m is None and p.gap + (l if p.i.kind != "ds" or x.i.kind in VALK else 0) > g: return False
        return True
    for g in range(n + 1):
        final = g == n
        cur = []
        if not final:
            m = M[g]
            for p in m.pred:
                assert p.pos is not None, ("unplaced predecessor", g, m.i, p.i, p.dl, p.est)
            s_ = short(m, pos[0])
            if s_: cur.append(nop(s_)); pos[0] += s_; out_nops += s_
            placed(m, g); cur.append(m.i)
        gp = dict(pre=cur, shadow=[], mem=[], valu=[]); gaps.append(gp)
        load = 0
        def emit(x, where):
            nonlocal load, lastvm, lastst, out_nops
            pool.remove(x)
            s_ = short(x, pos[0])
            if s_: gp[where].append(nop(s_)); pos[0] += s_; load += s_; out_nops += s_
            if x.dl < g: late.append((g, x.dl, x.i.text))
            placed(x, g); gp[where].append(x.i)
            if x.i.kind in VMK:
                if g - lastvm <= 4 and bst[1] < opt.vm_burst: bst[1] += 1
                else: bst[0] = g; bst[1] = 1
                lastvm = g
            if x.i.kind == "vstore": lastst = g
            load += COST2.get(x.i.kind, 0)
        key = lambda x: (x.dl, seq[x])
        if final:
            while pool:
                c = [x for x in pool if short(x, pos[0]) == 0] or pool
                emit(min(c, key=lambda x: seq[x]), "valu")
            break
        sc = sorted([x for x in pool if x.i.kind in SCK and x.est <= g and (latok(x, g) or x.dl <= g)], key=key)
        m0s = [x for x in sc if "m0" in x.i.text]
        if sc and sc[0].dl > g + 3 and m0s: emit(m0s[0], "shadow")
        elif sc and (sc[0].dl <= g + 40 or g % 2): emit(sc[0], "shadow")
        elif not gp["shadow"]: pos[0] += 0
        while True:
            sc = [x for x in pool if x.i.kind in SCK and x.dl <= g and x.est <= g]
            if not sc: break
            emit(min(sc, key=key), "shadow"); load += 1
        def vm_ok(x):
            if x.i.kind not in VMK or x.dl <= g: return True
            stg = opt.tail_st_gap if g >= phase_start[-1 - 2*opt.tail_k] else min(opt.st_gap, opt.st_gap2, opt.st_gap0) - 4
            if x.i.kind == "vstore" and g - lastst < stg: return False
            if opt.vm_burst > 1:
                if g - lastvm < 2: return False
                return (g - lastvm <= 4 and bst[1] < opt.vm_burst) or g - bst[0] >= bst[1] * opt.vm_sp
            return g - lastvm >= (opt.vm_sp if x.i.kind != "vstore" else 3)
        def cands(kinds):
            return sorted([x for x in pool if x.i.kind in kinds and x.est <= g and latok(x, g) and short(x, pos[0]) == 0 and vm_ok(x)], key=key)
        mem = cands(MEMK); val = cands(("valu", "trans", "perm"))
        pkc = cands(("pk",))
        burst = None
        if pkc:
            b = pkc[0]
            if all(y in pool or y.pos is not None for y in b.burst) and b.dl - g <= 10:
                avail = sum(COST2[x.i.kind] for x in val)
                if avail >= 4 or b.dl <= g: burst = [y for y in b.burst if y.pos is None]
        cap = 4 if burst else 2
        nvm = 0
        for x in mem:
            forced = x.dl <= g
            c = COST2[x.i.kind]
            if x.i.kind in VMK and nvm and not forced: continue
            if not forced:
                if load + min(c, 2) > cap: continue
                inburst = opt.vm_burst > 1 and x.i.kind in VMK and g - lastvm <= 4 and val and val[0].dl > g
                if val and val[0].i.kind == "trans" and load == 0 and key(val[0]) < key(x) and not inburst: continue
                if load == 0 and cap == 2 and c == 1:
                    other = [y for y in mem + val if y is not x and COST2[y.i.kind] == 1 and not (y.i.kind in VMK and x.i.kind in VMK)]
                    if not other and any(y.i.kind == "trans" for y in val) and x.dl > g + 2 and not inburst: continue
            if short(x, pos[0]) and not forced: continue
            emit(x, "mem"); nvm += x.i.kind in VMK
        while True:
            f = [x for x in pool if x.i.kind in MEMK and x.dl <= g and x.est <= g]
            if not f or gp["valu"]: break
            emit(min(f, key=key), "mem")
        while True:
            val = cands(("valu", "trans", "perm"))
            f = sorted([x for x in pool if x.i.kind in VALK and x.dl <= g and x.est <= g and x.i.kind != "pk"], key=key)
            if f: emit(f[0], "valu"); continue
            fit = [x for x in val if load + COST2[x.i.kind] <= cap]
            if not fit: break
            x = fit[0]
            if cap - load == 2 and COST2[x.i.kind] == 1:
                ones = [y for y in fit if COST2[y.i.kind] == 1]
                tr = [y for y in fit if y.i.kind == "trans"]
                follow = any(y.left == 1 and y.m is None and y.i.kind in ("valu",) and y.pred[x][0] == 0 for y in x.succ)
                if len(ones) < 2 and tr and not follow and x.dl > g + 1: x = tr[0]
            emit(x, "valu")
        if burst:
            for y in burst: emit(y, "valu")
        while True:
            f = [x for x in pool if x.dl <= g and x.est <= g]
            if not f: break
            emit(min(f, key=key), "valu")
        gp["load"] = load
    assert not pool and all(x.pos is not None for x in F)
    dsn = 0; ds_gap = []; prod = {}
    need = [-1]*(n + 2)
    for g, gp in enumerate(gaps):
        for part in ("pre", "shadow", "mem", "valu"):
            for ins in gp[part]:
                for rg in ins.rd + ins.cread + ins.wr:
                    if rg in prod:
                        gi = g - 1 if part == "pre" else g
                        need[gi] = max(need[gi], prod[rg])
                for rg in ins.wr: prod.pop(rg, None)
                if ins.kind == "ds":
                    for rg in ins.wr: prod[rg] = dsn
                    ins.lg = dsn; ds_gap.append(g); dsn += 1
    before = [0]*(n + 2)
    for g in range(n + 1): before[g + 1] = before[g] + sum(1 for part in ("mem", "valu") for i in gaps[g][part] if i.kind == "ds")
    cov = -1; extra = 0
    for g in range(n + 1):
        for ins in gaps[g]["shadow"]:
            if ins.kind == "wait" and ins.lg == "bar":
                x = P.node[id(ins)]
                tgt = max([y.i.lg for y in x.burst] + [-1])
                assert tgt < before[g]
                if tgt > cov: ins.lg = min(15, before[g] - 1 - tgt); cov = before[g] - 1 - ins.lg
                else: ins.lg = None
        if need[g] > cov:
            h = g
            while h > ds_gap[need[g]] + 2 and h > g - 4 and gaps[h]["shadow"]: h -= 1
            if gaps[h]["shadow"] or h <= ds_gap[need[g]]:
                h = g
                assert ds_gap[need[g]] < g, ("read and use in one gap", g)
                wv = [i for i in gaps[g]["shadow"] if i.kind == "wait" and i.lg is None]
            else: wv = []
            tgt = max(need[g], before[max(0, h - 6)] - 1)
            cnt = min(15, before[h] - 1 - tgt)
            if wv: wv[0].lg = cnt
            else:
                if gaps[h]["shadow"]: extra += 1; gaps[h]["load"] = gaps[h].get("load", 0) + 1
                gaps[h]["shadow"].append(wait(lg=cnt))
            cov = before[h] - 1 - cnt
    for g in range(n + 1):
        for part in ("mem", "valu"):
            for ins in gaps[g][part]:
                if ins.kind == "ds": ins.lg = None
    c = []
    sper = [int(x) for x in opt.sper.split('_')] if opt.sper else [0, 1, 7, 8, 9, 15, 16, 17] + list(range(20, len(phase_start)))
    marks = {phase_start[T] for T in sper if T < len(phase_start)}
    if opt.sgrp: marks = {gs[int(x)] for x in opt.sgrp.split('_')}
    for g, gp in enumerate(gaps):
        if g in marks or g == n: c += stamp()
        lst = gp["pre"] + gp["shadow"] + gp["mem"] + gp["valu"]
        if opt.sgrp and min(marks) <= g <= max(marks):
            for ins in lst:
                if ins.kind in VMK or ins.kind == "barrier" or (ins.kind == "wait" and ins.vm is not None): c += stamp() + [ins] + stamp()
                else: c.append(ins)
        else: c += lst
    c += stamp()
    cyc = [max(16, 8 + 4*gp.get("load", 0)) for gp in gaps[:n]]
    ps = phase_start + [n]
    stats = dict(nbar=sum(1 for x in F if x.i.kind == 'barrier'), per=[sum(cyc[a:b]) for a, b in zip(ps, ps[1:])], gaps=n, est_cycles=sum(cyc), tail_instr=len(gaps[n]["valu"]),
                 under=sum(max(0, 2 - gp.get("load", 0)) for gp in gaps[:n]), nops=out_nops, extra_waits=extra, late=len(late))
    if opt.dbg_sched:
        for l in late[:40]: print("late", l)
    if opt.dbg_sched > 1:
        ab = {"trans": "E", "valu": "v", "pk": "P", "perm": "x", "ds": "r", "dma": "D", "vstore": "S", "vload": "L", "nop": "n", "salu": "s", "wait": "w", "barrier": "B"}
        for T in range(len(phase_start)):
            row = []
            for g in range(ps[T], ps[T+1]):
                gp = gaps[g]
                row.append(("|" if g in gs else "") + "".join(ab[i.kind] for i in gp["shadow"][1:] + gp["mem"] + gp["valu"]) + ("" if gp["load"] >= 2 else "_" * (2 - gp["load"])))
            print(T, " ".join(row))
    return c, stats

opt.st_gap = 62; opt.st_gap2 = 40; opt.vm_sp = 10; opt.full_from = 0
opt.o_pol = opt.o1_pol = opt.olast_pol = opt.olastb_pol = 'sc1'; opt.q_pol = opt.kv_pol = 'nt'
opt.pro_order = 12; opt.line_prefetch = 0; opt.jit_every = 0; opt.stub_n0 = 1; opt.stub_n1 = 3
opt.first_k = 3
opt.first_v = 2
gen.body = body2

if __name__ == "__main__":
    out = sys.argv[1]
    for a in sys.argv[2:]:
        k, v = a.split("="); t = type(getattr(opt, k)); setattr(opt, k, v if t is str else t(int(v)))
    txt, errs, stats = gen.generate()
    for e in errs[:40]: print("HAZARD", e)
    print(len(errs), "hazards;", stats, len(txt), "chars")
    open(out, "w").write(txt)
    sys.exit(1 if errs else 0)
```

```python
import sys, struct, math, json
from collections import defaultdict

NAME = "standalone__gqa_softmax__near_ridge_kernel"

class Opt:
    stamps = False
    force_slow = False
    code_prefetch = False
    pk_epi = True
    pk_pre = False
    nblocks = 3
    kv_pol = ''
    q_pol = ''
    o_pol = ''
    olast_pol = ''
    olastb_pol = ''
    o1_pol = ''
    full_line = 1
    late_issue = 1
    st_sp = 25
    st_g0 = 6
    scyc = 0
    sper = ''
    sgrp = ''
    line_prefetch = 1
    head_prefetch = 1
    zero_pad = 1
    a4_pol = 'x'
    head = 0
    rot = 0
    rot_sh = 0
    pro_order = 0
    k1_late = 0
    k_first = 0
    q2_late = 0
    jit_all = 1
    stub_n0 = 1
    stub_n1 = 2
    stub_late = 1
    stub_early = 0
    nstub_rounds = 4
    jit_every = 29
    jit_first = 2
    jit_g0 = 23
    stubs = 1
    abl = ''
    lin_dma = 0
    probe0 = 0
    pavg = 0
    probe = -1
opt = Opt()

def f2u(x): return struct.unpack("<I", struct.pack("<f", x))[0]
CSCALE = f2u(math.log2(math.e) / math.sqrt(128.0))
THR = f2u(2.0 ** 40)

VE = 0
KB = 65552
VPAR = 32768 + 8
QB = 131088
QW = 7168
NQS = 3
LDS_BYTES = 163840

V_O = 0
V_P = 128
V_S = 192
V_NEGM = 200
V_RAW = 216
V_T = 224
V_JIT = 252
A_DUMMY = 255
V_RCP = 232
V_MT = 224
V_LT = 226
V_KADDR = 240
V_VADDR = 242
V_QADDR = 249
V_KOFF = 245
V_VOFF = 246
V_OOFF = 247
V_IDX = 248
V_OOFF2 = 251
V_TMP = 64
A_Q = [0, 64]
A_K = 128
A_V = 160
A_L = 192
A_ONE = 208
A_PARK = 212
S_K, S_V, S_Q, S_O = 4, 8, 12, 16
S_KV = 20
S_W = 23
S_QO = 24
S_MK, S_MV, S_MQ = 36, 37, 38
S_SK, S_SV = 39, 40
S_LMASK = 58
VCC = ("s", 106)
S_MQ1 = 62
S_C = 42
S_THR = 44
S_FLAG = 46
S_CMP = 52
S_T = 54
S_BIAS = 60
S_ANDM = 41+0
S_ROT = [96, 97, 98]
S_WB = 98
S_WARM = 99
S_PC = 100
S_STAMP = 64

def vr(b, n=1): return f"v{b}" if n == 1 else f"v[{b}:{b+n-1}]"
def ar(b, n=1): return f"a{b}" if n == 1 else f"a[{b}:{b+n-1}]"
def sr(b, n=1): return f"s{b}" if n == 1 else f"s[{b}:{b+n-1}]"
def R(c, b, n=1): return [(c, b + i) for i in range(n)]

class I:
    __slots__ = ("text", "kind", "rd", "wr", "tag", "cread", "nops", "need", "vm", "lg", "after")
    def __init__(s, text, kind, rd=(), wr=(), tag=None, cread=(), nops=1):
        s.text, s.kind, s.rd, s.wr, s.tag, s.cread, s.nops = text, kind, list(rd), list(wr), tag, list(cread), nops
        s.need = None; s.vm = None; s.lg = None; s.after = []
    def __repr__(s): return s.text

def mfma(dc, d, ac, a, bc, b, c=None):
    f = {"v": vr, "a": ar}
    if c is None: ct, cr = f[dc](d, 4), R(dc, d, 4)
    elif c == "0": ct, cr = "0", []
    else: ct, cr = f[dc](c, 4), R(dc, c, 4)
    return I(f"v_mfma_f32_16x16x32_bf16 {f[dc](d,4)}, {f[ac](a,4)}, {f[bc](b,4)}, {ct}", "mfma",
             rd=R(ac, a, 4) + R(bc, b, 4), wr=R(dc, d, 4), cread=cr)
def smfmac(qb, pb):
    return I(f"v_smfmac_f32_16x16x64_bf16 {ar(A_L+4*qb,4)}, {ar(A_ONE,4)}, {vr(pb,8)}, {vr(V_IDX)}", "smfmac",
             rd=R("a", A_ONE, 4) + R("v", pb, 8) + R("v", V_IDX), wr=R("a", A_L + 4*qb, 4), cread=R("a", A_L + 4*qb, 4))
def valu(text, rd, wr, kind="valu"): return I(text, kind, rd, wr)
def vexp(r): return I(f"v_exp_f32 {vr(r)}, {vr(r)}", "trans", R("v", r), R("v", r))
def vcvt(d, a, b): return I(f"v_cvt_pk_bf16_f32 {vr(d)}, {vr(a)}, {vr(b)}", "valu", R("v", a) + R("v", b), R("v", d))
def salu(text, rd=(), wr=()): return I(text, "salu", rd, wr)
def nop(n): return I(f"s_nop {n-1}", "nop", nops=n)
def wait(vm=None, lg=None, need=None):
    i = I("s_waitcnt", "wait"); i.vm, i.lg, i.need = vm, lg, need; return i
def barrier(): return I("s_barrier", "barrier")
def dsr(dc, d, addr, off, tag):
    f = {"v": vr, "a": ar}[dc]
    return I(f"ds_read_b128 {f(d,4)}, {vr(addr)} offset:{off}", "ds", R("v", addr), R(dc, d, 4), tag)
def dst(d, addr, off, tag):
    return I(f"ds_read_b64_tr_b16 {ar(d,2)}, {vr(addr)} offset:{off}", "ds", R("v", addr), R("a", d, 2), tag)
def setm0(sbase, imm):

    return I(f"s_add_u32 m0, {sr(sbase)}, {imm}", "salu", R("s", sbase), [("m", 0)])
def pol(p): return ''.join(' ' + x for x in p.split('_') if x)
def dma(voff, srd, soff, imm, tag):
    o = f" offset:{imm}" if imm else ""
    o += pol(opt.q_pol if srd == S_Q else opt.kv_pol)
    return I(f"buffer_load_dwordx4 {vr(voff)}, {sr(srd,4)}, {sr(soff)} offen{o} lds", "dma",
             R("v", voff) + R("s", srd, 4) + R("s", soff) + [("m", 0)], [], tag)
def vload(d, voff, srd, soff, imm):
    o = f" offset:{imm}" if imm else ""
    o += pol(opt.q_pol)
    return I(f"buffer_load_dwordx4 {vr(d,4)}, {vr(voff)}, {sr(srd,4)}, {sr(soff)} offen{o}", "vload",
             R("v", voff) + R("s", srd, 4) + R("s", soff), R("v", d, 4))
def vstore(d, voff, srd, soff, imm, dc="v", last=False):
    o = f" offset:{imm}" if imm else ""
    if 'L' in opt.abl and last: voff = V_KOFF; imm = kq_imm(imm // 64); o = f" offset:{imm}" if imm else ""
    if last and opt.a4_pol != 'x' and (soff - S_QO) % 4 < 2 and imm % 2048 == 0: o += pol(opt.a4_pol)
    else: o += pol((opt.olast_pol if (soff - S_QO) % 4 < getattr(opt, 'tail_a', 2) else opt.olastb_pol) if last else (opt.o1_pol if (soff - S_QO) // 4 == opt.nblocks - 2 and opt.o1_pol else opt.o_pol))
    return I(f"buffer_store_dwordx4 {(vr if dc == 'v' else ar)(d,4)}, {vr(voff)}, {sr(srd,4)}, {sr(soff)} offen{o}", "vstore",
             R(dc, d, 4) + R("v", voff) + R("s", srd, 4) + R("s", soff), [])

def o_reg(db, qb): return V_O + 32*(db >> 1) + 8*qb + 4*(db & 1)
def p_reg(T, qb, ks): return V_P + 32*(T & 1) + 8*qb + 4*ks
def q_reg(r, qb, t): return A_Q[r & 1] + 16*qb + 4*t
def k_reg(kb, t): return A_K + 16*(kb & 1) + 4*t
def v_reg(db, ks): return A_V + 8*(db & 3) + 4*ks
def k_read(T, kb, t, dest=None):
    return dsr("a", k_reg(kb, t) if dest is None else dest, V_KADDR + (t & 1), (T & 3)*16384 + kb*4096 + (t >> 1)*2048, ("K", T))
def v_read(T, db, ks, hf, dest=None):
    u, p = db >> 1, db & 1
    return dst(v_reg(db, ks) + 2*hf if dest is None else dest, V_VADDR + (u & 1), (T & 3)*8192 + (2*ks + hf)*2048 + (u >> 1)*1024 + 8*p, ("V", T))
def kq_imm(j): return (j & 1)*2048 + (j >> 1)*128
def k_dma(T, j):
    return setm0(S_MK, (T & 3)*16384 + j*1024 - kq_imm(j)), dma(V_KOFF, S_K, S_SK, kq_imm(j), ("K", T))
def v_dma(T, j):
    par, up = j & 1, j >> 1; imm = par*1024 + up*128
    return setm0(S_MV, par*VPAR + (T & 3)*8192 + up*1024 - imm), dma(V_VOFF, S_V, S_SV, imm, ("V", T))
def soff(reg, T):
    r = T // 8
    if not opt.rot: return [salu(f"s_add_u32 {sr(reg)}, {sr(S_KV + r)}, {(T % 8)*16384}", R("s", S_KV + r), R("s", reg))]
    return [salu(f"s_add_u32 {sr(reg)}, {sr(S_ROT[r])}, {(T % 8)*16384}", R("s", S_ROT[r]), R("s", reg)),
            salu(f"s_and_b32 {sr(reg)}, {sr(reg)}, 0x1ffff", R("s", reg), R("s", reg)),
            salu(f"s_add_u32 {sr(reg)}, {sr(reg)}, {sr(S_KV + r)}", R("s", reg) + R("s", S_KV + r), R("s", reg))]
def k_soff(T): return soff(S_SK, T)
def v_soff(T): return soff(S_SV, T)
def q_dma(pc, hh):
    r, qb, tp = pc // 8, (pc >> 1) & 3, pc & 1
    j = 2*tp + hh
    return setm0(S_MQ, (pc % NQS)*2048 + hh*1024 - kq_imm(j)), dma(V_KOFF, S_Q, S_QO + 4*r + qb, kq_imm(j), ("Q", pc))
def qp_dma(qb, j):
    base, off = [(S_MQ, 0), (S_MQ1, 0), (S_MK, 32768), (S_MK, 49152)][qb]
    return setm0(base, off + 1024*j - kq_imm(j)), dma(V_KOFF, S_Q, S_QO + qb, kq_imm(j), ("P", 2*qb + (j >> 1)))
def qp_read(qb, t):
    addr, off = [(V_QADDR, 0), (V_RCP, 0), (V_RCP + 2, 32768), (V_RCP + 2, 49152)][qb]
    return dsr("v", V_O + 16*qb + 4*t, addr + (t & 1), off + 2048*(t >> 1), ("P", 2*qb + (t >> 1)))
def q_read(kap):
    return dsr("v", V_RAW + 4*(kap & 1), V_QADDR + (kap & 1), ((kap >> 1) % NQS)*2048, ("Q", kap >> 1))

def prescale_ops(src, dst_a, pk, tbase=V_T):
    ops = []
    if pk:
        for j in range(4):
            ops.append(valu(f"v_lshlrev_b32 {vr(tbase+2*j)}, 16, {vr(src+j)}", R("v", src+j), R("v", tbase+2*j)))
            ops.append(valu(f"v_and_b32 {vr(tbase+2*j+1)}, 0xffff0000, {vr(src+j)}", R("v", src+j), R("v", tbase+2*j+1)))
        for j in range(4):
            ops.append(valu(f"v_pk_mul_f32 {vr(tbase+2*j,2)}, {vr(tbase+2*j,2)}, {sr(S_C,2)}", R("v", tbase+2*j, 2) + R("s", S_C, 2), R("v", tbase+2*j, 2), "pk"))
        for j in range(4):
            ops.append(vcvt(src+j, tbase+2*j, tbase+2*j+1))
        for j in range(4):
            ops.append(valu(f"v_accvgpr_write_b32 {ar(dst_a+j)}, {vr(src+j)}", R("v", src+j), R("a", dst_a+j)))
    else:
        for j in range(4):
            t0 = tbase + 2*(j & 1)
            ops.append(valu(f"v_lshlrev_b32 {vr(t0)}, 16, {vr(src+j)}", R("v", src+j), R("v", t0)))
            ops.append(valu(f"v_and_b32 {vr(t0+1)}, 0xffff0000, {vr(src+j)}", R("v", src+j), R("v", t0+1)))
            ops.append(valu(f"v_mul_f32 {vr(t0)}, {sr(S_C)}, {vr(t0)}", R("v", t0) + R("s", S_C), R("v", t0)))
            ops.append(valu(f"v_mul_f32 {vr(t0+1)}, {sr(S_C)}, {vr(t0+1)}", R("v", t0+1) + R("s", S_C), R("v", t0+1)))
            ops.append(vcvt(src+j, t0, t0+1))
            ops.append(valu(f"v_accvgpr_write_b32 {ar(dst_a+j)}, {vr(src+j)}", R("v", src+j), R("a", dst_a+j)))
    return ops

BIAS_REG = [60, 61, 63]
def max_ops(x, qb, mt=V_MT, r=0):
    m, t, n = mt, mt + 1, V_NEGM + 4*qb
    ops = [valu(f"v_max3_f32 {vr(m)}, {vr(x)}, {vr(x+1)}, {vr(x+2)}", R("v", x, 3), R("v", m)),
           valu(f"v_max_f32 {vr(m)}, {vr(m)}, {vr(x+3)}", R("v", m) + R("v", x+3), R("v", m)),
           valu(f"v_mov_b32 {vr(t)}, {vr(m)}", R("v", m), R("v", t)),
           "gap2",
           valu(f"v_permlane32_swap_b32 {vr(m)}, {vr(t)}", R("v", m, 2), R("v", m, 2), "perm"),
           valu(f"v_max_f32 {vr(m)}, {vr(m)}, {vr(t)}", R("v", m, 2), R("v", m)),
           valu(f"v_mov_b32 {vr(t)}, {vr(m)}", R("v", m), R("v", t)),
           "gap2",
           valu(f"v_permlane16_swap_b32 {vr(m)}, {vr(t)}", R("v", m, 2), R("v", m, 2), "perm")]
    for j in range(4):
        if qb >= 2 and opt.zero_pad: ops.append(valu(f"v_min3_f32 {vr(n+j)}, -{vr(m)}, -{vr(t)}, s{BIAS_REG[r]}", R("v", m, 2), R("v", n+j)))
        else: ops.append(valu(f"v_min_f32_e64 {vr(n+j)}, -{vr(m)}, -{vr(t)}", R("v", m, 2), R("v", n+j)))
    for j in range(4):
        ops.append(valu(f"v_add_f32 {vr(x+j)}, {vr(n)}, {vr(x+j)}", R("v", n) + R("v", x+j), R("v", x+j)))
    return ops

def soft_ops(x, pd):
    return [vexp(x), vexp(x+1), vexp(x+2), vexp(x+3)], [vcvt(pd, x, x+1), vcvt(pd+1, x+2, x+3)]

def l_ops(r, qb, more):
    a = A_L + 4*qb
    ops = [valu(f"v_accvgpr_read_b32 {vr(V_LT)}, {ar(a)}", R("a", a), R("v", V_LT)),
           valu(f"v_accvgpr_read_b32 {vr(V_LT+1)}, {ar(a+1)}", R("a", a+1), R("v", V_LT+1)),
           valu(f"v_add_f32 {vr(V_LT)}, {vr(V_LT)}, {vr(V_LT+1)}", R("v", V_LT, 2), R("v", V_LT)),
           I(f"v_rcp_f32 {vr(V_RCP+2*qb)}, {vr(V_LT)}", "trans", R("v", V_LT), R("v", V_RCP+2*qb))]
    cm = S_CMP + 2*(qb - 1)
    dst = S_FLAG + 2*r if qb == 0 else cm
    ops.append(valu(f"v_cmp_nlt_f32_e64 {sr(dst,2)}, {vr(V_LT)}, {sr(S_THR)}", R("v", V_LT) + R("s", S_THR), R("s", dst, 2)))
    if opt.pk_epi:
        ops.append(valu(f"v_mov_b32 {vr(V_RCP+2*qb+1)}, {vr(V_RCP+2*qb)}", R("v", V_RCP+2*qb), R("v", V_RCP+2*qb+1)))
    if more:
        ops.append(valu(f"v_accvgpr_write_b32 {ar(a)}, 0", [], R("a", a)))
        ops.append(valu(f"v_accvgpr_write_b32 {ar(a+1)}, 0", [], R("a", a+1)))
    if qb:
        ops.append(salu(f"s_or_b64 {sr(S_FLAG+2*r,2)}, {sr(S_FLAG+2*r,2)}, {sr(cm,2)}", R("s", S_FLAG+2*r, 2) + R("s", cm, 2), R("s", S_FLAG+2*r, 2)))
    return ops

def epi_ops(r, u, qb, park=None):
    b = V_O + 32*u + 8*qb
    rc = V_RCP + 2*qb
    mul = []
    if opt.pk_epi:
        for j in range(0, 8, 2):
            mul.append(valu(f"v_pk_mul_f32 {vr(b+j,2)}, {vr(b+j,2)}, {vr(rc,2)}", R("v", b+j, 2) + R("v", rc, 2), R("v", b+j, 2), "pk"))
    else:
        for j in range(8):
            mul.append(valu(f"v_mul_f32 {vr(b+j)}, {vr(rc)}, {vr(b+j)}", R("v", b+j) + R("v", rc), R("v", b+j)))
    cv = [vcvt(b+j, b+2*j, b+2*j+1) for j in range(4)]
    if park is None:
        st = vstore(b, V_OOFF, S_O, S_QO + 4*r + qb, 64*u, last=(r == opt.nblocks - 1))
    else:
        cv += [valu(f"v_accvgpr_write_b32 {ar(park+j)}, {vr(b+j)}", R("v", b+j), R("a", park+j)) for j in range(4)]
        st = vstore(park, V_OOFF, S_O, S_QO + 4*r + qb, 64*u, "a")
    return mul, cv, st

def line_ops(r, v, qb, park=(None, None)):
    a, b = V_O + 64*v + 8*qb, V_O + 64*v + 32 + 8*qb
    dpp = " row_ror:8 row_mask:0xf bank_mask:0xf"
    ops = [salu(f"s_mov_b64 vcc, {sr(S_LMASK,2)}", [], [VCC])]
    ops += [valu(f"v_cndmask_b32_dpp {vr(a+4+j)}, {vr(b+j)}, {vr(a+j)}, vcc{dpp}", R("v", a+j) + R("v", b+j) + [VCC], R("v", a+4+j), "perm") for j in range(4)]
    last = r == opt.nblocks - 1
    pk = lambda p, x: [valu(f"v_accvgpr_write_b32 {ar(p+j)}, {vr(x+j)}", R("v", x+j), R("a", p+j)) for j in range(4)]
    if park[0] is None: s1 = vstore(a+4, V_OOFF2, S_O, S_QO + 4*r + qb, 128*v, last=last)
    else: ops += pk(park[0], a+4); s1 = vstore(park[0], V_OOFF2, S_O, S_QO + 4*r + qb, 128*v, "a")
    ops2 = [salu(f"s_not_b64 vcc, {sr(S_LMASK,2)}", [], [VCC])]
    ops2 += [valu(f"v_cndmask_b32_dpp {vr(b+4+j)}, {vr(a+j)}, {vr(b+j)}, vcc{dpp}", R("v", a+j) + R("v", b+j) + [VCC], R("v", b+4+j), "perm") for j in range(4)]
    if park[1] is None: s2 = vstore(b+4, V_OOFF2, S_O, S_QO + 4*r + qb, 2048 + 128*v, last=last)
    else: ops2 += pk(park[1], b+4); s2 = vstore(park[1], V_OOFF2, S_O, S_QO + 4*r + qb, 2048 + 128*v, "a")
    return ops, s1, ops2, s2

stamp_n = [0]
def stamp(pro=False):
    if not opt.stamps: return []
    if pro and (opt.sper or opt.sgrp): return []
    n = stamp_n[0]; stamp_n[0] += 1
    ins = 's_memtime' if opt.scyc else 's_memrealtime'
    if opt.probe >= 0:
        assert S_STAMP + 2*n + 3 <= 93
        return [I(f"{ins} {sr(S_STAMP+2*n,2)}", "smem", [], R("s", S_STAMP+2*n, 2))]
    out = [I(f"{ins} {sr(S_STAMP+2*(n%16),2)}", "smem", [], [])]
    if n >= 12: out.append(stamp_save(n - 12))
    return out
def stamp_save(n):
    assert n < 192
    return I(f"v_writelane_b32 v{253 + n//64}, s{S_STAMP+2*(n%16)}, {n%64}", "salu")

def jit_ops():
    return [I(f"global_load_dword a{A_DUMMY}, v{V_JIT}, s[{S_PC}:{S_PC+1}]", "vload", R("v", V_JIT) + R("s", S_PC, 2), []),
            valu(f"v_add_u32 v{V_JIT}, 0x2000, v{V_JIT}", R("v", V_JIT), R("v", V_JIT))]
late_setup = []
def setup():
    c = []
    T = V_TMP
    A = lambda t: c.append(salu(t))
    def V(t, rd, wr): c.append(valu(t, rd, wr))
    c.append(salu("s_cmpk_ge_u32 s2, 0x100"))
    c.append(I("s_cbranch_scc1 L_end", "branch"))
    for srd, off in ((S_Q, 0), (S_K, 8), (S_V, 16), (S_O, 24)):
        c.append(I(f"s_load_dwordx2 s[{srd}:{srd+1}], s[0:1], {off}", "smem", [], R("s", srd, 2)))
    c += stamp()
    if opt.probe >= 0: c.append(I("s_memrealtime s[94:95]", "smem"))
    A(f"s_mov_b32 s{S_WARM}, 0")
    if opt.stubs:
        c.append(I(f"s_getpc_b64 s[{S_PC}:{S_PC+1}]", "salu", [], R("s", S_PC, 2)))
        c.append(I("L_pc:", "label"))
        if opt.head_prefetch:
            V(f"v_and_b32 v{V_LT}, 15, v0", R("v", 0), R("v", V_LT))
            V(f"v_lshrrev_b32 v{V_LT+1}, 6, v0", R("v", 0), R("v", V_LT+1))
            V(f"v_lshl_add_u32 v{V_LT}, v{V_LT+1}, 4, v{V_LT}", R("v", V_LT, 2), R("v", V_LT))
            V(f"v_lshlrev_b32 v{V_LT}, 7, v{V_LT}", R("v", V_LT), R("v", V_LT))
            c.append(I(f"global_load_dword a{A_DUMMY}, v{V_LT}, s[{S_PC}:{S_PC+1}] offset:256", "vload", R("v", V_LT), []))
        A(f"s_add_u32 s{S_PC}, s{S_PC}, L_main - L_pc")
        A(f"s_addc_u32 s{S_PC+1}, s{S_PC+1}, 0")
        if opt.line_prefetch:
            V(f"v_bfe_u32 v{V_LT}, v0, 2, 2", R("v", 0), R("v", V_LT))
            V(f"v_lshrrev_b32 v{V_LT+1}, 6, v0", R("v", 0), R("v", V_LT+1))
            V(f"v_lshl_add_u32 v{V_LT}, v{V_LT}, 2, v{V_LT+1}", R("v", V_LT, 2), R("v", V_LT))
            V(f"v_lshlrev_b32 v{V_LT}, 5, v{V_LT}", R("v", V_LT), R("v", V_LT))
            V(f"v_and_b32 v{V_LT+1}, 3, v0", R("v", 0), R("v", V_LT+1))
            V(f"v_add_u32 v{V_LT}, v{V_LT}, v{V_LT+1}", R("v", V_LT, 2), R("v", V_LT))
            V(f"v_lshlrev_b32 v{V_LT}, 7, v{V_LT}", R("v", V_LT), R("v", V_LT))
            for k in range(opt.line_prefetch):
                c.append(I(f"global_load_dword a{A_DUMMY}, v{V_LT}, s[{S_PC}:{S_PC+1}]" + (f" offset:{512*k}" if k else ""), "vload", R("v", V_LT), []))
    V(f"v_lshrrev_b32 v{T}, 6, v0", R("v", 0), R("v", T))
    V(f"v_and_b32 v{T+1}, 63, v0", R("v", 0), R("v", T+1))
    V(f"v_readfirstlane_b32 s{S_W}, v{T}", R("v", T), R("s", S_W))
    if opt.stubs and opt.stub_early: c.append(nop(4)); c.append(I("STUB_CALLS0", "label"))
    A(f"s_and_b32 s54, s2, 7")
    A(f"s_lshl_b32 s54, s54, 5")
    A(f"s_lshr_b32 s55, s2, 3")
    def bias(r, src="s3"):
        A(f"s_mul_i32 s{BIAS_REG[r]}, {src}, {(f2u(-1e30) - 0x7f800000) & 0xffffffff:#x}")
        A(f"s_add_u32 s{BIAS_REG[r]}, s{BIAS_REG[r]}, 0x7f800000")
    def blk(r):
        A(f"s_add_u32 s3, s55, {32*r}")
        A(f"s_mul_i32 s45, s3, 43691")
        A(f"s_lshr_b32 s45, s45, 17")
        A(f"s_mul_i32 s41, s45, 3")
        A(f"s_sub_u32 s3, s3, s41")
        A(f"s_add_u32 s45, s45, s54")
        A(f"s_lshl_b32 s{S_KV+r}, s45, 17")
        if opt.rot:
            A(f"s_lshr_b32 s{S_ROT[r]}, s45, {opt.rot_sh}")
            A(f"s_lshl_b32 s{S_ROT[r]}, s{S_ROT[r]}, 14")
        A(f"s_mul_i32 s45, s45, 188416")
        A(f"s_lshl_b32 s41, s3, 16")
        A(f"s_add_u32 s45, s45, s41")
        A(f"s_mul_i32 s41, s{S_W}, 12288")
        A(f"s_add_u32 s{S_QO+4*r}, s45, s41")
        A(f"s_add_u32 s{S_QO+4*r+1}, s{S_QO+4*r}, 4096")
        A(f"s_lshl_b32 s3, s3, 2")
        A(f"s_add_u32 s3, s3, s{S_W}")
        A(f"s_add_u32 s3, s3, 5")
        A(f"s_lshr_b32 s3, s3, 4")
        if r: bias(r)
        else: A(f"s_mov_b32 s53, s3")
        A(f"s_mul_i32 s41, s3, 0x70000000")
        A(f"s_add_u32 s41, s41, s{S_QO+4*r}")
        A(f"s_add_u32 s{S_QO+4*r+2}, s41, 8192")
        A(f"s_add_u32 s{S_QO+4*r+3}, s41, 12288")
    L = T + 1
    V(f"v_lshrrev_b32 v{T+6}, 3, v{L}", R("v", L), R("v", T+6))
    V(f"v_and_b32 v{T+4}, 6, v{T+6}", R("v", T+6), R("v", T+4))
    V(f"v_and_b32 v{T+5}, 7, v{L}", R("v", L), R("v", T+5))
    V(f"v_xor_b32 v{T+4}, v{T+4}, v{T+5}", R("v", T+4, 2), R("v", T+4))
    V(f"v_lshlrev_b32 v{T+2}, 8, v{T+6}", R("v", T+6), R("v", T+2))
    V(f"v_lshl_add_u32 v{T+2}, v{T+4}, 4, v{T+2}", R("v", T+4) + R("v", T+2), R("v", T+2))
    V(f"v_lshl_add_u32 v{V_KOFF}, v{T}, 12, v{T+2}", R("v", T) + R("v", T+2), R("v", V_KOFF))
    V(f"v_lshrrev_b32 v{T+3}, 4, v{L}", R("v", L), R("v", T+3))
    V(f"v_and_b32 v{T+4}, 15, v{L}", R("v", L), R("v", T+4))
    V(f"v_lshlrev_b32 v{T+2}, 8, v{T+4}", R("v", T+4), R("v", T+2))
    V(f"v_lshl_add_u32 v{T+2}, v{T+3}, 4, v{T+2}", R("v", T+3) + R("v", T+2), R("v", T+2))
    V(f"v_lshl_add_u32 v{V_OOFF}, v{T}, 12, v{T+2}", R("v", T) + R("v", T+2), R("v", V_OOFF))
    blk(0)
    A(f"s_lshl_b32 s{S_MK}, s{S_W}, 12")
    A(f"s_add_u32 s{S_MK}, s{S_MK}, {KB}")
    for srd, n in ((S_K, 33554432), (S_Q, 48234496), (S_V, 33554432), (S_O, 48234496)):
        A(f"s_mov_b32 s{srd+2}, {n}")
        A(f"s_mov_b32 s{srd+3}, 0x20000")
    A(f"s_mul_i32 s3, s{S_W}, {QW}")
    A(f"s_add_u32 s{S_MQ}, s3, {QB}")
    c.append(wait(lg=0))
    c += stamp(True)
    for what in ("KQ" if opt.k_first else "QK"):
        if what == "K": c += k_soff(0)
        for t in range(4):
            m, d = qp_dma(0, t) if what == "Q" else k_dma(0, t); c += [m, nop(1), d]
    if opt.jit_all:
        A(f"s_lshl_b32 s3, s55, 2")
        A(f"s_add_u32 s3, s3, s{S_W}")
        A(f"s_and_b32 s3, s3, 63")
        A(f"s_lshl_b32 s3, s3, 7")
        V(f"v_lshlrev_b32 v{T+2}, 13, v{T+5}", R("v", T+5), R("v", T+2))
        V(f"v_add_u32 v{T+2}, s3, v{T+2}", R("v", T+2), R("v", T+2))
        c.append(I(f"global_load_dword a{A_DUMMY}, v{T+2}, s[{S_PC}:{S_PC+1}]", "vload", R("v", T+2), []))
    c += stamp(True)
    if opt.stubs and not opt.stub_late:
        for rd in range(1 if opt.stub_early else 0, 5): c.append(I(f"STUB_CALLS{rd}", "label"))
    c += stamp(True)
    A(f"s_lshr_b32 s3, s{S_W}, 1")
    A(f"s_mul_i32 s3, s3, {VPAR + 8 - 8192}")
    A(f"s_add_u32 s3, s3, s{S_MK}")
    A(f"s_add_u32 s{S_MQ1}, s3, {VE + 24576 - KB}")
    for t in range(4):
        m, d = qp_dma(1, t); c += [m, nop(1), d]
    c += stamp(True)
    if opt.jit_every:
        A(f"s_lshl_b32 s3, s55, 2")
        A(f"s_add_u32 s3, s3, s{S_W}")
        A(f"s_and_b32 s3, s3, 63")
        A(f"s_lshl_b32 s3, s3, 7")
        V(f"v_mov_b32 v{V_JIT}, s3", [], R("v", V_JIT))
        for k in range(opt.jit_first): c += jit_ops()
    V(f"v_and_b32 v{T+2}, 2, v{T+6}", R("v", T+6), R("v", T+2))
    V(f"v_lshlrev_b32 v{T+2}, 1, v{T+2}", R("v", T+2), R("v", T+2))
    V(f"v_xor_b32 v{T+2}, v{T+2}, v{T+5}", R("v", T+2) + R("v", T+5), R("v", T+2))
    V(f"v_and_b32 v{T+5}, 4, v{T+6}", R("v", T+6), R("v", T+5))
    V(f"v_add_u32 v{T+5}, v{T+5}, v{T+6}", R("v", T+5, 2), R("v", T+5))
    V(f"v_lshlrev_b32 v{T+5}, 8, v{T+5}", R("v", T+5), R("v", T+5))
    V(f"v_lshl_add_u32 v{T+2}, v{T+2}, 4, v{T+5}", R("v", T+2) + R("v", T+5), R("v", T+2))
    V(f"v_lshl_add_u32 v{V_VOFF}, v{T}, 12, v{T+2}", R("v", T) + R("v", T+2), R("v", V_VOFF))
    assert VE == 0
    A(f"s_lshl_b32 s{S_MV}, s{S_W}, 11")
    V(f"v_and_b32 v{T+2}, 6, v{T+4}", R("v", T+4), R("v", T+2))
    V(f"v_xor_b32 v{T+2}, v{T+2}, v{T+3}", R("v", T+2) + R("v", T+3), R("v", T+2))
    V(f"v_lshlrev_b32 v{T+2}, 4, v{T+2}", R("v", T+2), R("v", T+2))
    V(f"v_lshl_add_u32 v{V_KADDR}, v{T+4}, 7, v{T+2}", R("v", T+4) + R("v", T+2), R("v", V_KADDR))
    V(f"v_xor_b32 v{V_KADDR+1}, 64, v{V_KADDR}", R("v", V_KADDR), R("v", V_KADDR+1))
    for b in range(2):
        V(f"v_add_u32 v{V_QADDR+b}, s{S_MQ}, v{V_KADDR+b}", R("v", V_KADDR+b) + R("s", S_MQ), R("v", V_QADDR+b))
        V(f"v_add_u32 v{V_RCP+b}, s{S_MQ1}, v{V_KADDR+b}", R("v", V_KADDR+b) + R("s", S_MQ1), R("v", V_RCP+b))
        V(f"v_add_u32 v{V_RCP+2+b}, s{S_MK}, v{V_KADDR+b}", R("v", V_KADDR+b) + R("s", S_MK), R("v", V_RCP+2+b))
        V(f"v_add_u32 v{V_KADDR+b}, {KB}, v{V_KADDR+b}", R("v", V_KADDR+b), R("v", V_KADDR+b))
    V(f"v_and_b32 v{T+2}, 1, v{T+3}", R("v", T+3), R("v", T+2))
    V(f"v_mul_u32_u24 v{T+2}, {VPAR}, v{T+2}", R("v", T+2), R("v", T+2))
    V(f"v_lshrrev_b32 v{T+6}, 1, v{T+3}", R("v", T+3), R("v", T+6))
    V(f"v_lshl_add_u32 v{T+2}, v{T+6}, 9, v{T+2}", R("v", T+6) + R("v", T+2), R("v", T+2))
    V(f"v_bfe_u32 v{T+6}, v{L}, 2, 2", R("v", L), R("v", T+6))
    V(f"v_lshl_add_u32 v{T+2}, v{T+6}, 7, v{T+2}", R("v", T+6) + R("v", T+2), R("v", T+2))
    V(f"v_and_b32 v{T+5}, 3, v{L}", R("v", L), R("v", T+5))
    V(f"v_lshl_add_u32 v{T+2}, v{T+5}, 4, v{T+2}", R("v", T+5) + R("v", T+2), R("v", T+2))
    V(f"v_and_b32 v{T+6}, 2, v{T+6}", R("v", T+6), R("v", T+6))
    V(f"v_lshlrev_b32 v{T+6}, 5, v{T+6}", R("v", T+6), R("v", T+6))
    V(f"v_add_u32 v{V_VADDR}, v{T+2}, v{T+6}", R("v", T+2) + R("v", T+6), R("v", V_VADDR))
    V(f"v_xor_b32 v{T+6}, 64, v{T+6}", R("v", T+6), R("v", T+6))
    V(f"v_add_u32 v{V_VADDR+1}, v{T+2}, v{T+6}", R("v", T+2) + R("v", T+6), R("v", V_VADDR+1))
    V(f"v_and_b32 v{T+2}, 1, v{L}", R("v", L), R("v", T+2))
    V(f"v_mul_u32_u24 v{T+2}, 0xaaaa, v{T+2}", R("v", T+2), R("v", T+2))
    V(f"v_add_u32 v{T+2}, 0x4444, v{T+2}", R("v", T+2), R("v", T+2))
    V(f"v_lshl_add_u32 v{V_IDX}, v{T+2}, 16, v{T+2}", R("v", T+2), R("v", V_IDX))
    V(f"v_mov_b32 v{T+2}, 0x3f803f80", [], R("v", T+2))
    for j in range(4): V(f"v_accvgpr_write_b32 a{A_ONE+j}, v{T+2}", R("v", T+2), R("a", A_ONE+j))
    for j in range(16): V(f"v_accvgpr_write_b32 a{A_L+j}, 0", [], R("a", A_L+j))
    if opt.full_line:
        V(f"v_and_b32 v{T+2}, 8, v{L}", R("v", L), R("v", T+2))
        V(f"v_mul_u32_u24 v{T+2}, 248, v{T+2}", R("v", T+2), R("v", T+2))
        V(f"v_sub_u32 v{V_OOFF2}, v{V_OOFF}, v{T+2}", R("v", V_OOFF) + R("v", T+2), R("v", V_OOFF2))
        A(f"s_mov_b32 s{S_LMASK}, 0x00ff00ff")
        A(f"s_mov_b32 s{S_LMASK+1}, 0x00ff00ff")
    bias(0, "s53")
    if getattr(opt, "wb", 0): A(f"s_add_u32 s{S_WB}, s55, s{S_W}")
    A(f"s_mov_b32 s{S_C}, {CSCALE:#x}")
    A(f"s_mov_b32 s{S_C+1}, {CSCALE:#x}")
    A(f"s_mov_b32 s{S_THR}, {0 if opt.force_slow else THR:#x}")
    for j in range(6): A(f"s_mov_b32 s{S_FLAG+j}, 0")
    c += stamp(True)
    if opt.stubs:
        for rd in range(opt.stub_n0): c.append(I(f"STUB_CALLS{rd}", "label"))
    if not opt.q2_late:
        for t in range(4):
            m, d = qp_dma(2, t); c += [m, nop(1), d]
    c += stamp(True)
    late_setup.clear()
    n0 = len(c); blk(1); blk(2); late_setup.extend(c[n0:]); del c[n0:]
    if opt.stubs:
        c.append(I("s_branch L_main", "branch"))
        c.append(I(".p2align 12", "label"))
        c.append(I("L_main:", "label"))
    return c

def flat(ops):
    out = []
    for o in ops:
        out.append(nop(2) if o == "gap2" else o)
    return out

class Tile(list): pass
def issue_tile(kind, Tt):
    c = Tile(v_soff(Tt) if kind == "V" else k_soff(Tt)); c.n = len(c)
    for t in range(4): c += list((v_dma if kind == "V" else k_dma)(Tt, t))
    return c

def weave(ops, pairs, every, start=0):
    out = []; pairs = list(pairs)
    for k, o in enumerate(ops):
        if pairs and k >= start and (k - start) % every == 0:
            p = pairs.pop(0); out += p[:-1] + [o, p[-1]]
        else: out.append(o)
    assert not pairs
    return out

def prologue():
    c = []
    KT = A_Q[1]
    X = lambda qb, kb: V_O + 64 + 16*qb + 4*kb
    def chain(qb, kb):
        return [mfma("v", X(qb, kb), "a", KT + 16*kb + 4*t, "a", q_reg(0, qb, t), (("0" if kb == 0 else V_NEGM + 4*qb) if t == 0 else None)) for t in range(4)]
    def soft(qb, kb):
        e, cv = soft_ops(X(qb, kb), p_reg(0, qb, kb >> 1) + 2*(kb & 1)); return e + cv
    def B(qb): return [o for t in range(4) for o in prescale_ops(V_O + 16*qb + 4*t, q_reg(0, qb, t), True)]
    def D(qb): return [o for o in max_ops(X(qb, 0), qb, V_S) if not isinstance(o, str)]
    def dep(lst, op):
        for x in lst: x.after.append(op)
        return lst
    def paced(tile, anchors):
        rest = tile[tile.n:]
        for k in range(4): dep(rest[2*k:2*k+2], anchors[k])
        return tile
    ch = lambda qb: [x for kb in (1, 2, 3) for x in chain(qb, kb)]
    b0, b1, b2, b3 = B(0), B(1), B(2), B(3)
    c += stamp(True) + [wait(vm="auto", need=[("P", 0)])] + stamp(True) + [qp_read(0, t) for t in (0, 1)]
    c += [wait(vm="auto", need=[("P", 1)])] + [qp_read(0, t) for t in (2, 3)] + [wait(lg="auto")]
    if opt.q2_late:
        b0w = weave(b0[:40], [list(qp_dma(2, t)) for t in range(4)], 9, 4) + [wait(lg="auto")] + weave(b0[40:], [list(qp_dma(3, t)) for t in range(4)], 9, 4)
        c += b0w
    else:
        b0w = weave(b0, [list(qp_dma(3, t)) for t in range(4)], 16, 10)
        c += b0w[:44] + [wait(lg="auto")] + b0w[44:]
    c += stamp(True)
    if opt.stubs:
        for rd in range(opt.stub_n1): c.append(I(f"STUB_CALLS{opt.stub_n0 + rd}", "label"))
    c += stamp(True)
    c += [wait(vm="auto", need=[("K", 0)]), barrier()]
    c += stamp(True)
    c += [k_read(0, kb, t, dest=KT + 16*kb + 4*t) for kb in range(4) for t in range(4)]
    first, second = (("V", 0), ("K", 1)) if opt.head else (("K", 1), ("V", 0))
    if not opt.k1_late: c += listsched(issue_tile(*first)[:-4])[0]
    c.append(wait(lg="auto"))
    s0 = soft(0, 0) + soft(0, 1) + soft(0, 2) + soft(0, 3)
    s1 = soft(1, 0) + soft(1, 1) + soft(1, 2) + soft(1, 3)
    s2 = soft(2, 0) + soft(2, 1) + soft(2, 2) + soft(2, 3)
    def fetch(qb, anchor, anchor2, first):
        w = wait(lg="auto"); dep(first, w)
        return dep([wait(vm="auto", need=[("P", 2*qb), ("P", 2*qb + 1)])], anchor) + [qp_read(qb, t) for t in range(4)] + dep([w], anchor2)
    c3 = ch(3); c0 = ch(0)
    k1 = issue_tile(*first)[-4:]
    wk = wait(lg=0); d0 = D(0); c00 = chain(0, 0)
    seq = c00 + dep([wk], c00[3]) + d0 + dep(c0[:1], wk) + c0[1:]
    if not opt.k1_late: seq += dep(k1[:2], c0[0]) + dep(k1[2:], c0[4])
    seq += s0[:12] + fetch(1, c0[8], s0[11], b1[:8]) + b1
    if opt.k1_late: seq += paced(issue_tile(*first), [b1[20], b1[40], b1[60], b1[79]])
    if opt.pro_order == 0:
        seq += chain(1, 0) + s0[12:] + fetch(2, b1[70], s0[16], b2[:8]) + D(1) + ch(1)
        seq += b2 + paced(issue_tile("V", 0), [b2[0], b2[20], b2[40], b2[60]])
        seq += chain(2, 0) + s1 + fetch(3, b2[70], s1[8], b3[:8]) + D(2) + ch(2)
        seq += b3
    else:
        h = opt.pro_order
        seq += chain(1, 0) + s0[12:] + D(1) + ch(1) + s1[:h] + fetch(2, s1[h-7], s1[h-1], b2[:8])
        seq += b2 + paced(issue_tile(*second), [b2[0], b2[20], b2[40], b2[60]])
        seq += chain(2, 0) + s1[h:] + D(2) + ch(2) + s2[:h] + fetch(3, s2[h-7], s2[h-1], b3[:8])
        seq += b3
        s2 = s2[h:]
    if getattr(opt, "first_k", 2) == 3: seq += paced(issue_tile("K", 2), [b3[0], b3[12], b3[24], b3[36]])
    if getattr(opt, "first_v", 1) == 2: seq += paced(issue_tile("V", 1), [b3[40], b3[43], b3[46], b3[49]] if opt.head else [b3[48], b3[60], b3[70], b3[79]])
    if opt.head:
        seq += dep([wait(vm="auto", lg=0, need=[("V", 0)]), barrier()], b3[50])
        seq += [v_read(0, n >> 2, (n >> 1) & 1, n & 1) for n in range(10)] + s2
    else:
        seq += chain(3, 0) + s2 + D(3) + c3
        seq += dep([wait(vm="auto", lg=0, need=[("K", 1), ("V", 0)]), barrier()], c3[0])
        seq += [v_read(0, n >> 2, (n >> 1) & 1, n & 1) for n in range(4)] + [k_read(1, 0, t) for t in range(4)]
        seq += [v_read(0, n >> 2, (n >> 1) & 1, n & 1) for n in range(4, 10)] + [k_read(1, 1, 0)]
        seq += soft(3, 0) + soft(3, 1) + soft(3, 2) + soft(3, 3)
    p2, t2 = listsched(order_fix(seq), [x for x in c[-30:] if x.kind != "label"])
    if opt.stamps:
        out = []
        for x in p2:
            if x.kind == "wait" and x.vm is not None: out += stamp(True) + [x] + stamp(True)
            else: out.append(x)
        p2 = out
    c += p2
    c.append(wait(lg="auto"))
    return c

def order_fix(seq):
    seen = set()
    for x in seq:
        assert all(id(a) in seen for a in x.after), x
        seen.add(id(x))
    return seq

VALK = ("valu", "trans", "pk", "perm")
def edge_dist(w, x, rg, kind):
    if kind == "raw":
        if w.kind in ("mfma", "smfmac"):
            need = 8 if w.kind == "mfma" else 12
            if x.kind in ("mfma", "smfmac") and rg in x.cread and rg not in x.rd:
                return 0 if (x.cread == w.wr and x.kind == w.kind) else need - 2
            return need
        if w.kind in VALK:
            if rg[0] == "s": return 5 if x.kind in ("dma", "vload", "vstore") else (2 if x.kind in VALK else 0)
            if x.kind in ("mfma", "smfmac", "perm"): return 2
            if w.kind == "trans" and x.kind in VALK and x.kind != "trans": return 1
        if w.kind == "salu" and rg[0] == "m" and x.kind == "dma": return 1
        return 0
    if kind == "waw":
        if w.kind in ("mfma", "smfmac"):
            need = 8 if w.kind == "mfma" else 12
            if x.kind in ("mfma", "smfmac"): return 0 if x.wr == w.wr else need - 2
            return need
        return 0
    if rg in w.cread and x.kind in VALK: return 3 if w.kind == "mfma" else 7
    if w.kind == "vstore" and rg in w.rd[:4]: return 2
    return 0

def listsched(ops, pre=()):
    allops = list(pre) + list(ops); n0 = len(pre); n = len(allops)
    deps = [dict() for _ in range(n)]
    lw = {}; lr = defaultdict(list); lastmem = None
    for k, x in enumerate(allops):
        def add(p, d): deps[k][p] = max(deps[k].get(p, 0), d)
        for rg in x.rd + x.cread:
            if rg in lw: add(lw[rg], edge_dist(allops[lw[rg]], x, rg, "raw"))
        for rg in x.wr:
            if rg in lw: add(lw[rg], edge_dist(allops[lw[rg]], x, rg, "waw"))
            for p in lr[rg]:
                if p != k: add(p, edge_dist(allops[p], x, rg, "war"))
        if x.kind in ("dma", "vload", "vstore", "ds", "wait", "barrier", "smem"):
            if lastmem is not None: add(lastmem, 0)
            lastmem = k
        for a in x.after: add(next(i for i, y in enumerate(allops) if y is a), 0)
        for rg in x.wr: lw[rg] = k; lr[rg] = []
        for rg in x.rd + x.cread: lr[rg].append(k)
    pos = {}; cur = 0
    for k in range(n0): pos[k] = cur; cur += allops[k].nops
    out = []; left = list(range(n0, n)); t = 0; tm = -100; prev = None
    cost = {"mfma": 8, "smfmac": 8, "trans": 8, "vstore": 12}
    while left:
        ready = [k for k in left if all(p in pos and cur - pos[p] - allops[p].nops >= d for p, d in deps[k].items())]
        pick = None
        if ready:
            mf = [k for k in ready if allops[k].kind in ("mfma", "smfmac")]
            ot = [k for k in ready if k not in mf]
            aftermf = prev is not None and prev.kind in ("mfma", "smfmac", "salu", "wait", "ds", "dma", "vstore", "barrier")
            mem = [k for k in ot if allops[k].kind in ("ds", "dma", "vstore", "vload")]
            sc = [k for k in ot if allops[k].kind in ("salu", "wait", "barrier", "smem")]
            va = [k for k in ot if k not in mem and k not in sc]
            vnp = [k for k in va if allops[k].kind != "pk" or t - tm >= 24]
            if mf and (t - tm >= 16 or not (vnp or mem or sc)): pick = mf[0]
            elif sc: pick = sc[0]
            elif mem and (aftermf or allops[mem[0]].after or not mf and not any(allops[k].kind in ("mfma", "smfmac") for k in left) or not vnp): pick = mem[0]
            elif vnp: pick = vnp[0]
            elif va: pick = va[0]
            else: pick = ready[0]
        if pick is None:
            x = nop(1); out.append(x); cur += 1; t += 4; prev = x; continue
        x = allops[pick]
        if x.kind in ("mfma", "smfmac"): t = max(t, tm + 16); tm = t
        if x.kind == "pk": t = max(t, tm + 24)
        pos[pick] = cur; cur += x.nops; t += cost.get(x.kind, 4)
        out.append(x); left.remove(pick); prev = x
    return out, t

COST = {"valu": 1, "trans": 2, "pk": 1, "perm": 1, "ds": 1, "dma": 1, "vstore": 3, "vload": 1}
class Gap:
    def __init__(s, m): s.m, s.shadow, s.mem, s.valu = m, None, [], []
    def load(s): return sum(COST[o.kind] for o in s.mem + s.valu)
    def emit(s):
        return [s.m] + ([s.shadow] if s.shadow else []) + s.mem + s.valu

NT = lambda: 8 * opt.nblocks

class Sched:
    def __init__(s):
        s.groups = []
        s.cur = defaultdict(int)
        s.gaps = []
        s.gstart = []
    def add_group(s, gaps):
        s.gstart.append(len(s.gaps)); s.groups.append(gaps); s.gaps += gaps
    def rng(s, G): return s.gstart[G], s.gstart[G] + len(s.groups[G])
    def put_valu(s, stream, G, op, mingap=0, fat=False):
        a, b = s.rng(G); lo = max(a + mingap, s.cur[stream])
        while lo >= b:
            G += 1; a, b = s.rng(G)
        pick = None
        if not fat:
            for g in range(lo, b):
                if s.gaps[g].load() + COST[op.kind] <= 2: pick = g; break
            if pick is None:
                pick = min(range(lo, b), key=lambda g: (s.gaps[g].load(), g))
        else: pick = lo
        s.gaps[pick].valu.append(op); s.cur[stream] = pick
        return pick
    def put_mem(s, stream, G, op, allowed, pre=None):
        a, b = s.rng(G)
        for gi, si in allowed:
            g = a + gi
            if g >= b or g <= s.cur[stream]: continue
            if any(o.kind in ("dma", "vstore") for o in s.gaps[g].mem): continue
            if pre is not None:
                sg = a + si
                if s.gaps[sg].shadow is not None: continue
                s.gaps[sg].shadow = pre
            s.gaps[g].mem.append(op); s.cur[stream] = g
            return g
        raise AssertionError(("no mem slot", stream, G, op))
    def put_shadow(s, G, op, lo=0, hi=None, stream=None):
        a, b = s.rng(G)
        start = a + lo
        if stream is not None: start = max(start, s.cur[stream] + 1)
        end = b if hi is None else a + hi
        g = start
        while True:
            if g >= end and hi is not None: raise AssertionError(("no shadow", G, op))
            if s.gaps[g].shadow is None and not (g + 1 in s.gstart_set or g + 1 == len(s.gaps)):
                s.gaps[g].shadow = op
                if stream is not None: s.cur[stream] = g
                return g
            g += 1

def fatten(S, G):
    g4, g5 = S.groups[G][4], S.groups[G][5]
    if [o.kind for o in g4.valu] == ["trans"] and [o.kind for o in g5.valu] == ["trans"] and not g4.mem and not g5.mem:
        g4.valu.append(g5.valu.pop()); return True
    return False

def spread(n, lo, hi):
    return [lo + (k * (hi - lo + 1)) // n for k in range(n)]

def body():
    nt = NT(); nb = opt.nblocks
    S = Sched()
    for T in range(nt):
        r, j = T // 8, T % 8
        hasqk = T + 1 < nt
        smf = {1: [0, 1], 2: [2, 3]} if j == 7 else {2: [0], 4: [1], 6: [2], 8: [3]}
        for i in range(16):
            gaps = []
            if hasqk:
                T1 = T + 1; r1 = T1 // 8; kb, qb = i >> 2, i & 3
                special = (T1 % 8 == 0 and kb == 0)
                d = p_reg(T1, qb, 1) if special else V_S + 4*(i & 1)
                for t in range(4):
                    cc = None if t else ("0" if special else V_NEGM + 4*qb)
                    gaps.append(Gap(mfma("v", d, "a", k_reg(kb, t), "a", q_reg(r1, qb, t), cc)))
            db = i >> 1
            for qb in (2*(i & 1), 2*(i & 1) + 1):
                for ks in range(2):
                    gaps.append(Gap(mfma("v", o_reg(db, qb), "a", v_reg(db, ks), "v", p_reg(T, qb, ks), "0" if (j == 0 and ks == 0) else None)))
            for qb in smf.get(i, []):
                gaps.append(Gap(smfmac(qb, p_reg(T, qb, 0))))
            S.add_group(gaps)
    S.gstart_set = set(S.gstart)
    for T in range(nt):
        hasqk = T + 1 < nt
        for i in range(16):
            G = 16*T + i; gp = S.groups[G]
            for n in (2*G + 10, 2*G + 11):
                Tv = n // 32
                if Tv < nt:
                    rem = n % 32
                    gp[0].mem.append(v_read(Tv, rem >> 2, (rem >> 1) & 1, rem & 1))
            kk = ((i + 1) >> 2) + 1; tt = (i + 1) & 3
            Tk = T + 1 if kk < 4 else T + 2
            if Tk < nt: gp[1].mem.append(k_read(Tk, kk & 3, tt))
            if i == 0: Tu, iu = T, 15
            else: Tu, iu = T + 1, i - 1
            if Tu < nt and not (T == 0 and i == 0) and not (Tu % 8 == 0 and iu < 4):
                kb, qb = iu >> 2, iu & 3
                e, cv = soft_ops(V_S + 4*(iu & 1), p_reg(Tu, qb, kb >> 1) + 2*(kb & 1))
                if hasqk:
                    for k in range(4): gp[2 + k].valu.append(e[k])
                    gp[6].valu.append(cv[0]); gp[7].valu.append(cv[1])
                else:
                    gp[0].valu += e[:1]; gp[1].valu += e[1:3]; gp[2].valu += e[3:] + cv[:1]; gp[3].valu += cv[1:]
            need = None; lg = "auto"; vm = None
            if i == 10:
                need = [x for x in (("K", T + 2), ("V", T + 1)) if x[1] < nt]
                vm = "auto" if need else None; lg = 0
            gp[-1].shadow = wait(vm=vm, lg=lg, need=need)
            if i == 11: gp[0].shadow = barrier()
    DM = [(1, 1), (6, 5)]
    for T in range(1, nt):
        lst = []
        if T + 5 < nt: lst += [k_dma(T + 5, t) for t in range(4)]; S.put_shadow(16*T + 10, k_soff(T + 5), 2, 6)
        if T + 4 < nt: lst += [v_dma(T + 4, u) for u in range(4)]; S.put_shadow(16*T + 10, v_soff(T + 4), 2, 6)
        for k, (m, d) in enumerate(lst):
            S.put_mem("kv", 16*T + 11 + k // 2, d, [DM[k & 1]], pre=m)
    extra = [("V", 1, 0), ("K", 2, 2), ("V", 2, 5), ("K", 3, 7), ("K", 4, 11), ("V", 3, 13), ("K", 5, 18), ("V", 4, 20)]
    for kind, Tt, G in extra:
        so = k_soff(Tt) if kind == "K" else v_soff(Tt)
        if G == 0: S.groups[0][0].shadow = so
        else: S.put_shadow(G - 1, so, 2, 5)
        for t in range(4):
            m, d = (k_dma if kind == "K" else v_dma)(Tt, t)
            S.put_mem("kv0", G + t // 2, d, [DM[t & 1]], pre=m)
    for o in late_setup: S.put_shadow(0, o, 0, stream="late")
    assert S.cur["late"] < S.gstart[15]
    if nb > 1:
        for k, G in enumerate((15, 15, 16, 16, 17, 17, 22)):
            m, d = q_dma(16 + k); S.put_mem("qd", G, d, DM, pre=m)
    if opt.jit_every:
        for k in range(opt.jit_first, 8):
            G = int((k - opt.jit_first) * opt.jit_every * 1.6) + opt.jit_g0
            while G % 16 in (10, 11, 12, 13, 14, 15, 0, 1): G += 1
            ld, ad = jit_ops()
            g = S.put_mem("jit", G, ld, [(6, None), (1, None), (7, None)])
            S.cur["jit"] = g; S.put_valu("jit", G, ad)
    for r in range(nb - 1):
        T = 8*r + 7
        for qb in range(4):
            G = 16*T + 1 + qb
            x = p_reg(T + 1, qb, 1)
            e, cv = soft_ops(x, p_reg(T + 1, qb, 0))
            ops = max_ops(x, qb) + e + ["gap1"] + cv
            a, b = S.rng(G)
            pos = [1, 1, 2, 2, None, 3, 3, 3, None, 4, 4, 4, 5, 5, 5, 5, 5, 6, 6, 6, 6, 7, None, 7, 7]
            pos = [1, 1, 2, None, 3, 3, 3, None, 4, 4, 4, 4, 4, 5, 5, 5, 5, 5, 6, 6, 6, None, 7, 7]
            assert len(pos) == len(ops), (len(pos), len(ops))
            for p_, o in zip(pos, ops):
                if isinstance(o, str): continue
                gp = S.groups[G][p_]
                if o.kind == "perm" and gp.shadow is None: gp.shadow = nop(1)
                gp.valu.append(o)
    tail = []; stores = []
    for r in range(nb):
        T = 8*r + 7; last = (r == nb - 1)
        for qb in range(4):
            G = 16*T + 3 + qb//2
            for o in l_ops(r, qb, not last):
                if o.kind == "salu": S.put_shadow(G + 2, o, stream="lor")
                else: S.put_valu("l", G, o)
        items = [(u, qb) for u in range(4) for qb in range(4)]
        avail = {it: 16*T + max(4*it[0] + 3 + (it[1] >> 1), 5 + (it[1] >> 1)) for it in items}
        plan = []
        if last:
            for u, qb in items: plan.append(((u, qb), 16*T + 4*u + 5 + qb, 16*T + 4*u + 6 + qb, None))
        else:
            dead = {it: 16*T + 16 + 4*it[0] + (it[1] >> 1) for it in items}
            slots = [16*T + opt.st_g0 + (opt.st_sp * n) // 10 for n in range(16)]
            left = list(items); direct = []
            for sl in slots:
                cand = [it for it in left if avail[it] + 1 <= sl and sl < dead[it]]
                if not cand: continue
                it = min(cand, key=lambda x: dead[x]); left.remove(it); direct.append((it, sl))
            used = [sl for _, sl in direct]
            rest = [sl for sl in slots if sl not in used]
            assert all(sl > max(used) for sl in rest), (slots, used)
            for it, sl in direct: plan.append((it, sl - 1, sl, None))
            busy = defaultdict(int)
            for it, sl in direct: busy[sl - 1] += 1
            for n, (it, sl) in enumerate(zip(left, rest)):
                g = min(range(avail[it], dead[it]), key=lambda x: (busy[x], -x)); busy[g] += 1
                plan.append((it, g, sl, A_PARK + 4*n))
            assert len(left) <= 10
        for (u, qb), G, Gs, park in sorted(plan, key=lambda x: x[1]):
            mul, cv, st = epi_ops(r, u, qb, park)
            if G >= 16*nt:
                tail.append((mul, cv, st)); continue
            ng = len(S.groups[G])
            if opt.pk_epi and ng >= 8 and fatten(S, G):
                S.groups[G][4].valu += mul
                S.cur["epi"] = S.gstart[G] + 5
                for o in cv: S.put_valu("epi", G, o)
                assert park is not None or S.cur["epi"] < S.gstart[G + 1]
                assert last or S.cur["epi"] < S.gstart[dead[(u, qb)]] + 4
            elif opt.pk_epi:
                S.groups[G][ng - 2].valu += mul
                S.groups[G][ng - 1].valu += cv
            else:
                S.cur["epi"] = 0
                for o in mul + cv: S.put_valu("epi", G, o)
            if Gs >= 16*nt: tail.append(([], [], st)); continue
            stores.append((Gs, st))
    for Gs, st in sorted(stores, key=lambda x: x[0]):
        nn = len(S.groups[Gs])
        S.put_mem("epist", Gs, st, [(7, None), (6, None), (1, None), (2, None)] if nn >= 8 else [(1, None), (2, None), (3, None)])
    for r in range(nb - 1):
        rd = spread(16, 16*(8*r + 1) + (10 if r == 0 else 0), 16*(8*r + 6) + 8)
        for k in range(16):
            kap = 16*(r + 1) + k; G = rd[k]
            S.put_shadow(G - 1, wait(vm="auto", need=[("Q", kap)]), 2, 7)
            S.groups[G][1].mem.append(q_read(kap))
            nxt = rd[k + 1] if k < 15 else G + 6
            ops = prescale_ops(V_RAW + 4*(kap & 1), q_reg(r + 1, k >> 2, k & 3), opt.pk_pre)
            last_g = min(nxt, G + 6)
            if opt.pk_pre:
                gf = G + 1 + (last_g - G) * 8 // 16
                for o, g in zip(ops[:8], spread(8, G + 1, max(G + 1, gf - 1))): S.put_valu("pre", g, o)
                while S.cur["pre"] >= S.gstart[gf] + 4 or not fatten(S, gf): gf += 1
                S.groups[gf][4].valu += ops[8:12]; S.cur["pre"] = S.gstart[gf] + 5
                for o, g in zip(ops[12:], [gf, gf] + spread(6, gf, max(gf, last_g))): S.put_valu("pre", g, o)
            else:
                for o, g in zip(ops, spread(len(ops), G + 1, last_g)): S.put_valu("pre", g, o)
            k2 = kap + NQS
            if k2 < 16*nb:
                g = G + 2
                while True:
                    if g % 16 in (15, 0, 1):
                        try:
                            m, d = q_dma(k2)
                            S.put_mem("qd", g, d, DM, pre=m); break
                        except AssertionError: pass
                    g += 1
    c = []
    for G, gp in enumerate(S.groups):
        if opt.sgrp:
            gs = [int(x) for x in opt.sgrp.split('_')]
            if G in gs: c += stamp()
            for g in gp:
                e = g.emit()
                if G in gs and g.shadow is not None and g.shadow.kind == "wait" and g.shadow.vm is not None:
                    e = e[:1] + stamp() + e[1:2] + stamp() + e[2:]
                c += e
            continue
        if G % 16 == 0 and ((G // 16) in [int(x) for x in opt.sper.split('_')] if opt.sper else (G // 16) % 8 in (0, 1, 7)): c += stamp()
        for g in gp: c += g.emit()
    c += stamp()
    c.append(nop(8))
    for mul, cv, st in tail: c += mul + cv + [st]
    c += stamp()
    per = [sum(max(16, 8 + 4*g.load()) for gp in S.groups[16*T:16*T+16] for g in gp) for T in range(nt)]
    stats = dict(per=per, gaps=len(S.gaps), slots=sum(g.load() for g in S.gaps),
                 est_cycles=sum(max(16, 8 + 4*g.load()) for g in S.gaps),
                 under=sum(max(0, 2 - g.load()) for g in S.gaps), over=sum(max(0, g.load() - 2) for g in S.gaps))
    return c, stats

def resolve(code):
    n = len(code)
    isds = [x.kind == "ds" for x in code]
    isvm = [x.kind in ("dma", "vload", "vstore") for x in code]
    lgw = [k for k, x in enumerate(code) if x.kind == "wait" and x.lg is not None]
    vmw = [k for k, x in enumerate(code) if x.kind == "wait" and x.vm is not None]
    def touched(x): return x.rd + x.wr + x.cread
    lastload = {}
    writer_at = [None]*n
    for k, x in enumerate(code):
        dep = set()
        for rg in touched(x):
            if rg in lastload: dep.add(lastload[rg])
        writer_at[k] = dep
        for rg in x.wr: lastload.pop(rg, None)
        if x.kind in ("ds", "vload"):
            for rg in x.wr: lastload[rg] = k
    for lst, flag, attr, kind in ((lgw, isds, "lg", "ds"), (vmw, isvm, "vm", "vload")):
        for a, w in enumerate(lst):
            x = code[w]
            if getattr(x, attr) != "auto": continue
            end = lst[a + 1] if a + 1 < len(lst) else n
            young = -1
            for k in range(w + 1, end):
                for p in writer_at[k]:
                    if code[p].kind == kind and p < w: young = max(young, p)
            if attr == "vm" and x.need:
                for k in range(w):
                    if code[k].kind == "dma" and code[k].tag in x.need: young = max(young, k)
            if young < 0: setattr(x, attr, None)
            else:
                cnt = sum(flag[young + 1:w])
                setattr(x, attr, min(cnt, 15 if attr == "lg" else 63))
    for x in code:
        if x.kind == "wait":
            parts = []
            if x.vm is not None: parts.append(f"vmcnt({x.vm})")
            if x.lg is not None: parts.append(f"lgkmcnt({x.lg})")
            x.text = "s_waitcnt " + " ".join(parts) if parts else None
    return [x for x in code if x.text is not None]

def check(code):
    errs = []
    pos = 0
    P = []
    for x in code:
        P.append(pos); pos += 0 if x.kind == "label" else x.nops
    def dist(a, b): return P[b] - P[a] - code[a].nops
    lastw = {}; lastc = {}; laststore = {}
    dsq = []; vmq = []; done = set()
    smem_pending = set()
    dma_by_tag = defaultdict(list); read_by_tag = defaultdict(list)
    done_at = {}; barriers = []
    def slot_of(tag):
        if tag[0] == "P": return [("Q", 0), ("Q", 1), tag, ("V", 3), tag, ("K", 2), tag, ("K", 3)][tag[1]]
        return (tag[0], tag[1] & 3) if tag[0] in "KV" else ("Q", tag[1] % NQS)
    shared = lambda tag: tag[0] in "KV" or tag == ("P", 3)
    slot_last = {}
    VAL = ("valu", "trans", "pk", "perm")
    for k, x in enumerate(code):
        if x.kind == "wait":
            if x.lg is not None:
                while len(dsq) > x.lg: p = dsq.pop(0); done.add(p); done_at[p] = k
                if x.lg == 0: smem_pending.clear()
            if x.vm is not None:
                while len(vmq) > x.vm: p = vmq.pop(0); done.add(p); done_at[p] = k
            continue
        if x.kind == "barrier": barriers.append(k); continue
        def E(msg, p): errs.append(f"[{k}] {x.text}  <- [{p}] {code[p].text}: {msg}")
        for rg in x.rd + x.cread + x.wr:
            p = lastw.get(rg)
            if p is None: continue
            w = code[p]; d = dist(p, k)
            isread = rg in x.rd or rg in x.cread
            if w.kind in ("ds", "vload"):
                if p not in done: E("load not waited", p)
            elif w.kind in ("mfma", "smfmac"):
                need = 8 if w.kind == "mfma" else 12
                if x.kind in ("mfma", "smfmac"):
                    if rg in x.rd:
                        if d < need: E("mfma D->A/B", p)
                    elif rg in x.cread:
                        if not (x.cread == w.wr and x.kind == w.kind) and d < need - 2: E("mfma D->C overlap", p)
                    else:
                        if d < need - 2 and x.wr != w.wr: E("mfma D->D", p)
                elif d < need: E("mfma D->valu/mem", p)
            elif w.kind in VAL:
                if rg[0] in "va":
                    if x.kind in ("mfma", "smfmac") and isread and d < 2: E("valu->mfma", p)
                    if x.kind == "perm" and isread and d < 2: E("valu->permlane", p)
                    if w.kind == "trans" and x.kind in VAL and x.kind != "trans" and isread and d < 1: E("trans->valu", p)
                    if "readfirstlane" in x.text and d < 1: E("valu->readfirstlane", p)
                if rg[0] == "s":
                    if x.kind in ("dma", "vload", "vstore") and d < 5: E("valu sgpr->vmem", p)
                    if x.kind in VAL and isread and d < 2: E("valu sgpr->valu", p)
            elif w.kind == "salu":
                if rg[0] == "m" and x.kind == "dma" and d < 1: E("m0->dma", p)
        for rg in x.wr:
            p = lastc.get(rg)
            if p is not None and x.kind in VAL and dist(p, k) < (3 if code[p].kind == "mfma" else 7): E("mfma C read -> valu write", p)
            p = laststore.get(rg)
            if p is not None and dist(p, k) < 2: E("store data WAR", p)
        if x.kind == "ds" and x.tag:
            ds = dma_by_tag[x.tag]
            if len(ds) != (2 if x.tag[0] in "QP" else 4): errs.append(f"[{k}] {x.text}: tile {x.tag} has {len(ds)} dma")
            for p in ds:
                if p not in done: E("dma not waited", p)
                elif x.tag[0] in "KV" and not any(done_at[p] < b < k for b in barriers): E("no barrier after dma wait", p)
            if slot_last.get(slot_of(x.tag)) != x.tag: errs.append(f"[{k}] {x.text}: slot holds {slot_last.get(slot_of(x.tag))} not {x.tag}")
            read_by_tag[x.tag].append(k)
        if x.kind == "dma":
            old = slot_last.get(slot_of(x.tag))
            if old is not None and old != x.tag:
                rs = read_by_tag[old]
                exp = {"K": 16, "V": 32, "Q": 2, "P": 2}[old[0]]
                if len(rs) != exp and len(rs) != 2*exp: errs.append(f"[{k}] {x.text}: overwrites {old} after {len(rs)} reads")
                for p in rs:
                    if p not in done: E("slot WAR: read not waited", p)
                    elif shared(old) and not any(done_at[p] < b < k for b in barriers): E("slot WAR: no barrier", p)
            slot_last[slot_of(x.tag)] = x.tag
            dma_by_tag[x.tag].append(k)
        if x.kind == "ds": dsq.append(k)
        if x.kind in ("dma", "vload", "vstore"):
            vmq.append(k)
            if len(vmq) > 63: errs.append(f"[{k}] more than 63 vmem in flight")
        for rg in x.wr: lastw[rg] = k
        for rg in x.cread: lastc[rg] = k
        if x.kind == "vstore":
            for rg in x.rd[:4]: laststore[rg] = k
    return errs

def slow_path():
    L = []
    A = L.append
    Q, K, SS, P, M, T, LA, VF = 128, 144, 176, 184, 188, 189, 192, 64
    VK, VL, VS, MC = 200, 201, 202, 203
    A("s_or_b64 s[54:55], s[46:47], s[48:49]")
    A("s_or_b64 s[54:55], s[54:55], s[50:51]")
    A("s_cmp_eq_u64 s[54:55], 0")
    A("s_cbranch_scc1 L_end")
    A("s_waitcnt vmcnt(0) lgkmcnt(0)")
    A(f"s_lshl_b32 s3, s{S_W}, 12")
    A(f"v_subrev_u32 v{VK}, s3, v{V_OOFF}")
    A(f"v_mbcnt_lo_u32_b32 v{T}, -1, 0")
    A(f"v_mbcnt_hi_u32_b32 v{T}, -1, v{T}")
    A(f"v_lshlrev_b32 v{VL}, 4, v{T}")
    A(f"v_lshrrev_b32 v{M}, 2, v{T}")
    A(f"v_lshlrev_b32 v{M}, 8, v{M}")
    A(f"v_and_b32 v{T}, 3, v{T}")
    A(f"v_lshl_add_u32 v{M}, v{T}, 4, v{M}")
    A(f"v_add_u32 v{VS}, s{S_MQ}, v{M}")
    A("s_mov_b32 s56, 0")
    A("L_s_item:")
    A("s_lshr_b32 s57, s56, 2")
    A("s_lshl_b32 s58, s57, 1")
    A("s_mov_b32 m0, s58")
    A("s_nop 1")
    A(f"s_movrels_b64 s[54:55], s[{S_FLAG}:{S_FLAG+1}]")
    A("s_cmp_eq_u64 s[54:55], 0")
    A("s_cbranch_scc1 L_s_next")
    A("s_mov_b32 m0, s56")
    A("s_nop 1")
    A(f"s_movrels_b32 s59, s{S_QO}")
    A("s_mov_b32 m0, s57")
    A("s_nop 1")
    A(f"s_movrels_b32 s60, s{S_KV}")
    for t in range(4): A(f"buffer_load_dwordx4 v[{Q+4*t}:{Q+4*t+3}], v{V_OOFF}, s[{S_Q}:{S_Q+3}], s59 offen offset:{64*t}")
    A(f"v_mov_b32 v{M}, 0xff800000")
    A("s_mov_b32 s61, s60")
    A("s_mov_b32 s63, 32")
    A("L_s_max:")
    for t in range(4): A(f"buffer_load_dwordx4 v[{K+4*t}:{K+4*t+3}], v{VK}, s[{S_K}:{S_K+3}], s61 offen offset:{64*t}")
    A("s_waitcnt vmcnt(0)")
    for t in range(4): A(f"v_mfma_f32_16x16x32_bf16 v[{SS}:{SS+3}], v[{K+4*t}:{K+4*t+3}], v[{Q+4*t}:{Q+4*t+3}], " + ("0" if t == 0 else f"v[{SS}:{SS+3}]"))
    A("s_nop 9")
    A(f"v_max3_f32 v{M}, v{M}, v{SS}, v{SS+1}")
    A(f"v_max3_f32 v{M}, v{M}, v{SS+2}, v{SS+3}")
    A("s_add_u32 s61, s61, 4096")
    A("s_sub_u32 s63, s63, 1")
    A("s_cmp_lg_u32 s63, 0")
    A("s_cbranch_scc1 L_s_max")
    for sw in ("32", "16"):
        A(f"v_mov_b32 v{T}, v{M}")
        A("s_nop 2")
        A(f"v_permlane{sw}_swap_b32 v{M}, v{T}")
        A("s_nop 1")
        A(f"v_max_f32 v{M}, v{M}, v{T}")
    A(f"v_mul_f32 v{MC}, s{S_C}, v{M}")
    for j in range(32): A(f"v_mov_b32 v{j}, 0")
    for j in range(4): A(f"v_mov_b32 v{LA+j}, 0")
    A("s_mov_b32 s61, s60")
    A("s_mov_b32 s63, 16")
    A("L_s_pv:")
    A(f"s_mov_b32 m0, s{S_MQ}")
    for h in range(2):
        A(f"s_add_u32 s3, s61, {4096*h}")
        for t in range(4): A(f"buffer_load_dwordx4 v[{K+16*h+4*t}:{K+16*h+4*t+3}], v{VK}, s[{S_K}:{S_K+3}], s3 offen offset:{64*t}")
        for t in range(4): A(f"buffer_load_dwordx4 v{VL}, s[{S_V}:{S_V+3}], s3 offen offset:{1024*t} lds")
        A("s_waitcnt vmcnt(0)")
        for db in range(8): A(f"ds_read_b64_tr_b16 v[{VF+4*db+2*h}:{VF+4*db+2*h+1}], v{VS} offset:{64*(db >> 1) + 8*(db & 1)}")
        A("s_waitcnt lgkmcnt(0)")
    for h in range(2):
        for t in range(4): A(f"v_mfma_f32_16x16x32_bf16 v[{SS+4*h}:{SS+4*h+3}], v[{K+16*h+4*t}:{K+16*h+4*t+3}], v[{Q+4*t}:{Q+4*t+3}], " + ("0" if t == 0 else f"v[{SS+4*h}:{SS+4*h+3}]"))
    A("s_nop 9")
    for j in range(8): A(f"v_fma_f32 v{SS+j}, v{SS+j}, s{S_C}, -v{MC}")
    for j in range(8): A(f"v_exp_f32 v{SS+j}, v{SS+j}")
    A("s_nop 1")
    for j in range(4): A(f"v_cvt_pk_bf16_f32 v{P+j}, v{SS+2*j}, v{SS+2*j+1}")
    A("s_nop 2")
    A(f"v_mfma_f32_16x16x32_bf16 v[{LA}:{LA+3}], a[{A_ONE}:{A_ONE+3}], v[{P}:{P+3}], v[{LA}:{LA+3}]")
    for db in range(8):
        o = 4*db
        A(f"v_mfma_f32_16x16x32_bf16 v[{o}:{o+3}], v[{VF+4*db}:{VF+4*db+3}], v[{P}:{P+3}], v[{o}:{o+3}]")
    A("s_nop 3")
    A("s_add_u32 s61, s61, 8192")
    A("s_sub_u32 s63, s63, 1")
    A("s_cmp_lg_u32 s63, 0")
    A("s_cbranch_scc1 L_s_pv")
    A("s_nop 9")
    A(f"v_rcp_f32 v{T}, v{LA}")
    A("s_nop 1")
    for j in range(32): A(f"v_mul_f32 v{j}, v{T}, v{j}")
    for u in range(4):
        for j in range(4): A(f"v_cvt_pk_bf16_f32 v{8*u+j}, v{8*u+2*j}, v{8*u+2*j+1}")
        A(f"buffer_store_dwordx4 v[{8*u}:{8*u+3}], v{V_OOFF}, s[{S_O}:{S_O+3}], s59 offen offset:{64*u}")
    A("s_waitcnt vmcnt(0)")
    A("L_s_next:")
    A("s_add_u32 s56, s56, 1")
    A(f"s_cmp_lt_u32 s56, {4*opt.nblocks}")
    A("s_cbranch_scc1 L_s_item")
    return L

def stamp_out():
    if not opt.stamps: return []
    if opt.probe >= 0:
        n = stamp_n[0]
        ins = 's_memtime' if opt.scyc else 's_memrealtime'
        if opt.pavg:
            spin = lambda n: [f"L_spin{n}:", "s_sleep 2", "s_memrealtime s[54:55]", "s_waitcnt lgkmcnt(0)", "s_sub_u32 s54, s54, s94",
                              "s_cmp_lt_u32 s54, s3", f"s_cbranch_scc1 L_spin{n}"]
            return (["s_waitcnt vmcnt(0)", f"{ins} s[{S_STAMP+2*n}:{S_STAMP+2*n+1}]", "s_load_dwordx2 s[56:57], s[0:1], 32", "s_waitcnt lgkmcnt(0)",
                    "s_mov_b32 s58, 256", "s_mov_b32 s59, 0x20000",
                    f"s_sub_u32 s3, s{S_STAMP+2*opt.probe}, s{S_STAMP+2*opt.probe0}", "v_mov_b32 v2, s3", "v_mov_b32 v1, 0",
                    "s_mov_b64 exec, 1", "buffer_atomic_add v2, v1, s[56:59], 0 offen", "s_waitcnt vmcnt(0)", "s_mov_b64 exec, -1", "s_mov_b32 s3, 10000"] + spin(0) +
                    [f"s_add_u32 s3, s2, s{S_W}", "s_cmp_lg_u32 s3, 0", "s_cbranch_scc1 L_nospin",
                     "buffer_load_dword v2, v1, s[56:59], 0 offen sc0 sc1", "s_waitcnt vmcnt(0)", "v_readfirstlane_b32 s3, v2", "s_nop 3",
                     f"s_lshr_b32 s3, s3, {11 if opt.scyc else 8}", "s_add_u32 s3, s3, 10000"] + spin(1) + ["L_nospin:"])
        return ["s_waitcnt vmcnt(0)", f"{ins} s[{S_STAMP+2*n}:{S_STAMP+2*n+1}]", "s_waitcnt lgkmcnt(0)",
                f"s_sub_u32 s3, s{S_STAMP+2*opt.probe}, s{S_STAMP+2*opt.probe0}", "s_lshr_b32 s3, s3, 1" if opt.scyc else "s_lshl_b32 s3, s3, 2", "s_add_u32 s3, s3, 10000",
                "L_spin:", "s_sleep 2", "s_memrealtime s[56:57]", "s_waitcnt lgkmcnt(0)", f"s_sub_u32 s56, s56, s94",
                "s_cmp_lt_u32 s56, s3", "s_cbranch_scc1 L_spin"]
    L = ["s_waitcnt vmcnt(0)"] + [x.text for x in stamp()] + ["s_load_dwordx2 s[56:57], s[0:1], 40", "s_waitcnt lgkmcnt(0)"]
    n = stamp_n[0]
    L += [stamp_save(k).text for k in range(max(0, n - 12), n)]
    L += ["s_mov_b32 s58, 0x1000000", "s_mov_b32 s59, 0x20000", "s_lshl_b32 s3, s2, 2", f"s_add_u32 s3, s3, s{S_W}", "s_lshl_b32 s3, s3, 10",
          "v_mbcnt_lo_u32_b32 v1, -1, 0", "v_mbcnt_hi_u32_b32 v1, -1, v1", "v_lshl_add_u32 v1, v1, 2, s3", f"v_mov_b32 v2, {n}",
          "buffer_store_dword v2, v1, s[56:59], 0 offen offset:768"]
    for k in range(3): L.append(f"buffer_store_dword v{253+k}, v1, s[56:59], 0 offen offset:{256*k}")
    L += ["s_getpc_b64 s[60:61]", "L_pc2:", "s_load_dwordx2 s[56:57], s[0:1], 32", "s_waitcnt lgkmcnt(0)", "s_mov_b32 s58, 256",
          f"s_sub_u32 s60, s60, L_pc2 - {NAME}", "s_subb_u32 s61, s61, 0", "v_mov_b32 v2, s60", "v_mov_b32 v3, s61", "v_mov_b32 v1, 0",
          "buffer_store_dwordx2 v[2:3], v1, s[56:59], 0 offen"]
    L += ["s_waitcnt vmcnt(0)"]
    return L

HEADER = """; Attention forward (softmax(Q K^T / sqrt(D)) V), B8 H32 Sq736 Sk512 D128, bf16 in and out. Generated by my own script.
; Kernarg (48 bytes): q, k, v, out, debug, ws pointers.
; 256 persistent workgroups x 4 waves (one wave per SIMD, 256 VGPR + 256 AGPR); each does three (head, 256-row) blocks,
; chosen so that the three blocks of a head run at the same time on one die (speed only).
; S^T = K Q^T and O^T = V^T P^T with 16x16x32 bf16 MFMA, row sums with one sparse MFMA per 64 keys; K/V tiles of 64 keys
; stream through 4-slot LDS rings by LDS-DMA; log2(e)/sqrt(D) is folded into Q; the whole schedule is unrolled.
; Softmax shift: per row, the maximum over the first 16 keys stands in for the row maximum (softmax is shift invariant,
; and the sum is at least 1). A run-time check on every row sum (it must stay below 2^40; NaN fails too) sends the
; wave's block to the fallback at the end (L_s_item), which recomputes it with the true row maximum.
; The s_cmp/s_cbranch pairs at L_stubN let each wave touch a few code pages once at start-up (instruction prefetch).
; @launch grid=(256,1,1) block=(256,1,1) lds=%d
""" % LDS_BYTES

def sizes(code):
    import subprocess, re, tempfile, os
    texts = sorted({x.text for x in code if x.kind not in ("label", "branch") and "L_" not in x.text and "NSTUBS" not in x.text})
    d = tempfile.mkdtemp()
    open(d + "/a.s", "w").write('.amdgcn_target "amdgcn-amd-amdhsa--gfx950"\n.text\n' + "\n".join(texts) + "\ns_endpgm\n")
    subprocess.run(["clang", "-x", "assembler", "-target", "amdgcn-amd-amdhsa", "-mcpu=gfx950", "-c", d + "/a.s", "-o", d + "/a.o"], check=True)
    o = subprocess.run(["llvm-objdump", "-d", "--mcpu=gfx950", d + "/a.o"], capture_output=True, text=True).stdout
    ad = [int(m.group(1), 16) for m in re.finditer(r"// ([0-9A-F]{12}):", o)]
    assert len(ad) == len(texts) + 1
    d = {t: ad[i+1] - ad[i] for i, t in enumerate(texts)}
    d.update({x.text: 16 for x in code if "buffer_wbl2" in x.text})
    return d

def add_stubs(code):
    opt.nstub_rounds = opt.stub_n0 + opt.stub_n1
    sz = sizes(code)
    k0 = next(i for i, x in enumerate(code) if x.text == "L_main:")
    out = code[:k0+1] + [I('L_stub0:', 'label'), salu(f's_cmp_eq_u32 s{S_WARM}, 1'), I('s_cbranch_scc1 L_ret0', 'branch')]; pos = 8; n = 1; nxt = 4096
    body = code[k0+1:]
    for i, x in enumerate(body):
        if x.kind != "label" and pos >= nxt:
            if out[-1].kind in ("mfma", "smfmac") or pos + sz.get(x.text, 4) + 8 > nxt + 64 - 8:
                if n < 4*opt.nstub_rounds + (0 if opt.stub_n0 else 1):
                    out += [I(f"L_stub{n}:", "label"), salu(f"s_cmp_eq_u32 s{S_WARM}, 1"), I(f"s_cbranch_scc1 L_ret{n}", "branch")]
                    pos += 8
                n += 1; nxt += 4096
        out.append(x); pos += (40 if x.text.startswith("STUB_CALLS") else 0) if x.kind == "label" else sz.get(x.text, 4)
    for x in out: x.text = x.text.replace("NSTUBS", str(n - 1))
    res = []; used = set()
    for x in out:
        if x.text.startswith("STUB_CALLS"):
            rd = int(x.text[10:])
            if rd >= opt.nstub_rounds: continue
            calls = [salu(f"s_mov_b32 s{S_WARM}, 1")]
            for w in range(4):
                k = 4*rd + w + (0 if opt.stub_n0 else 1)
                if k >= n: continue
                calls += [salu(f"s_cmp_eq_u32 s{S_W}, {w}"), I(f"s_cbranch_scc1 L_stub{k}", "branch")]; used.add(k)
            calls += [I(f"L_ret{rd}:", "label"), salu(f"s_mov_b32 s{S_WARM}, 0")]
            res += calls
        else: res.append(x)
    out = []
    for x in res:
        if x.text.startswith("s_cbranch_scc1 L_ret"):
            k = int(x.text.split("L_ret")[1])
            x.text = f"s_cbranch_scc1 L_ret{(k - (0 if opt.stub_n0 else 1)) // 4}" if k in used else "s_nop 0"
        out.append(x)
    return out

def generate():
    stamp_n[0] = 0
    main, stats = None, None
    s = setup(); p = prologue(); main, stats = body()
    code = resolve(s + p + main)
    errs = check(code)
    if opt.abl:
        k0 = len(s) + len(p) + 60
        def keep(k, x):
            if k < k0: return True
            a = opt.abl
            if 'd' in a and x.kind == "dma" and x.tag[0] in "KV": return False
            if 'q' in a and x.kind == "dma" and x.tag[0] == "Q": return False
            if 'r' in a and x.kind == "ds": return False
            if 'o' in a and x.kind == "vstore": return False
            if 's' in a and x.kind == "smfmac": return False
            if 'e' in a and x.kind == "trans": return False
            if 'c' in a and x.text.startswith("v_cvt_pk"): return False
            if 'p' in a and (x.kind == "pk" or x.text.startswith(("v_lshlrev_b32", "v_and_b32", "v_accvgpr_write"))): return False
            if 'b' in a and x.kind == "barrier": return False
            if 'w' in a and x.kind == "wait": return False
            if 'k' in a and x.kind == "pk": return False
            if 'H' in a and x.kind == "salu" and x.text.startswith(("s_add_u32 s39,", "s_add_u32 s40,")):
                x.text = x.text.split(",")[0] + ", s20, " + str(16384 * (int(x.text.split(",")[2]) // 16384 % 4))
            if 'H' in a and x.kind == "dma" and x.tag[0] == "Q": x.text = x.text.replace(x.text.split(", ")[2].split(" ")[0], "s24")
            if 'm' in a and x.kind == "salu" and "m0" in x.text: return False
            if 'K' in a and x.kind == "pk": x.text = "v_mov_b32 " + x.text.split("[")[1].split(":")[0].join(["v", ","]) + " 0"
            return True
        code = [x for k, x in enumerate(code) if keep(k, x)]
    if opt.stubs: code = add_stubs(code)
    lines = [x.text if x.kind == "label" else "  " + x.text for x in code]
    lines += [x if x.endswith(":") else "  " + x for x in stamp_out() + ([] if opt.abl else slow_path())]
    nbytes_guess = "(((L_end - L_pc) >> 10) << 10) - 1024"
    txt = HEADER + f""".amdgcn_target "amdgcn-amd-amdhsa--gfx950"
.text
.globl {NAME}
.p2align 8
.type {NAME},@function
{NAME}:
""" + "\n".join(lines).replace("CODE_LAST_KIB", nbytes_guess) + f"""
L_end:
  s_endpgm
.if L_end - L_main < 65536
  .fill (65536 - (L_end - L_main)) / 4, 4, 0xbf810000
.endif
.section .rodata,"a"
.p2align 6
.amdhsa_kernel {NAME}
  .amdhsa_next_free_vgpr 512
  .amdhsa_next_free_sgpr 102
  .amdhsa_accum_offset 256
  .amdhsa_group_segment_fixed_size 0
  .amdhsa_kernarg_size 48
  .amdhsa_user_sgpr_count 2
  .amdhsa_user_sgpr_kernarg_segment_ptr 1
  .amdhsa_system_sgpr_workgroup_id_x 1
  .amdhsa_float_denorm_mode_32 3
.end_amdhsa_kernel
"""
    return txt, errs, stats

if __name__ == "__main__":
    out = sys.argv[1]
    for a in sys.argv[2:]:
        k, v = a.split("="); t = type(getattr(opt, k)); setattr(opt, k, v if t is str else t(int(v)))
    txt, errs, stats = generate()
    for e in errs[:40]: print("HAZARD", e)
    print(len(errs), "hazards;", stats, len(txt), "chars")
    open(out, "w").write(txt)
    sys.exit(1 if errs else 0)
```

```python
import sys, heapq
from collections import defaultdict
import gen
from gen import *

opt.tail_k = 2
opt.bar_every = 1
opt.vm_sp = 8
opt.st_gap = 32
opt.vm_lat = 120
opt.ld_lat = 9
opt.pk_pre = True
opt.bar_pos = 88
opt.pre_start = 16
opt.dbg_sched = 0
opt.head_u1 = 7
opt.head_du = 2
opt.head_c = 14
opt.head_bar = 28
opt.tail_a = 2
opt.pre_start0 = 18
opt.pre_end = 14
opt.q_est0 = 60
opt.full_from = 2
opt.st_gap0 = 99
opt.st_gap2 = 40
opt.wb = 0
opt.vm_burst = 1
opt.q_ahead = 400
opt.tail_st_gap = 14

MEMK = ("ds", "dma", "vstore", "vload")
VMK = ("dma", "vstore", "vload")
SCK = ("salu", "wait", "barrier")
COST2 = {"valu": 1, "trans": 2, "pk": 1, "perm": 1, "ds": 1, "dma": 1, "vstore": 3, "vload": 1}
BIG = 10**9

class Node:
    __slots__ = ("i", "m", "pred", "succ", "est", "dl", "pin", "gap", "pos", "left", "burst")
    def __init__(s, i, m=None):
        s.i, s.m, s.pred, s.succ, s.est, s.dl, s.pin, s.gap, s.pos, s.left, s.burst = i, m, {}, [], 0, BIG, None, None, None, 0, None

class Prog:
    def __init__(s):
        s.M = []; s.F = []; s.node = {}
        s.lw = {}; s.lr = defaultdict(list)
    def edge(s, p, x, dist=0, lat=0):
        if p is x: return
        d, l = x.pred.get(p, (0, 0))
        if p not in x.pred: p.succ.append(x)
        x.pred[p] = (max(d, dist), max(l, lat))
    def add(s, ins, est=0, dl=BIG, pin=None):
        ism = ins.kind in ("mfma", "smfmac")
        x = Node(ins, len(s.M) if ism else None)
        x.est, x.dl, x.pin = est, dl, pin
        if pin is not None: x.est = x.dl = pin
        for rg in ins.rd + ins.cread:
            p = s.lw.get(rg)
            if p: s.dep(p, x, rg, "raw")
        for rg in ins.wr:
            p = s.lw.get(rg)
            if p: s.dep(p, x, rg, "waw")
            for p in s.lr[rg]: s.dep(p, x, rg, "war")
        for rg in ins.wr: s.lw[rg] = x; s.lr[rg] = []
        for rg in ins.rd + ins.cread: s.lr[rg].append(x)
        (s.M if ism else s.F).append(x); s.node[id(ins)] = x
        return x
    def dep(s, p, x, rg, kind):
        d = edge_dist(p.i, x.i, rg, kind)
        lat = 0
        if p.i.kind == "ds" and kind != "war": lat = opt.ld_lat
        elif p.m is None and x.m is not None: lat = 2 if d else 1
        elif p.m is None and (d or (x.i.kind in MEMK + SCK and p.i.kind in VALK)): lat = 1
        s.edge(p, x, d, lat)

def phases():
    nt = NT(); A4 = (0, 1, 2, 3); A, B = A4[:opt.tail_a], A4[opt.tail_a:]
    k = opt.tail_k
    ph = [((T + 1, A4), (T, A4)) for T in range(nt - 1 - k)]
    if k == 0: return ph + [(None, (nt - 1, A4))]
    seq = [(T, A) for T in range(nt - k, nt)] + [(T, B) for T in range(nt - k, nt)]
    prev = (nt - k - 1, A4)
    for x in seq: ph.append((x, prev)); prev = x
    return ph + [(None, prev)]

def body2():
    nt = NT(); nb = opt.nblocks
    P = Prog()
    ph = phases()
    kcount = [0]; vcount = [0]
    reads = defaultdict(list)
    phase_start = []; group_start = []
    un = [0]
    done_db = defaultdict(set)
    items = []
    lnodes = {}
    tailitems = []
    pre_at = {8*r + 0: r for r in range(nb - 1)}
    pre_nodes = {}
    first_kset = True; first_vsets = 0

    def kset(T, kb):
        buf = kcount[0] & 1; kcount[0] += 1
        for t in range(4):
            if T == 1 and (kb == 0 or (kb == 1 and t == 0)) and not opt.head: continue
            ins = k_read(T, kb, t, dest=A_K + 16*buf + 4*t)
            reads[("K", T)].append(P.add(ins))
        return A_K + 16*buf
    def vset(T, db):
        buf = vcount[0] & 3; vcount[0] += 1
        u, p = db >> 1, db & 1
        for ks in range(2):
            for hf in range(2):
                if T == 0 and 4*db + 2*ks + hf < 10 and vcount[0] <= 3: continue
                ins = v_read(T, db, ks, hf, dest=A_V + 8*buf + 4*ks + 2*hf)
                reads[("V", T)].append(P.add(ins))
        return A_V + 8*buf

    for pi, (qk, pv) in enumerate(ph):
        phase_start.append(len(P.M))
        def unit(T1, kb, qb, kreg):
            special = T1 % 8 == 0 and kb == 0
            d = p_reg(T1, qb, 1) if special else V_S + 4*(un[0] & 1)
            un[0] += 1
            for t in range(4):
                cc = None if t else ("0" if special else V_NEGM + 4*qb)
                P.add(mfma("v", d, "a", kreg + 4*t, "a", q_reg(T1 // 8, qb, t), cc))
            if special:
                for o in max_ops(d, qb, r=T1 // 8):
                    if not isinstance(o, str): P.add(o)
            e, cv = soft_ops(d, p_reg(T1, qb, kb >> 1) + 2*(kb & 1))
            for o in e + cv: P.add(o)
        if pi == 0 and opt.head:
            u1, du = opt.head_u1, opt.head_du
            at = {0: 0, u1: 1, u1 + du: 2, u1 + 2*du: 3}; dbc = None
            hch = [(0, db, qb) for db in range(8) for qb in range(3)] + [(0, db, 3) for db in range(8)]
            for n, (_, db, qb) in enumerate(hch[:opt.head_c]):
                if n in at: unit(0, at[n], 3, A_Q[1] + 16*at[n])
                if db != dbc: vreg = vset(0, db); dbc = db
                for ks in range(2): P.add(mfma("v", o_reg(db, qb), "a", vreg + 4*ks, "v", p_reg(0, qb, ks), "0" if ks == 0 else None))
                if n in (1, 3, 5): P.add(smfmac(n // 2, p_reg(0, n // 2, 0)))
            head_end = len(P.M); pv = (0, (3,))
        if pv and pv[0] in pre_at and pv[0] not in pre_nodes:
            r = pre_at[pv[0]]; lst = []
            for k in range(16):
                kap = 16*(r + 1) + k
                if not kap & 1: w = P.add(wait(vm="auto", need=[("Q", kap >> 1)]))
                rd = P.add(q_read(kap)); P.edge(w, rd)
                ops = [P.add(o) for o in prescale_ops(V_RAW + 4*(kap & 1), q_reg(r + 1, k >> 2, k & 3), opt.pk_pre)]
                if opt.pk_pre:
                    for o in ops[8:12]: o.burst = ops[8:12]
                lst.append((kap, w, rd, ops))
            pre_nodes[pv[0]] = lst
        units = [(qk[0], kb, qb) for kb in range(4) for qb in qk[1]] if qk else []
        chains = [(pv[0], db, qb) for db in range(8) for qb in pv[1]] if pv else []
        pairs = [chains[j:j+2] for j in range(0, len(chains), 2)]
        if pi == 0 and opt.head:
            chains = hch[opt.head_c:]; pairs = [chains[len(chains)*j // 16:len(chains)*(j + 1) // 16] for j in range(16)]
        ns = max(len(units), len(pairs))
        smf = {}
        if pv:
            early = pv[0] % 8 == 7
            for n, qb in enumerate(pv[1]):
                if pi == 0 and opt.head: smf.setdefault(3, []).append(qb); continue
                smf.setdefault(min(ns - 1, (1 + n // 2) if early else max(1, (ns * (n + 1)) // (2 * len(pv[1])))), []).append(qb)
        iu = ip = 0; kb_cur = db_cur = None
        if pi == 0 and opt.head: db_cur = dbc
        for s_ in range(ns):
            group_start.append(len(P.M))
            if iu < len(units) and iu * ns <= s_ * len(units):
                T1, kb, qb = units[iu]; iu += 1
                if kb != kb_cur: kreg = kset(T1, kb); kb_cur = kb
                unit(T1, kb, qb, kreg)
            if ip < len(pairs) and ip * ns <= s_ * len(pairs):
                for T0, db, qb in pairs[ip]:
                    if db != db_cur: vreg = vset(T0, db); db_cur = db
                    for ks in range(2):
                        last = P.add(mfma("v", o_reg(db, qb), "a", vreg + 4*ks, "v", p_reg(T0, qb, ks), "0" if (T0 % 8 == 0 and ks == 0) else None))
                    if T0 % 8 == 7 and db & 1: items.append((T0 // 8, db >> 1, qb, last))
                ip += 1
            for qb in smf.get(s_, []):
                P.add(smfmac(qb, p_reg(pv[0], qb, 0)))
                if pv[0] % 8 == 7:
                    r = pv[0] // 8
                    lnodes[(r, qb)] = [P.add(o) for o in l_ops(r, qb, r < nb - 1)]
            while items and (items[0][0], items[0][2]) in lnodes:
                r, u, qb, last = items.pop(0)
                tailitems.append((r, u, qb, last, None))
                tailitems[-1] = (r, u, qb, last, add_item(P, r, u, qb, last))
    n = len(P.M)
    gs = group_start
    full = lambda T: phase_start[T]
    bars = []
    ps = phase_start + [n]
    bpos = [ps[i] + (ps[i+1] - ps[i]) * opt.bar_pos // 132 for i in range(len(ph))]
    if opt.head:
        bpos[0] = head_end + (ps[1] - head_end) * opt.bar_pos // 132
        hw = P.add(wait(vm="auto", need=[("K", 1)]), pin=opt.head_bar - 1); hb = P.add(barrier(), pin=opt.head_bar); P.edge(hw, hb, 0, 1)
        for x in reads[("K", 1)]: P.edge(hb, x)
    firstuse = {tg: min(y.m for x in lst for y in x.succ if y.m is not None) for tg, lst in reads.items() if lst}
    unpub = [("K", x) for x in range(2, nt)] + [("V", x) for x in range(1, nt)]
    enabled = {("K", x) for x in range(5)} | {("V", x) for x in range(4)}
    enable = {}; freeK = 0; freeV = -1
    blist = list(range(len(ph))) if opt.bar_every == 1 else [0] + list(range(1, nt - 4, 2)) + list(range(nt - 4, len(ph)))
    for bi, pi in enumerate(blist):
        if not unpub: break
        g = bpos[pi]
        nxt = bpos[blist[bi + 1]] if bi + 1 < len(blist) else n
        if all(tg in enabled for tg in unpub) and pi >= nt - 6: pub = list(unpub)
        else: pub = [tg for tg in unpub if firstuse[tg] - opt.ld_lat - 30 < nxt]
        assert all(tg in enabled for tg in pub), (pi, pub)
        unpub = [tg for tg in unpub if tg not in pub]
        free = []
        if pi <= nt - 2 - opt.tail_k:
            free = [("K", x) for x in range(freeK + 1, pi + 2)] + [("V", x) for x in range(freeV + 1, pi + 1)]
            if pi == 0 and opt.head: free = free[:-1]
            freeK, freeV = pi + 1, (pi if not (pi == 0 and opt.head) else -1)
        if pi == nt - 1 - opt.tail_k and opt.tail_k:
            free = [("V", x) for x in range(freeV + 1, pi + 1)]; freeV = pi
        free = [tg for tg in free if tg[1] + 4 < nt]
        w = P.add(wait(vm="auto", lg="bar", need=pub), pin=g - 1)
        b = P.add(barrier(), pin=g); P.edge(w, b, 0, 1)
        w.burst = [x for tg in free for x in reads[tg]]
        for tg in free:
            for x in reads[tg]: x.dl = min(x.dl, g - 1 - 7)
            enable[(tg[0], tg[1] + 4)] = b; enabled.add((tg[0], tg[1] + 4))
        for tg in pub:
            for x in reads[tg]: P.edge(b, x)
        bars.append((g, w, pub))
    assert not unpub
    pubgap = {tg: g for g, w, pub in bars for tg in pub}
    pubw = {tg: w for g, w, pub in bars for tg in pub}
    qplan = {}
    for T0, lst in pre_nodes.items():
        lo = gs[16*T0 + (opt.pre_start0 if T0 == 0 else opt.pre_start)]; hi = gs[16*(T0 + 6) + opt.pre_end]
        for k, (kap, w, rd, ops) in enumerate(lst):
            a = lo + (hi - lo) * k // 16; b = lo + (hi - lo) * (k + 1) // 16
            qplan[kap] = a
            if not kap & 1: w.est = a - 8; w.dl = a - 1
            rd.est = a; rd.dl = a + 4
            for j, o in enumerate(ops): o.dl = min(o.dl, a + 4 + opt.ld_lat + (b - a) * (j + 1) // len(ops))
    jobs = []
    for kind, first in (("K", opt.first_k), ("V", opt.first_v)):
        for T in range(first, nt):
            b = enable.get((kind, T))
            est = b.pin if b else 0
            for t in range(4): jobs.append([est, pubgap[(kind, T)] - opt.vm_lat - 4*(3 - t) - (32 if pubgap.get((kind, T + 1)) == pubgap[(kind, T)] else 0), kind, T, t])
    for pc in range(8, 8*nb):
        est = qplan[2*(pc - NQS) + 1] + 4 + opt.ld_lat + 10 if pc - NQS >= 8 else opt.q_est0
        est = max(est, qplan[2*pc] - opt.q_ahead)
        for hh in range(2): jobs.append([est, qplan[2*pc] - 8 - opt.vm_lat - 4*(1 - hh), "Q", pc, hh])
    order = []; t = 0
    jobs.sort()
    pend = list(jobs)
    while pend:
        av = [j for j in pend if j[0] <= t]
        if not av: t = min(j[0] for j in pend); continue
        j = min(av, key=lambda j: (j[1], j[2], j[3], j[4])); pend.remove(j); order.append(j); t += (opt.vm_sp + 1 if j[1] > t else 2)
    late = [P.add(o, dl=(min(106, opt.q_est0 - 2) if k < len(gen.late_setup) // 2 else 200)) for k, o in enumerate(gen.late_setup)]
    for a, b in zip(late, late[1:]): P.edge(a, b, 0, 1)
    qfirst = {kap: ops[0] for lst in pre_nodes.values() for kap, w, rd, ops in lst}
    qwait = {kap: w for lst in pre_nodes.values() for kap, w, rd, ops in lst}
    for est, dl, kind, T, t in order:
        if kind == "Q":
            m, d = q_dma(T, t)
            mn = P.add(m); dn = P.add(d, est=est, dl=max(dl, est + 16 + 4*t))
            if 2*(T - NQS) + 1 in qfirst: P.edge(qfirst[2*(T - NQS) + 1], dn, 0, 1)
            P.edge(late[len(late) // 2 - 1 if T < 16 else -1], dn); P.edge(dn, qwait[2*T], 0, 1)
        else:
            if t == 0:
                so = [P.add(o) for o in (k_soff(T) if kind == "K" else v_soff(T))]
                for a, b in zip(so, so[1:]): P.edge(a, b, 0, 1)
                if T >= 8: P.edge(late[-1], so[0])
            m, d = (k_dma if kind == "K" else v_dma)(T, t)
            mn = P.add(m); dn = P.add(d, est=est, dl=max(dl, est + 16 + 4*t))
            b = enable.get((kind, T))
            if b: P.edge(b, dn)
            P.edge(dn, pubw[(kind, T)], 0, 1)
    if opt.jit_every:
        for k in range(opt.jit_first, 8):
            g = gs[int((k - opt.jit_first) * opt.jit_every * 1.6) + opt.jit_g0]
            ld, ad = jit_ops()
            P.add(ld, est=g, dl=g + 60); P.add(ad, est=g, dl=g + 100)
    plan_stores(P, tailitems, phase_start, gs)
    return schedule(P, phase_start, gs)

def add_item(P, r, u, qb, last):
    mul, cv, st = epi_ops(r, u, qb)
    mn = [P.add(o) for o in mul]
    if opt.pk_epi:
        for o in mn: o.burst = mn
    cn = [P.add(o) for o in cv]
    last_block = r == opt.nblocks - 1
    if r >= opt.full_from and opt.full_line:
        if not u & 1:
            _pp[("half", qb)] = (mn, cn); return None
        pk = [None, None]
        if not last_block:
            pk = [park_plan(r).get((u - 1 + h, qb)) for h in range(2)]
            pk = [A_Q[r & 1] + 4*p[1] if isinstance(p, tuple) else p for p in pk]
        o1, s1, o2, s2 = line_ops(r, u >> 1, qb, pk)
        x1 = [P.add(o) for o in o1]; sn1 = P.add(s1); x2 = [P.add(o) for o in o2]; sn2 = P.add(s2)
        sn1.burst = (_pp[("half", qb)], (mn, cn), x1, x2, sn2)
        return sn1
    park = None if last_block else park_plan(r).get((u, qb))
    if isinstance(park, tuple): park = A_Q[r & 1] + 4*park[1]
    if park is None: sn = P.add(st)
    else:
        b = V_O + 32*u + 8*qb
        for j in range(4): P.add(valu(f"v_accvgpr_write_b32 {ar(park+j)}, {vr(b+j)}", R("v", b+j), R("a", park+j)))
        sn = P.add(vstore(park, V_OOFF, S_O, S_QO + 4*r + qb, 64*u, "a"))
    sn.burst = (mn, cn)
    return sn

_pp = {}
def park_plan(r):
    if ("plan", r) not in _pp:
        sp = (opt.st_gap2 if r == opt.nblocks - 2 else opt.st_gap) / 8.25
        items = [(u, qb) for u in range(4) for qb in range(4)]
        avail = {it: max(4*it[0] + 3 + (it[1] >> 1), 5) + 1.5 for it in items}
        dead = {it: 16 + 4*it[0] + (it[1] >> 1) - 0.5 for it in items}
        if r >= opt.full_from and opt.full_line:
            avail = {it: 4*(it[0] | 1) + 3 + (it[1] >> 1) + 2.5 + (it[0] & 1) for it in items}
            dead = {it: 16 + 4*it[0] + 2 + (it[1] >> 1) - 0.5 for it in items}
        left = list(items); t = min(avail.values()); slots = {}
        while True:
            cand = [it for it in left if avail[it] <= t < dead[it]]
            if cand:
                it = min(cand, key=lambda x: dead[x]); left.remove(it); slots[it] = t
            elif not any(t < dead[it] for it in left): break
            t += min(sp, opt.st_gap0 / 8.25)
        for it in left: slots[it] = t; t += sp
        nq = max(0, len(left) - 10)
        _pp[("plan", r)] = {it: (("q", 16 - nq + n) if n < nq else A_PARK + 4*(n - nq)) for n, it in enumerate(left)}
        _pp[("slot", r)] = slots
    return _pp[("plan", r)]

def plan_stores(P, tailitems, phase_start, gs):
    nb = opt.nblocks
    for r, u, qb, last, sn in tailitems:
        if r < nb - 1 and sn:
            park_plan(r)
            for uu, x in ([(u - 1, sn), (u, sn.burst[4])] if r >= opt.full_from and opt.full_line else [(u, sn)]):
                t = _pp[("slot", r)][(uu, qb)]
                g = gs[16*(8*r + 7) + int(t)] + int(8*(t - int(t)))
                x.est = g; x.dl = min(x.dl, g + (12 if opt.vm_burst == 1 else 40))
    if opt.wb:
        g = max(sn.dl for r, u, qb, last, sn in tailitems if r == nb - 2) + opt.wb
        P.add(I(f"s_cmp_eq_u32 s{S_WB}, 0\n  s_cbranch_scc0 L_nowb\n  buffer_wbl2 sc1\nL_nowb:", "salu", nops=2), pin=g)
        print("write-back at gap", g, "phases", phase_start[19:])
    n = len(P.M); tv = ts = 0
    for r, u, qb, last, sn in sorted([x for x in tailitems if x[0] == nb - 1 and x[4]], key=lambda x: x[3].m):
        if opt.full_line:
            h0, h1, x1, x2, sn2 = sn.burst
            tv = max(last.m + 8, tv + 8)
            for (mn, cn), t0 in ((h0, tv - 4), (h1, tv)):
                if t0 + 3 < n:
                    for o in mn: o.dl = t0
                    for j, o in enumerate(cn): o.dl = t0 + 1 + j // 2
            for xs, st, t0 in ((x1, sn, tv + 4), (x2, sn2, tv + 6)):
                if t0 + 2 < n:
                    for o in xs: o.dl = t0
                ts = max(t0 + 2, ts + opt.tail_st_gap)
                if ts < n: st.dl = ts
            continue
        mn, cn = sn.burst
        tv = max(last.m + 8, tv + 4); ts = max(tv + 5, ts + opt.tail_st_gap)
        if tv + 3 < n:
            for o in mn: o.dl = tv
            for j, o in enumerate(cn): o.dl = tv + 1 + j // 2
        if ts < n: sn.dl = ts

def schedule(P, phase_start, gs):
    M, F = P.M, P.F; n = len(M)
    indeg = {}
    for x in F: indeg[x] = sum(1 for y in x.succ if y.m is None)
    stack = [x for x in F if indeg[x] == 0]; seen = 0
    while stack:
        x = stack.pop(); seen += 1
        for y in x.succ:
            d, l = y.pred[x]
            lim = (y.m - max(l, 1)) if y.m is not None else (y.dl - l if y.dl < BIG else BIG)
            if x.pin is None: x.dl = min(x.dl, lim)
        for p in x.pred:
            if p.m is None:
                indeg[p] -= 1
                if indeg[p] == 0: stack.append(p)
    assert seen == len(F), "cycle"
    for k, x in enumerate(F): x.left = len(x.pred); x.pos = None
    seq = {x: k for k, x in enumerate(F)}
    pool = [x for x in F if x.left == 0]
    gaps = []; pos = [0]; out_nops = 0
    lastvm = -99; lastst = -99; late = []; bst = [-99, 0]
    def placed(x, g):
        x.gap = g; x.pos = pos[0]; pos[0] += x.i.nops
        for y in x.succ:
            if y.m is None:
                y.left -= 1
                if y.left == 0: pool.append(y)
    def short(x, at):
        return max([d - (at - p.pos - p.i.nops) for p, (d, l) in x.pred.items()] + [0])
    def latok(x, g):
        for p, (d, l) in x.pred.items():
            if p.m is None and p.gap + (l if p.i.kind != "ds" or x.i.kind in VALK else 0) > g: return False
        return True
    for g in range(n + 1):
        final = g == n
        cur = []
        if not final:
            m = M[g]
            for p in m.pred:
                assert p.pos is not None, ("unplaced predecessor", g, m.i, p.i, p.dl, p.est)
            s_ = short(m, pos[0])
            if s_: cur.append(nop(s_)); pos[0] += s_; out_nops += s_
            placed(m, g); cur.append(m.i)
        gp = dict(pre=cur, shadow=[], mem=[], valu=[]); gaps.append(gp)
        load = 0
        def emit(x, where):
            nonlocal load, lastvm, lastst, out_nops
            pool.remove(x)
            s_ = short(x, pos[0])
            if s_: gp[where].append(nop(s_)); pos[0] += s_; load += s_; out_nops += s_
            if x.dl < g: late.append((g, x.dl, x.i.text))
            placed(x, g); gp[where].append(x.i)
            if x.i.kind in VMK:
                if g - lastvm <= 4 and bst[1] < opt.vm_burst: bst[1] += 1
                else: bst[0] = g; bst[1] = 1
                lastvm = g
            if x.i.kind == "vstore": lastst = g
            load += COST2.get(x.i.kind, 0)
        key = lambda x: (x.dl, seq[x])
        if final:
            while pool:
                c = [x for x in pool if short(x, pos[0]) == 0] or pool
                emit(min(c, key=lambda x: seq[x]), "valu")
            break
        sc = sorted([x for x in pool if x.i.kind in SCK and x.est <= g and (latok(x, g) or x.dl <= g)], key=key)
        m0s = [x for x in sc if "m0" in x.i.text]
        if sc and sc[0].dl > g + 3 and m0s: emit(m0s[0], "shadow")
        elif sc and (sc[0].dl <= g + 40 or g % 2): emit(sc[0], "shadow")
        elif not gp["shadow"]: pos[0] += 0
        while True:
            sc = [x for x in pool if x.i.kind in SCK and x.dl <= g and x.est <= g]
            if not sc: break
            emit(min(sc, key=key), "shadow"); load += 1
        def vm_ok(x):
            if x.i.kind not in VMK or x.dl <= g: return True
            stg = opt.tail_st_gap if g >= phase_start[-1 - 2*opt.tail_k] else min(opt.st_gap, opt.st_gap2, opt.st_gap0) - 4
            if x.i.kind == "vstore" and g - lastst < stg: return False
            if opt.vm_burst > 1:
                if g - lastvm < 2: return False
                return (g - lastvm <= 4 and bst[1] < opt.vm_burst) or g - bst[0] >= bst[1] * opt.vm_sp
            return g - lastvm >= (opt.vm_sp if x.i.kind != "vstore" else 3)
        def cands(kinds):
            return sorted([x for x in pool if x.i.kind in kinds and x.est <= g and latok(x, g) and short(x, pos[0]) == 0 and vm_ok(x)], key=key)
        mem = cands(MEMK); val = cands(("valu", "trans", "perm"))
        pkc = cands(("pk",))
        burst = None
        if pkc:
            b = pkc[0]
            if all(y in pool or y.pos is not None for y in b.burst) and b.dl - g <= 10:
                avail = sum(COST2[x.i.kind] for x in val)
                if avail >= 4 or b.dl <= g: burst = [y for y in b.burst if y.pos is None]
        cap = 4 if burst else 2
        nvm = 0
        for x in mem:
            forced = x.dl <= g
            c = COST2[x.i.kind]
            if x.i.kind in VMK and nvm and not forced: continue
            if not forced:
                if load + min(c, 2) > cap: continue
                inburst = opt.vm_burst > 1 and x.i.kind in VMK and g - lastvm <= 4 and val and val[0].dl > g
                if val and val[0].i.kind == "trans" and load == 0 and key(val[0]) < key(x) and not inburst: continue
                if load == 0 and cap == 2 and c == 1:
                    other = [y for y in mem + val if y is not x and COST2[y.i.kind] == 1 and not (y.i.kind in VMK and x.i.kind in VMK)]
                    if not other and any(y.i.kind == "trans" for y in val) and x.dl > g + 2 and not inburst: continue
            if short(x, pos[0]) and not forced: continue
            emit(x, "mem"); nvm += x.i.kind in VMK
        while True:
            f = [x for x in pool if x.i.kind in MEMK and x.dl <= g and x.est <= g]
            if not f or gp["valu"]: break
            emit(min(f, key=key), "mem")
        while True:
            val = cands(("valu", "trans", "perm"))
            f = sorted([x for x in pool if x.i.kind in VALK and x.dl <= g and x.est <= g and x.i.kind != "pk"], key=key)
            if f: emit(f[0], "valu"); continue
            fit = [x for x in val if load + COST2[x.i.kind] <= cap]
            if not fit: break
            x = fit[0]
            if cap - load == 2 and COST2[x.i.kind] == 1:
                ones = [y for y in fit if COST2[y.i.kind] == 1]
                tr = [y for y in fit if y.i.kind == "trans"]
                follow = any(y.left == 1 and y.m is None and y.i.kind in ("valu",) and y.pred[x][0] == 0 for y in x.succ)
                if len(ones) < 2 and tr and not follow and x.dl > g + 1: x = tr[0]
            emit(x, "valu")
        if burst:
            for y in burst: emit(y, "valu")
        while True:
            f = [x for x in pool if x.dl <= g and x.est <= g]
            if not f: break
            emit(min(f, key=key), "valu")
        gp["load"] = load
    assert not pool and all(x.pos is not None for x in F)
    dsn = 0; ds_gap = []; prod = {}
    need = [-1]*(n + 2)
    for g, gp in enumerate(gaps):
        for part in ("pre", "shadow", "mem", "valu"):
            for ins in gp[part]:
                for rg in ins.rd + ins.cread + ins.wr:
                    if rg in prod:
                        gi = g - 1 if part == "pre" else g
                        need[gi] = max(need[gi], prod[rg])
                for rg in ins.wr: prod.pop(rg, None)
                if ins.kind == "ds":
                    for rg in ins.wr: prod[rg] = dsn
                    ins.lg = dsn; ds_gap.append(g); dsn += 1
    before = [0]*(n + 2)
    for g in range(n + 1): before[g + 1] = before[g] + sum(1 for part in ("mem", "valu") for i in gaps[g][part] if i.kind == "ds")
    cov = -1; extra = 0
    for g in range(n + 1):
        for ins in gaps[g]["shadow"]:
            if ins.kind == "wait" and ins.lg == "bar":
                x = P.node[id(ins)]
                tgt = max([y.i.lg for y in x.burst] + [-1])
                assert tgt < before[g]
                if tgt > cov: ins.lg = min(15, before[g] - 1 - tgt); cov = before[g] - 1 - ins.lg
                else: ins.lg = None
        if need[g] > cov:
            h = g
            while h > ds_gap[need[g]] + 2 and h > g - 4 and gaps[h]["shadow"]: h -= 1
            if gaps[h]["shadow"] or h <= ds_gap[need[g]]:
                h = g
                assert ds_gap[need[g]] < g, ("read and use in one gap", g)
                wv = [i for i in gaps[g]["shadow"] if i.kind == "wait" and i.lg is None]
            else: wv = []
            tgt = max(need[g], before[max(0, h - 6)] - 1)
            cnt = min(15, before[h] - 1 - tgt)
            if wv: wv[0].lg = cnt
            else:
                if gaps[h]["shadow"]: extra += 1; gaps[h]["load"] = gaps[h].get("load", 0) + 1
                gaps[h]["shadow"].append(wait(lg=cnt))
            cov = before[h] - 1 - cnt
    for g in range(n + 1):
        for part in ("mem", "valu"):
            for ins in gaps[g][part]:
                if ins.kind == "ds": ins.lg = None
    c = []
    sper = [int(x) for x in opt.sper.split('_')] if opt.sper else [0, 1, 7, 8, 9, 15, 16, 17] + list(range(20, len(phase_start)))
    marks = {phase_start[T] for T in sper if T < len(phase_start)}
    if opt.sgrp: marks = {gs[int(x)] for x in opt.sgrp.split('_')}
    for g, gp in enumerate(gaps):
        if g in marks or g == n: c += stamp()
        lst = gp["pre"] + gp["shadow"] + gp["mem"] + gp["valu"]
        if opt.sgrp and min(marks) <= g <= max(marks):
            for ins in lst:
                if ins.kind in VMK or ins.kind == "barrier" or (ins.kind == "wait" and ins.vm is not None): c += stamp() + [ins] + stamp()
                else: c.append(ins)
        else: c += lst
    c += stamp()
    cyc = [max(16, 8 + 4*gp.get("load", 0)) for gp in gaps[:n]]
    ps = phase_start + [n]
    stats = dict(nbar=sum(1 for x in F if x.i.kind == 'barrier'), per=[sum(cyc[a:b]) for a, b in zip(ps, ps[1:])], gaps=n, est_cycles=sum(cyc), tail_instr=len(gaps[n]["valu"]),
                 under=sum(max(0, 2 - gp.get("load", 0)) for gp in gaps[:n]), nops=out_nops, extra_waits=extra, late=len(late))
    if opt.dbg_sched:
        for l in late[:40]: print("late", l)
    if opt.dbg_sched > 1:
        ab = {"trans": "E", "valu": "v", "pk": "P", "perm": "x", "ds": "r", "dma": "D", "vstore": "S", "vload": "L", "nop": "n", "salu": "s", "wait": "w", "barrier": "B"}
        for T in range(len(phase_start)):
            row = []
            for g in range(ps[T], ps[T+1]):
                gp = gaps[g]
                row.append(("|" if g in gs else "") + "".join(ab[i.kind] for i in gp["shadow"][1:] + gp["mem"] + gp["valu"]) + ("" if gp["load"] >= 2 else "_" * (2 - gp["load"])))
            print(T, " ".join(row))
    return c, stats

opt.st_gap = 62; opt.st_gap2 = 40; opt.vm_sp = 10; opt.full_from = 0
opt.o_pol = opt.o1_pol = opt.olast_pol = opt.olastb_pol = 'sc1'; opt.q_pol = opt.kv_pol = 'nt'
opt.pro_order = 12; opt.line_prefetch = 0; opt.jit_every = 0; opt.stub_n0 = 1; opt.stub_n1 = 3
opt.first_k = 3
opt.first_v = 2
gen.body = body2

if __name__ == "__main__":
    out = sys.argv[1]
    for a in sys.argv[2:]:
        k, v = a.split("="); t = type(getattr(opt, k)); setattr(opt, k, v if t is str else t(int(v)))
    txt, errs, stats = gen.generate()
    for e in errs[:40]: print("HAZARD", e)
    print(len(errs), "hazards;", stats, len(txt), "chars")
    open(out, "w").write(txt)
    sys.exit(1 if errs else 0)
```
